```python
import torch

def _softmax(x, axis=-1):
    return torch.softmax(x, dim=axis)
def _gelu(x):
    return torch.nn.functional.gelu(x, approximate="tanh")
def _silu(x):
    return torch.nn.functional.silu(x)
def _sigmoid(x):
    return torch.sigmoid(x)
def _layernorm(x, axis=-1, eps=1e-5):
    m = x.mean(dim=axis, keepdim=True)
    v = x.var(dim=axis, keepdim=True, unbiased=False)
    return (x - m) / torch.sqrt(v + eps)
def _scatter_add(tgt, idx, src, axis=0):
    return tgt.clone().index_add_(axis, idx, src)
def _segment_sum(src, seg, n):
    out = torch.zeros((n,) + src.shape[1:], dtype=src.dtype)
    return out.index_add_(0, seg, src)
def _pad(x, pw):
    flat = tuple(v for pair in reversed(pw) for v in pair)
    return torch.nn.functional.pad(x, flat)

kernel_name = 'sequential_preLN__ssm_conv_h3__swiglu_ffn__prompt'

def setup_inputs():

    _w = (lambda a: (lambda t: t.to(torch.bfloat16) if t.is_floating_point() else t)(torch.as_tensor(a)))
    def _A_setup():
        B, S, D = 1, 2048, 512
        ks = 4
        return {
            "q": _w((lambda *s: torch.randn(*s, dtype=torch.bfloat16) * 0.05)(B, S, D)),
            "k": _w((lambda *s: torch.randn(*s, dtype=torch.bfloat16) * 0.4)(B, S, D)),
            "v": _w((lambda *s: torch.randn(*s, dtype=torch.bfloat16) * 0.4)(B, S, D)),
            "shift_k": _w((lambda *s: torch.randn(*s, dtype=torch.bfloat16) * 0.4)(D, ks) * 0.5),
            "ssm_k": _w((lambda *s: torch.randn(*s, dtype=torch.bfloat16) * 0.4)(D, S) * (1.0 / S ** 0.5)),
            "ssm_D": _w((lambda *s: torch.randn(*s, dtype=torch.bfloat16) * 0.4)(D)),
        }
    _A_in = _A_setup()

    def _B_setup():
        B, S, D, F = 1, 2048, 512, 1792
        return {
            "x": _w((lambda *s: torch.randn(*s, dtype=torch.bfloat16) * 0.05)(B, S, D)),
            "w_gate": _w((lambda *s: torch.randn(*s, dtype=torch.bfloat16) * 0.05)(D, F)),
            "w_up": _w((lambda *s: torch.randn(*s, dtype=torch.bfloat16) * 0.05)(D, F)),
            "w_down": _w((lambda *s: torch.randn(*s, dtype=torch.bfloat16) * 0.05)(F, D)),
        }
    _B_in = _B_setup()

    return {
        "A_q": _A_in["q"],
        "A_k": _A_in["k"],
        "A_v": _A_in["v"],
        "A_shift_k": _A_in["shift_k"],
        "A_ssm_k": _A_in["ssm_k"],
        "A_ssm_D": _A_in["ssm_D"],
        "B_x": _B_in["x"],
        "B_w_gate": _B_in["w_gate"],
        "B_w_up": _B_in["w_up"],
        "B_w_down": _B_in["w_down"],
    }

def reference(A_q, A_k, A_v, A_shift_k, A_ssm_k, A_ssm_D, B_x, B_w_gate, B_w_up, B_w_down):
    def _A_ref(q, k, v, shift_k, ssm_k, ssm_D):
        B, S, D = q.shape
        ks = shift_k.shape[-1]
        k_pad = _pad(k, ((0, 0), (ks - 1, 0), (0, 0)))
        k_shift = torch.zeros_like(k)
        for t in range(ks):
            k_shift = k_shift + k_pad[:, t:t + S, :] * shift_k[:, ks - 1 - t][None, None, :]
        kv = k_shift * v
        L = 2 * S
        kv_pad = _pad(kv, ((0, 0), (0, S), (0, 0)))
        kf_pad = _pad(ssm_k, ((0, 0), (0, S)))
        kv_f = (lambda x, axes=(-2,-1): torch.fft.rfft2(x.float(), dim=axes))(kv_pad[:, None, :, :], axes=(1, 2))
        kf_f = (lambda x, axes=(-2,-1): torch.fft.rfft2(x.float(), dim=axes))(kf_pad[:, None, :], axes=(1, 2))
        kf_f = (lambda x, *d: x.permute(*d))(kf_f, 1, 2, 0)
        y_f = kv_f * kf_f[None, :, :, :]
        y = (lambda x, s, axes=(-2,-1): torch.fft.irfft2(x, s=s, dim=axes).to(torch.bfloat16))(y_f, (1, L), axes=(1, 2))[:, 0, :S, :]
        y = y + kv * ssm_D[None, None, :]
        return q * y

    def _B_ref(x, w_gate, w_up, w_down):
        g = _silu(x @ w_gate)
        u = x @ w_up
        return (g * u) @ w_down

    x = A_q
    h = x + _A_ref(_layernorm(x, axis=-1), A_k, A_v, A_shift_k, A_ssm_k, A_ssm_D)
    h2 = h + _B_ref(_layernorm(h, axis=-1), B_w_gate, B_w_up, B_w_down)
    return h2
```

```python
import re

REG_RE = re.compile(r'\b([vas])(?:\[(\d+):(\d+)\]|(\d+))(?![\w\[])')

def regs_of(tok):
    out = []
    t = tok.strip()
    if t in ('vcc', 'vcc_lo', 'vcc_hi'):
        return [('x', 'vcc')]
    if t in ('exec', 'exec_lo', 'exec_hi'):
        return [('x', 'exec')]
    if t == 'm0':
        return [('x', 'm0')]
    for m in REG_RE.finditer(t):
        k = m.group(1)
        if m.group(2) is not None:
            out += [(k, i) for i in range(int(m.group(2)), int(m.group(3)) + 1)]
        else:
            out.append((k, int(m.group(4))))
    return out

TRANS = ('v_exp_f32', 'v_log_f32', 'v_rcp_f32', 'v_rsq_f32', 'v_sqrt_f32', 'v_sin_f32', 'v_cos_f32')

def split_ops(s):
    ops, depth, cur = [], 0, ''
    for ch in s:
        if ch in '[(':
            depth += 1
        if ch in '])':
            depth -= 1
        if ch == ',' and depth == 0:
            ops.append(cur.strip()); cur = ''
        else:
            cur += ch
    if cur.strip():
        ops.append(cur.strip())
    return ops

class Inst:
    __slots__ = ('text', 'op', 'cls', 'w', 'r', 'srcc', 'passes', 'states', 'dpp', 'storedata')

def classify(text):
    i = Inst(); i.text = text
    t = text.split(';')[0].strip()
    parts = t.split(None, 1)
    op = parts[0]; i.op = op
    rest = parts[1] if len(parts) > 1 else ''
    ops = split_ops(rest)
    toks = []
    for o in ops:
        toks.append(o.split()[0] if o and not o.startswith('abs') else o)
    i.w, i.r, i.srcc, i.passes, i.states = [], [], [], 0, 1
    i.dpp = ('dpp' in op) or ('quad_perm' in t) or ('row_' in t) or ('wave_' in t)
    i.storedata = []
    R = lambda k: regs_of(toks[k]) if k < len(toks) else []
    if op == 's_nop':
        i.cls = 'nop'; i.states = int(toks[0], 0) + 1
    elif op.startswith('v_mfma'):
        i.cls = 'mfma'
        i.passes = 8 if '32x32' in op else 4
        i.w = R(0); i.r = R(1) + R(2); i.srcc = R(3)
    elif op.startswith('v_cmp'):
        i.cls = 'valu'; i.w = R(0); i.r = sum((R(k) for k in range(1, len(toks))), [])
    elif op in ('v_readfirstlane_b32', 'v_readlane_b32'):
        i.cls = 'readlane'; i.w = R(0); i.r = sum((R(k) for k in range(1, len(toks))), [])
    elif op.startswith('v_permlane'):
        i.cls = 'permlane'; i.w = R(0) + R(1); i.r = R(0) + R(1)
    elif op.startswith('v_'):
        base = op.replace('_e32', '').replace('_e64', '')
        i.cls = 'trans' if base in TRANS else 'valu'
        i.w = R(0); i.r = sum((R(k) for k in range(1, len(toks))), [])
        if base.startswith(('v_fmac', 'v_dot2c', 'v_pk_fmac')) or i.dpp:
            i.r = i.r + R(0)
        if base.startswith(('v_add_co', 'v_sub_co', 'v_addc_co', 'v_subb_co')):
            i.w = R(0) + R(1)
        if base.startswith('v_cndmask') and len(toks) == 3:
            i.r = i.r + [('x', 'vcc')]
    elif op.startswith(('buffer_', 'global_')):
        i.cls = 'vmem'
        lds = bool(re.search(r'\blds\b', t)) or 'load_lds' in op
        allr = sum((R(k) for k in range(len(toks))), [])
        if 'load' in op and not lds:
            i.w = R(0); i.r = sum((R(k) for k in range(1, len(toks))), [])
        else:
            i.r = allr
            if lds:
                i.r = i.r + [('x', 'm0')]
            if 'store' in op and ('x4' in op or 'x3' in op):
                i.storedata = R(0) if op.startswith('buffer') else R(1)
            if 'atomic' in op and re.search(r'\bsc0\b', t):
                i.w = R(0)
    elif op.startswith('ds_'):
        i.cls = 'ds'
        if 'read' in op or 'permute' in op or 'swizzle' in op:
            i.w = R(0); i.r = sum((R(k) for k in range(1, len(toks))), [])
        else:
            i.r = sum((R(k) for k in range(len(toks))), [])
    elif op.startswith('s_'):
        i.cls = 'salu'
        if op.startswith(('s_cmp', 's_bitcmp', 's_cbranch', 's_branch', 's_waitcnt', 's_barrier', 's_endpgm', 's_setprio', 's_sleep', 's_setpc')):
            i.r = sum((R(k) for k in range(len(toks))), [])
        else:
            i.w = R(0); i.r = sum((R(k) for k in range(1, len(toks))), [])
            if 'saveexec' in op:
                i.w = i.w + [('x', 'exec')]
    else:
        raise ValueError('unknown op ' + text)
    return i

VALU_LIKE = ('valu', 'trans', 'readlane', 'permlane')

def need(prev, cur):
    n = 0
    pw = set(prev.w); cr = set(cur.r); cw = set(cur.w); cc = set(cur.srcc)
    pv = {x for x in pw if x[0] in 'va'}
    ps = {x for x in pw if x[0] in 's' or x == ('x', 'vcc')}
    if prev.cls in VALU_LIKE:
        if cur.cls == 'mfma' and pv & (cr | cc): n = max(n, 2)
        if cur.cls == 'readlane' and pv & cr: n = max(n, 1)
        if cur.cls == 'permlane' and pv & cr: n = max(n, 2)
        if cur.dpp and pv & cr: n = max(n, 2)
        if prev.cls == 'trans' and cur.cls in VALU_LIKE + ('mfma',) and pv & (cr | cc): n = max(n, 1)
        if ps:
            if cur.cls == 'vmem' and ps & cr: n = max(n, 5)
            if cur.cls in VALU_LIKE and ps & cr: n = max(n, 4 if cur.cls == 'readlane' else 2)
            if cur.cls == 'salu' and ps & cr: n = max(n, 1)
        if ('x', 'exec') in pw:
            n = max(n, 5)
    if prev.cls == 'salu':
        if ('x', 'm0') in pw and ('x', 'm0') in cr and cur.cls in ('vmem', 'ds'): n = max(n, 1)
    if prev.cls == 'mfma':
        p8 = prev.passes == 8
        if cur.cls == 'mfma':
            if pw & cc:
                same = (prev.w == cur.srcc and prev.passes == cur.passes)
                if not same: n = max(n, 10 if p8 else 6)
            if pw & cr: n = max(n, 12 if p8 else 8)
            if pw & cw and not (pw & cc): n = max(n, 12 if p8 else 8)
        else:
            if pw & (cr | cw): n = max(n, 12 if p8 else 8)
            if cur.cls in VALU_LIKE and set(prev.srcc) & cw: n = max(n, 7 if p8 else 3)
    if prev.cls == 'vmem' and prev.storedata:
        if set(prev.storedata) & cw: n = max(n, 2)
    return n

class Asm:
    def __init__(self):
        self.lines = []
        self.hist = []
        self.nlabel = 0
    def raw(self, s):
        self.lines.append(s)
    def label(self, name):
        self.lines.append(name + ':')
    def newlabel(self, p='L'):
        self.nlabel += 1
        return f'{p}_{self.nlabel}'
    def __call__(self, text):
        for ln in text.strip().split('\n'):
            ln = ln.strip()
            if not ln or ln.startswith(';'):
                continue
            if ln.endswith(':'):
                self.label(ln[:-1]); continue
            self.emit(ln)
    def emit(self, ln):
        cur = classify(ln)
        dist = 0; pad = 0
        for prev in reversed(self.hist):
            n = need(prev, cur)
            if n > dist:
                pad = max(pad, n - dist)
            dist += prev.states
            if dist >= 20:
                break
        while pad > 0:
            k = min(pad, 16)
            nop = classify(f's_nop {k-1}')
            self.lines.append(f'    s_nop {k-1}')
            self.hist.append(nop)
            pad -= k
        self.lines.append('    ' + ln)
        self.hist.append(cur)
        if len(self.hist) > 40:
            self.hist = self.hist[-40:]
    def flush_hist(self):
        self.hist = []
    def text(self):
        return '\n'.join(self.lines) + '\n'

def vr(a, n=1):
    return f'v{a}' if n == 1 else f'v[{a}:{a+n-1}]'
def ar(a, n=1):
    return f'a{a}' if n == 1 else f'a[{a}:{a+n-1}]'
def sr(a, n=1):
    return f's{a}' if n == 1 else f's[{a}:{a+n-1}]'

def kernel_desc(name, vgpr, sgpr, accum=None):
    if accum is None:
        accum = min(256, (vgpr + 3) // 4 * 4)
    return f'''.p2align 6
.amdhsa_kernel {name}
  .amdhsa_next_free_vgpr {vgpr}
  .amdhsa_next_free_sgpr {sgpr}
  .amdhsa_accum_offset {accum}
  .amdhsa_group_segment_fixed_size 0
  .amdhsa_kernarg_size 104
  .amdhsa_user_sgpr_count 2
  .amdhsa_user_sgpr_kernarg_segment_ptr 1
  .amdhsa_system_sgpr_workgroup_id_x 1
  .amdhsa_float_denorm_mode_32 3
.end_amdhsa_kernel
'''
```

```python
import sys
sys.path.insert(0, 'dev')
from asmlib import *

MiB = 1 << 20
WS_KVR = 0
WS_XT = 2 * MiB
WS_HT = 4 * MiB
WS_ST = 6 * MiB
WS_W1F = 8 * MiB
W1F_NT = 33 * 7 * 1024
WS_WDF = 12 * MiB
WS_ACT = 16 * MiB

HEADER = open('sequential_preLN__ssm_conv_h3__swiglu_ffn__prompt.s.ref').read().split('; Override launch')[0]

def srd(a, d, base, size, off=None, offreg=None):
    if off:
        a(f's_add_u32 s{d}, s{base}, {hex(off)}')
        a(f's_addc_u32 s{d+1}, s{base+1}, 0')
        if offreg is not None:
            a(f's_add_u32 s{d}, s{d}, s{offreg}')
            a(f's_addc_u32 s{d+1}, s{d+1}, 0')
    elif offreg is not None:
        a(f's_add_u32 s{d}, s{base}, s{offreg}')
        a(f's_addc_u32 s{d+1}, s{base+1}, 0')
    else:
        a(f's_mov_b32 s{d}, s{base}')
        a(f's_mov_b32 s{d+1}, s{base+1}')
    a(f's_mov_b32 s{d+2}, {hex(size)}')
    a(f's_mov_b32 s{d+3}, 0x20000')

def begin(a, name):
    a.raw(f'.globl {name}')
    a.raw('.p2align 8')
    a.raw(f'.type {name},@function')
    a.raw(f'{name}:')
    a.flush_hist()

def red32(a, v, t):
    a(f'v_add_f32_dpp v{v}, v{v}, v{v} quad_perm:[1,0,3,2] row_mask:0xf bank_mask:0xf')
    a(f'v_add_f32_dpp v{v}, v{v}, v{v} quad_perm:[2,3,0,1] row_mask:0xf bank_mask:0xf')
    a(f'v_add_f32_dpp v{v}, v{v}, v{v} row_half_mirror row_mask:0xf bank_mask:0xf')
    a(f'v_add_f32_dpp v{v}, v{v}, v{v} row_mirror row_mask:0xf bank_mask:0xf')
    a(f'v_mov_b32 v{t}, v{v}')
    a(f'v_permlane16_swap_b32 v{v}, v{t}')
    a(f'v_add_f32 v{v}, v{v}, v{t}')

def rne(a, d, s):
    a(f'v_cvt_pk_bf16_f32 v{d}, v{s}, v{s}')
    a(f'v_lshlrev_b32 v{d}, 16, v{d}')

def ln_scalars(a, mean, var, rs):
    rne(a, mean, mean)
    rne(a, var, var)
    a(f'v_add_f32 v{var}, 0x3727c5ac, v{var}')
    rne(a, var, var)
    a(f'v_sqrt_f32 v{var}, v{var}')
    rne(a, var, var)
    a(f'v_rcp_f32 v{rs}, v{var}')

def gen_prep(a):
    name = 'prep_kernel'
    begin(a, name)
    X, K, V, SH, KVR, XT, ST = 16, 20, 24, 28, 32, 36, 40
    a('s_cmp_ge_u32 s2, 256')
    a('s_cbranch_scc1 prep_end')
    a('s_load_dwordx8 s[4:11], s[0:1], 0')
    a('s_load_dwordx2 s[12:13], s[0:1], 96')
    a('v_and_b32 v4, 31, v0')
    a('v_lshrrev_b32 v5, 5, v0')
    a('s_and_b32 s14, s2, 7')
    a('s_lshr_b32 s15, s2, 3')
    a('s_lshl_b32 s44, s15, 16')
    a('s_lshl_b32 s45, s14, 7')
    a('s_add_u32 s44, s44, s45')
    a('v_lshlrev_b32 v2, 13, v5')
    a('v_lshl_add_u32 v2, v4, 2, v2')
    a('v_add_u32 v2, s44, v2')
    a('v_subrev_u32 v1, 0xc00, v2')
    a('v_add_u32 v3, 0x1000, v2')
    a('s_lshl_b32 s45, s14, 9')
    a('v_lshlrev_b32 v6, 4, v4')
    a('v_add_u32 v6, s45, v6')
    a('s_lshl_b32 s46, s2, 13')
    a('v_lshlrev_b32 v7, 10, v5')
    a('v_lshl_add_u32 v7, v4, 4, v7')
    a('v_add_u32 v7, s46, v7')
    a('s_lshl_b32 s45, s14, 18')
    a('s_lshl_b32 s46, s15, 7')
    a('s_add_u32 s45, s45, s46')
    a('v_lshlrev_b32 v8, 13, v4')
    a('v_lshl_add_u32 v8, v5, 4, v8')
    a('v_add_u32 v8, s45, v8')
    a('s_lshl_b32 s46, s2, 5')
    a('v_lshlrev_b32 v9, 2, v5')
    a('v_add_u32 v9, s46, v9')
    a('s_mov_b32 s47, 0x1000')
    a('s_mov_b32 s48, 0x2000')
    a('s_waitcnt lgkmcnt(0)')
    srd(a, K, 6, 2 * MiB)
    KR, VR, XR, SHR, XS = 10, 21, 29, 40, 44
    for r in range(11):
        vo = 1 if r < 3 else (2 if r < 7 else 3)
        off = (r if r < 3 else (r - 3) % 4) * 1024
        a(f'buffer_load_dword v{KR+r}, v{vo}, s[{K}:{K+3}], 0 offen offset:{off}')
    srd(a, V, 8, 2 * MiB)
    for r in range(8):
        a(f'buffer_load_dword v{VR+r}, v{2 if r < 4 else 3}, s[{V}:{V+3}], 0 offen offset:{(r%4)*1024}')
    srd(a, SH, 10, 4096)
    a(f'buffer_load_dwordx4 v[{SHR}:{SHR+3}], v6, s[{SH}:{SH+3}], 0 offen')
    srd(a, X, 4, 2 * MiB)
    a(f'buffer_load_dwordx4 v[{XS}:{XS+3}], v7, s[{X}:{X+3}], 0 offen')
    a(f'buffer_load_dwordx4 v[{XS+4}:{XS+7}], v7, s[{X}:{X+3}], 0 offen offset:512')
    for r in range(8):
        a(f'buffer_load_dword v{XR+r}, v{2 if r < 4 else 3}, s[{X}:{X+3}], 0 offen offset:{(r%4)*1024}')
    srd(a, KVR, 12, 2 * MiB, WS_KVR)
    srd(a, XT, 12, 2 * MiB, WS_XT)
    srd(a, ST, 12, 16384, WS_ST)
    a('s_mov_b32 s50, 0xffff0000')
    a('s_mov_b32 s51, 0x05040100')
    a('s_mov_b32 s52, 0x07060302')
    KF, WP, VF, KV = 60, 84, 92, 108
    a('s_waitcnt vmcnt(19)')
    for r in range(11):
        a(f'v_lshlrev_b32 v{KF+2*r}, 16, v{KR+r}')
        a(f'v_and_b32 v{KF+2*r+1}, s50, v{KR+r}')
    a('s_waitcnt vmcnt(11)')
    for r in range(8):
        a(f'v_lshlrev_b32 v{VF+2*r}, 16, v{VR+r}')
        a(f'v_and_b32 v{VF+2*r+1}, s50, v{VR+r}')
    a('s_waitcnt vmcnt(10)')
    for j in range(4):
        for c in range(2):
            src = SHR + 2 * c + j // 2
            if j % 2 == 0:
                a(f'v_lshlrev_b32 v{WP+2*j+c}, 16, v{src}')
            else:
                a(f'v_and_b32 v{WP+2*j+c}, s50, v{src}')
    P = lambda r: f'v[{r}:{r+1}]'
    for i in range(8):
        d = KV + 2 * i
        a(f'v_pk_mul_f32 {P(d)}, {P(KF+2*(i+0))}, {P(WP+6)}')
        for j in (2, 1, 0):
            a(f'v_pk_fma_f32 {P(d)}, {P(KF+2*(i+3-j))}, {P(WP+2*j)}, {P(d)}')
        a(f'v_pk_mul_f32 {P(d)}, {P(d)}, {P(VF+2*i)}')
    O = 128
    for c in range(2):
        for w in range(4):
            a(f'v_cvt_pk_bf16_f32 v{O+4*c+w}, v{KV+2*(7-2*w)+c}, v{KV+2*(6-2*w)+c}')
    a(f'buffer_store_dwordx4 v[{O}:{O+3}], v8, s[{KVR}:{KVR+3}], 0 offen')
    a(f'buffer_store_dwordx4 v[{O+4}:{O+7}], v8, s[{KVR}:{KVR+3}], s47 offen')
    a('s_waitcnt vmcnt(10)')
    E = 60
    for r in range(8):
        a(f'v_lshlrev_b32 v{E+2*r}, 16, v{XS+r}')
        a(f'v_and_b32 v{E+2*r+1}, s50, v{XS+r}')
    S = 80
    a(f'v_pk_add_f32 {P(S)}, {P(E)}, {P(E+2)}')
    for r in range(2, 8):
        a(f'v_pk_add_f32 {P(S)}, {P(S)}, {P(E+2*r)}')
    a(f'v_add_f32 v{S}, v{S}, v{S+1}')
    red32(a, S, S + 1)
    a(f'v_mul_f32 v{S}, 0x3b000000, v{S}')
    for r in range(16):
        a(f'v_sub_f32 v{E+r}, v{E+r}, v{S}')
    a(f'v_pk_mul_f32 {P(S+2)}, {P(E)}, {P(E)}')
    for r in range(1, 8):
        a(f'v_pk_fma_f32 {P(S+2)}, {P(E+2*r)}, {P(E+2*r)}, {P(S+2)}')
    a(f'v_add_f32 v{S+2}, v{S+2}, v{S+3}')
    red32(a, S + 2, S + 3)
    a(f'v_mul_f32 v{S+2}, 0x3b000000, v{S+2}')
    ln_scalars(a, S, S + 2, S + 4)
    a(f'v_mul_f32 v{S+5}, v{S}, v{S+4}')
    a(f'v_sub_f32 v{S+5}, 0, v{S+5}')
    a('s_waitcnt vmcnt(2)')
    O2 = 136
    for c in range(2):
        for w in range(4):
            a(f'v_perm_b32 v{O2+4*c+w}, v{XR+2*w+1}, v{XR+2*w}, s{51+c}')
    a(f'buffer_store_dwordx4 v[{O2}:{O2+3}], v8, s[{XT}:{XT+3}], 0 offen')
    a(f'buffer_store_dwordx4 v[{O2+4}:{O2+7}], v8, s[{XT}:{XT+3}], s47 offen')
    a('s_mov_b32 exec_lo, 1')
    a('s_mov_b32 exec_hi, 1')
    a(f'buffer_store_dword v{S+4}, v9, s[{ST}:{ST+3}], 0 offen')
    a(f'buffer_store_dword v{S+5}, v9, s[{ST}:{ST+3}], s48 offen')
    a('prep_end:')
    a('s_endpgm')
    return name, 144, 64, None

CV_E = 0
CV_ESZ = 2064 * 16
CV_XR = 2 * CV_ESZ
CV_RED = CV_XR + 4 * 2304
CV_FW1 = CV_RED + 16384
CV_FWD = CV_FW1 + 16384
CV_LDS = CV_FWD + 8192

def gen_conv(a):
    name = 'conv_kernel'
    begin(a, name)
    H, KVR, XT, HT, ST, WG, WU, WD, W1F, WDF = 20, 24, 28, 32, 36, 40, 44, 48, 52, 56
    a('s_cmp_ge_u32 s2, 256')
    a('s_cbranch_scc1 conv_end')
    a('s_load_dwordx4 s[4:7], s[0:1], 32')
    a('s_load_dwordx4 s[8:11], s[0:1], 56')
    a('s_load_dwordx2 s[12:13], s[0:1], 72')
    a('s_load_dwordx2 s[14:15], s[0:1], 96')
    a('v_lshrrev_b32 v1, 6, v0')
    a('v_and_b32 v2, 63, v0')
    a('v_readfirstlane_b32 s60, v1')
    a('s_and_b32 s16, s2, 7')
    a('s_lshr_b32 s17, s2, 3')
    a('s_lshl_b32 s16, s16, 5')
    a('s_add_u32 s16, s16, s17')
    a('s_lshr_b32 s61, s60, 1')
    a('s_and_b32 s62, s60, 1')
    a('s_lshl_b32 s63, s16, 1')
    a('s_add_u32 s63, s63, s61')
    a('s_lshl_b32 s64, s63, 12')
    a('s_lshl_b32 s65, s16, 2')
    a('v_and_b32 v3, 15, v2')
    a('v_lshrrev_b32 v4, 4, v2')
    a('v_lshlrev_b32 v5, 1, v2')
    a('v_lshlrev_b32 v6, 5, v2')
    a('v_sub_u32 v6, 0x7e0, v6')
    a('s_mul_i32 s66, s61, %d' % CV_ESZ)
    a('s_waitcnt lgkmcnt(0)')
    srd(a, H, 4, 4096, offreg=64)
    a('s_load_dword s67, s[6:7], s65')
    a('s_lshl_b32 s68, s62, 14')
    a('s_add_u32 s68, s68, s66')
    a('s_add_u32 s68, s68, 256')
    a('s_lshl_b32 s69, s62, 11')
    a('s_mov_b32 m0, s68')
    for i in range(16):
        a(f'buffer_load_dwordx4 v5, s[{H}:{H+3}], s69 offen offset:{128*i} lds')
        if i < 15:
            a('s_add_u32 m0, m0, 896')
    srd(a, KVR, 14, 4096, WS_KVR, offreg=64)
    a('s_mul_i32 s70, s60, 2304')
    a('s_add_u32 s70, s70, %d' % CV_XR)
    a('s_lshl_b32 s71, s62, 4')
    a('s_sub_u32 s72, 2064, s71')
    a('s_sub_u32 s73, 16, s71')
    a('s_mov_b32 m0, s70')
    a(f'buffer_load_dwordx4 v6, s[{KVR}:{KVR+3}], s72 offen lds')
    a('s_add_u32 m0, m0, 1024')
    a(f'buffer_load_dwordx4 v6, s[{KVR}:{KVR+3}], s73 offen lds')
    a('v_and_b32 v7, 7, v2')
    a('v_lshrrev_b32 v8, 3, v2')
    a('s_lshl_b32 s74, s62, 3')
    a('v_add_u32 v8, s74, v8')
    a('v_sub_u32 v9, v7, v8')
    a('v_add_u32 v9, -1, v9')
    a('v_lshlrev_b32 v9, 1, v9')
    a(f'buffer_load_ushort v10, v9, s[{H}:{H+3}], 0 offen')
    a('v_sub_u32 v8, 15, v8')
    a('v_lshlrev_b32 v8, 4, v8')
    a('v_lshl_add_u32 v8, v7, 1, v8')
    a('v_add_u32 v8, s66, v8')
    srd(a, XT, 14, 4096, WS_XT, offreg=64)
    srd(a, ST, 14, 16384, WS_ST)
    a('v_lshlrev_b32 v11, 5, v3')
    a('v_lshl_add_u32 v11, v4, 3, v11')
    a('v_lshlrev_b32 v12, 1, v11')
    a('s_lshl_b32 s75, s62, 12')
    a('s_add_u32 s76, s75, 8192')
    XV, RS, MR = 16, 24, 40
    for t in range(4):
        a(f'buffer_load_dwordx2 v[{XV+2*t}:{XV+2*t+1}], v11, s[{XT}:{XT+3}], s69 offen offset:{512*t}')
        a(f'buffer_load_dwordx4 v[{RS+4*t}:{RS+4*t+3}], v12, s[{ST}:{ST+3}], s75 offen offset:{1024*t}')
        a(f'buffer_load_dwordx4 v[{MR+4*t}:{MR+4*t+3}], v12, s[{ST}:{ST+3}], s76 offen offset:{1024*t}')
    srd(a, WG, 8, 512 * 3584)
    srd(a, WU, 10, 512 * 3584)
    srd(a, WD, 12, 1792 * 1024)
    a('s_min_u32 s77, s2, 223')
    a('s_mul_hi_u32 s78, s77, %d' % (2**32 // 28 + 1))
    a('s_mul_i32 s79, s78, 28')
    a('s_sub_u32 s79, s77, s79')
    a('v_lshrrev_b32 v13, 3, v2')
    a('v_mul_u32_u24 v13, 3584, v13')
    a('v_lshl_add_u32 v13, v7, 4, v13')
    a('s_lshl_b32 s80, s78, 6')
    a('s_lshl_b32 s81, s60, 4')
    a('s_add_u32 s80, s80, s81')
    a('s_mul_i32 s80, s80, 3584')
    a('s_lshl_b32 s81, s79, 7')
    a('s_add_u32 s80, s80, s81')
    a('s_add_u32 s81, s80, %d' % (8 * 3584))
    a('s_lshl_b32 s82, s60, 11')
    a('s_add_u32 s83, s82, %d' % CV_FW1)
    a('s_mov_b32 m0, s83')
    a(f'buffer_load_dwordx4 v13, s[{WG}:{WG+3}], s80 offen lds')
    a('s_add_u32 m0, m0, 1024')
    a(f'buffer_load_dwordx4 v13, s[{WG}:{WG+3}], s81 offen lds')
    a('s_add_u32 m0, m0, %d' % (8192 - 1024))
    a(f'buffer_load_dwordx4 v13, s[{WU}:{WU+3}], s80 offen lds')
    a('s_add_u32 m0, m0, 1024')
    a(f'buffer_load_dwordx4 v13, s[{WU}:{WU+3}], s81 offen lds')
    a('v_lshrrev_b32 v14, 5, v2')
    a('v_lshlrev_b32 v14, 10, v14')
    a('v_and_b32 v15, 31, v2')
    a('v_lshl_add_u32 v14, v15, 4, v14')
    a('s_lshr_b32 s84, s77, 1')
    a('s_and_b32 s85, s77, 1')
    a('s_lshl_b32 s86, s84, 14')
    a('s_lshl_b32 s87, s85, 9')
    a('s_add_u32 s86, s86, s87')
    a('s_lshl_b32 s87, s60, 12')
    a('s_add_u32 s86, s86, s87')
    a('s_add_u32 s87, s86, 2048')
    a('s_add_u32 s83, s82, %d' % CV_FWD)
    a('s_mov_b32 m0, s83')
    a(f'buffer_load_dwordx4 v14, s[{WD}:{WD+3}], s86 offen lds')
    a('s_add_u32 m0, m0, 1024')
    a(f'buffer_load_dwordx4 v14, s[{WD}:{WD+3}], s87 offen lds')
    srd(a, HT, 14, 4096, WS_HT, offreg=64)
    srd(a, W1F, 14, 16 * W1F_NT, WS_W1F)
    srd(a, WDF, 14, 1792 * 1024, WS_WDF)
    a('v_mov_b32 v60, 0')
    a('v_lshlrev_b32 v61, 2, v2')
    a('v_add_u32 v61, s70, v61')
    a('ds_write_b32 v61, v60 offset:2048')
    a('v_and_b32 v62, 1, v4')
    a('v_lshrrev_b32 v63, 1, v4')
    a('v_lshl_add_u32 v61, v62, 1, v63')
    AA, BA = 224, 225
    a(f'v_lshl_add_u32 v{AA}, v61, 3, v3')
    a(f'v_sub_u32 v226, 15, v{AA}')
    a(f'v_lshlrev_b32 v{AA}, 4, v{AA}')
    a('s_lshl_b32 s88, s62, 11')
    a('s_add_u32 s88, s88, s66')
    a('s_add_u32 s88, s88, 16')
    a(f'v_add_u32 v{AA}, s88, v{AA}')
    a(f'v_sub_u32 v{BA}, v62, v3')
    a(f'v_add_u32 v{BA}, 15, v{BA}')
    a(f'v_lshlrev_b32 v{BA}, 4, v{BA}')
    a('v_mul_u32_u24 v63, 2304, v63')
    a(f'v_add_u32 v{BA}, v{BA}, v63')
    a('s_mul_i32 s89, s61, 4608')
    a('s_lshl_b32 s90, s62, 7')
    a('s_add_u32 s89, s89, s90')
    a('s_add_u32 s89, s89, %d' % CV_XR)
    a(f'v_add_u32 v{BA}, s89, v{BA}')
    AD = 56
    a('s_waitcnt lgkmcnt(0)')
    a('s_lshl_b32 s90, s61, 4')
    a('s_lshr_b32 s67, s67, s90')
    a('s_and_b32 s67, s67, 0xffff')
    a('v_and_b32 v227, 1, v226')
    a('v_lshlrev_b32 v227, 4, v227')
    a('v_lshlrev_b32 v227, v227, s67')
    a('v_lshrrev_b32 v226, 1, v226')
    for w in range(4):
        a(f'v_cmp_eq_u32 vcc, {w}, v226')
        a(f'v_cndmask_b32 v{AD+w}, 0, v227, vcc')
    a('s_waitcnt vmcnt(18)')
    a('ds_write_b16 v8, v10')
    a('s_waitcnt lgkmcnt(0)')
    a('s_barrier')
    FA = [64, 128]; FB = [96, 160]; ACC = 192
    def rdA(s, ri, aa): return f'ds_read_b128 v[{FA[s]+4*aa}:{FA[s]+4*aa+3}], v{AA} offset:{512*(8*aa+ri)}'
    def rdB(s, ri, bb): return f'ds_read_b128 v[{FB[s]+4*bb}:{FB[s]+4*bb+3}], v{BA} offset:{32*(56-8*bb+ri)}'
    inited = [False] * 8
    def mf(s, aa, bb):
        nb = aa + bb
        c = f'v[{ACC+4*nb}:{ACC+4*nb+3}]'
        src = c if inited[nb] else '0'
        inited[nb] = True
        return f'v_mfma_f32_16x16x32_bf16 {c}, v[{FA[s]+4*aa}:{FA[s]+4*aa+3}], v[{FB[s]+4*bb}:{FB[s]+4*bb+3}], {src}'
    for x in range(8):
        a(rdA(0, 0, x)); a(rdB(0, 0, x))
    for ri in range(4):
        s = ri & 1
        pairs = sorted([(aa, bb) for aa in range(8) for bb in range(8) if aa + bb <= 7], key=lambda p: (max(p), p))
        nxt = []
        if ri < 3:
            for x in range(8):
                nxt += [rdA(1 - s, ri + 1, x), rdB(1 - s, ri + 1, x)]
        if ri == 0:
            lastmax = -1
            for (aa, bb) in pairs:
                mx = max(aa, bb)
                if mx != lastmax:
                    a(f's_waitcnt lgkmcnt({min(15, 14 - 2*mx)})')
                    lastmax = mx
                a(mf(s, aa, bb))
            for r in nxt[:8]: a(r)
            a('s_cmp_eq_u32 s62, 0')
            a('s_cbranch_scc0 conv_noD')
            for nb in range(8):
                c = f'v[{ACC+4*nb}:{ACC+4*nb+3}]'
                a(f'v_mfma_f32_16x16x32_bf16 {c}, v[{AD}:{AD+3}], v[{FB[s]+4*nb}:{FB[s]+4*nb+3}], {c}')
            a('conv_noD:')
            for r in nxt[8:]: a(r)
        else:
            a('s_waitcnt lgkmcnt(0)')
            for n, (aa, bb) in enumerate(pairs):
                a(mf(s, aa, bb))
                if n < len(nxt): a(nxt[n])
    a('v_lshlrev_b32 v61, 4, v2')
    a('s_lshl_b32 s90, s60, 12')
    a('s_add_u32 s91, s90, %d' % CV_RED)
    a('s_xor_b32 s90, s90, 0x1000')
    a('s_add_u32 s90, s90, %d' % CV_RED)
    a('v_add_u32 v62, s91, v61')
    a('v_add_u32 v63, s90, v61')
    a('s_nop 7')
    a('s_cmp_eq_u32 s62, 0')
    a('s_cbranch_scc0 conv_h1')
    for t in range(4):
        a(f'ds_write_b128 v62, v[{ACC+16+4*t}:{ACC+16+4*t+3}] offset:{1024*t}')
    a('s_branch conv_join')
    a('conv_h1:')
    for t in range(4):
        a(f'ds_write_b128 v62, v[{ACC+4*t}:{ACC+4*t+3}] offset:{1024*t}')
    a('s_waitcnt lgkmcnt(0)')
    for r in range(16):
        a(f'v_mov_b32 v{ACC+r}, v{ACC+16+r}')
    a('conv_join:')
    a('s_waitcnt vmcnt(0) lgkmcnt(0)')
    a('s_barrier')
    PR = 64
    for t in range(4):
        a(f'ds_read_b128 v[{PR+4*t}:{PR+4*t+3}], v63 offset:{1024*t}')
    a('v_lshrrev_b32 v100, 2, v3')
    a('v_and_b32 v101, 3, v3')
    a('v_lshrrev_b32 v102, 1, v4')
    a('v_and_b32 v103, 1, v4')
    a('v_lshl_add_u32 v104, v102, 3, v100')
    a('v_lshlrev_b32 v104, 7, v104')
    a('v_lshl_add_u32 v104, v103, 13, v104')
    a('v_lshl_add_u32 v104, v101, 3, v104')
    a('s_lshl_b32 s90, s60, 5')
    a('s_add_u32 s90, s90, %d' % CV_FW1)
    a('v_add_u32 v104, s90, v104')
    FF = 128
    for ks in range(4):
        a(f'ds_read_b64_tr_b16 v[{FF+4*ks}:{FF+4*ks+1}], v104 offset:{2048*ks}')
        a(f'ds_read_b64_tr_b16 v[{FF+4*ks+2}:{FF+4*ks+3}], v104 offset:{2048*ks+512}')
    a('v_lshl_add_u32 v105, v102, 2, v100')
    a('v_lshlrev_b32 v105, 9, v105')
    a('v_lshl_add_u32 v105, v103, 5, v105')
    a('v_lshl_add_u32 v105, v101, 3, v105')
    a('s_lshl_b32 s90, s60, 7')
    a('s_add_u32 s90, s90, %d' % CV_FWD)
    a('v_add_u32 v105, s90, v105')
    FD = 144
    a('s_waitcnt lgkmcnt(8)')
    for x in range(2):
        a(f'ds_read_b64_tr_b16 v[{FD+4*x}:{FD+4*x+1}], v105 offset:{64*x}')
        a(f'ds_read_b64_tr_b16 v[{FD+4*x+2}:{FD+4*x+3}], v105 offset:{64*x+4096}')
    a('s_mov_b32 s92, 0xffff0000')
    for t in range(4):
        z = ACC + 4 * t
        for r in range(4):
            a(f'v_add_f32 v{z+r}, v{z+r}, v{PR+4*t+r}')
        xf = 80
        a(f'v_lshlrev_b32 v{xf}, 16, v{XV+2*t}')
        a(f'v_and_b32 v{xf+1}, s92, v{XV+2*t}')
        a(f'v_lshlrev_b32 v{xf+2}, 16, v{XV+2*t+1}')
        a(f'v_and_b32 v{xf+3}, s92, v{XV+2*t+1}')
        for r in range(4):
            a(f'v_fma_f32 v{84+r}, v{xf+r}, v{RS+4*t+r}, v{MR+4*t+r}')
        for r in range(4):
            a(f'v_fma_f32 v{84+r}, v{84+r}, v{z+r}, v{xf+r}')
        a(f'v_cvt_pk_bf16_f32 v{88+2*t}, v84, v85')
        a(f'v_cvt_pk_bf16_f32 v{89+2*t}, v86, v87')
        a(f'buffer_store_dwordx2 v[{88+2*t}:{89+2*t}], v11, s[{HT}:{HT+3}], s69 offen offset:{512*t}')
    a('s_lshl_b32 s90, s79, 2')
    a('s_add_u32 s90, s90, s60')
    a('s_mul_hi_u32 s91, s90, %d' % (2**32 // 7 + 1))
    a('s_mul_i32 s93, s91, 7')
    a('s_sub_u32 s93, s90, s93')
    a('s_mul_i32 s91, s91, %d' % W1F_NT)
    a('s_lshl_b32 s93, s93, 10')
    a('s_add_u32 s91, s91, s93')
    a('s_mul_i32 s93, s78, %d' % (4 * 7168))
    a('s_add_u32 s93, s93, s91')
    for w in range(4):
        a(f'v_mov_b32 v{108+w}, 0x3f803f80')
    a('s_waitcnt lgkmcnt(0)')
    CS = 160
    for ks in range(4):
        a(f'buffer_store_dwordx4 v[{FF+4*ks}:{FF+4*ks+3}], v61, s[{W1F}:{W1F+3}], s93 offen')
        a('s_add_u32 s93, s93, 7168')
        src = '0' if ks == 0 else f'v[{CS}:{CS+15}]'
        a(f'v_mfma_f32_32x32x16_bf16 v[{CS}:{CS+15}], v[108:111], v[{FF+4*ks}:{FF+4*ks+3}], {src}')
    a('s_lshl_b32 s94, s85, 2')
    a('s_add_u32 s94, s94, s60')
    a('s_mul_i32 s94, s94, 112')
    a('s_add_u32 s94, s94, s84')
    a('s_lshl_b32 s94, s94, 11')
    a(f'buffer_store_dwordx4 v[{FD}:{FD+3}], v61, s[{WDF}:{WDF+3}], s94 offen')
    a(f'buffer_store_dwordx4 v[{FD+4}:{FD+7}], v61, s[{WDF}:{WDF+3}], s94 offen offset:1024')
    a('s_lshr_b32 s95, s78, 2')
    a('s_lshl_b32 s95, s95, 9')
    a('s_and_b32 s96, s78, 3')
    a('s_lshl_b32 s96, s96, 2')
    a('s_add_u32 s95, s95, s96')
    a('s_add_u32 s95, s95, s91')
    a('s_add_u32 s95, s95, %d' % (32 * 7168))
    rne(a, 112, CS)
    a(f'v_sub_f32 v113, v{CS}, v112')
    a('v_cvt_pk_bf16_f32 v113, v112, v113')
    a('s_mov_b32 exec_hi, 0')
    a(f'buffer_store_dword v113, v61, s[{W1F}:{W1F+3}], s95 offen')
    a('conv_end:')
    a('s_endpgm')
    return name, 228, 100, None

G1_STAGE = 22528
G1_NSLOT = 7
G1_LDS = G1_STAGE * G1_NSLOT

def gen_gemm1(a):
    name = 'gemm1_kernel'
    begin(a, name)
    W1F, HT, ACT = 8, 12, 16
    a('s_cmp_ge_u32 s2, 256')
    a('s_cbranch_scc1 g1_end')
    a('s_load_dwordx2 s[4:5], s[0:1], 96')
    a('v_lshrrev_b32 v1, 6, v0')
    a('v_and_b32 v2, 63, v0')
    a('v_readfirstlane_b32 s20, v1')
    a('s_and_b32 s21, s2, 1')
    a('s_lshl_b32 s21, s21, 3')
    a('s_bfe_u32 s22, s2, 0x30003')
    a('s_add_u32 s21, s21, s22')
    a('s_bfe_u32 s22, s2, 0x20001')
    a('s_lshl_b32 s22, s22, 2')
    a('s_lshr_b32 s23, s2, 6')
    a('s_add_u32 s22, s22, s23')
    a('s_mul_i32 s23, s22, %d' % W1F_NT)
    a('s_mul_i32 s24, s20, 3584')
    a('v_lshlrev_b32 v3, 4, v2')
    a('v_add_u32 v4, s24, v3')
    a('v_lshrrev_b32 v5, 4, v2')
    a('v_and_b32 v6, 15, v2')
    a('v_lshlrev_b32 v7, 2, v5')
    a('v_xor_b32 v7, v7, v6')
    a('v_lshlrev_b32 v7, 4, v7')
    a('v_lshl_add_u32 v7, v5, 12, v7')
    a('s_lshl_b32 s25, s21, 8')
    a('s_lshl_b32 s26, s20, 15')
    a('s_add_u32 s25, s25, s26')
    a('v_add_u32 v7, s25, v7')
    a('v_add_u32 v8, 0x4000, v7')
    a('s_lshl_b32 s26, s20, 11')
    a('s_add_u32 s26, s26, 14336')
    a('s_waitcnt lgkmcnt(0)')
    srd(a, W1F, 4, W1F_NT, WS_W1F, offreg=23)
    srd(a, HT, 4, 2 * MiB, WS_HT)
    a('s_mov_b32 s30, 0')
    a('s_mov_b32 s31, 0')
    a('s_mov_b32 s32, 0')
    def dma_stage():
        L = []
        L.append('s_add_u32 m0, s32, s24')
        L.append(f'buffer_load_dwordx4 v4, s[{W1F}:{W1F+3}], s30 offen lds')
        L.append(f'buffer_load_dwordx4 v4, s[{W1F}:{W1F+3}], s30 offen offset:1024 lds')
        L.append(f'buffer_load_dwordx4 v4, s[{W1F}:{W1F+3}], s30 offen offset:2048 lds')
        L.append(f's_mov_b32 exec_hi, 0\nbuffer_load_dwordx4 v4, s[{W1F}:{W1F+3}], s30 offen offset:3072 lds\ns_mov_b32 exec_hi, -1')
        L.append('s_add_u32 m0, s32, s26')
        L.append(f'buffer_load_dwordx4 v7, s[{HT}:{HT+3}], s31 offen lds')
        L.append('s_add_u32 m0, m0, 1024')
        L.append(f'buffer_load_dwordx4 v8, s[{HT}:{HT+3}], s31 offen lds')
        L.append('s_add_u32 s30, s30, 14336')
        L.append('s_add_u32 s31, s31, 0x20000')
        L.append('s_add_u32 s32, s32, %d' % G1_STAGE)
        L.append('s_cmp_eq_u32 s32, %d' % G1_LDS)
        L.append('s_cselect_b32 s32, 0, s32')
        return L
    a('s_mov_b32 s33, 0')
    a('g1_pro:')
    for x in dma_stage(): a(x)
    a('s_add_u32 s33, s33, 1')
    a('s_cmp_lt_u32 s33, 6')
    a('s_cbranch_scc1 g1_pro')
    srd(a, ACT, 4, 64 * 112 * 1024, WS_ACT)
    a('v_lshrrev_b32 v12, 2, v6')
    a('v_and_b32 v13, 3, v6')
    a('v_lshrrev_b32 v14, 1, v5')
    a('v_and_b32 v15, 1, v5')
    a('v_lshl_add_u32 v11, v14, 3, v12')
    a('v_lshlrev_b32 v11, 8, v11')
    a('v_xor_b32 v12, s20, v12')
    a('v_lshl_add_u32 v11, v12, 6, v11')
    a('v_lshl_add_u32 v11, v15, 5, v11')
    a('v_lshl_add_u32 v11, v13, 3, v11')
    a('v_add_u32 v11, 14336, v11')
    a('v_mov_b32 v10, v3')
    WF = [32, 64]; HF = [60, 92]; ACC = 96
    S1, S2, T0 = 16, 18, 20
    for r in range(112):
        a(f'v_mov_b32 v{ACC+r}, 0')
    for r in (S1, S1 + 1, S2, S2 + 1):
        a(f'v_mov_b32 v{r}, 0')
    a('s_mov_b32 s34, 0xffff0000')
    a('s_mov_b32 s35, 0')
    a('s_mov_b32 s33, 0')
    def reads(s, ks):
        L = [f'ds_read_b64_tr_b16 v[{HF[s]}:{HF[s]+1}], v11 offset:{4096*ks}',
             f'ds_read_b64_tr_b16 v[{HF[s]+2}:{HF[s]+3}], v11 offset:{4096*ks+1024}']
        for f in range(7):
            L.append(f'ds_read_b128 v[{WF[s]+4*f}:{WF[s]+4*f+3}], v10 offset:{7168*ks+1024*f}')
        return L
    def stats(s):
        L = []
        for w in range(4):
            L.append(f'v_lshlrev_b32 v{T0}, 16, v{HF[s]+w}')
            L.append(f'v_and_b32 v{T0+1}, s34, v{HF[s]+w}')
            L.append(f'v_add_f32 v{S1}, v{S1}, v{T0}')
            L.append(f'v_add_f32 v{S1+1}, v{S1+1}, v{T0+1}')
            L.append(f'v_fmac_f32 v{S2}, v{T0}, v{T0}')
            L.append(f'v_fmac_f32 v{S2+1}, v{T0+1}, v{T0+1}')
        return L
    def mfmas(s):
        return [f'v_mfma_f32_32x32x16_bf16 v[{ACC+16*f}:{ACC+16*f+15}], v[{WF[s]+4*f}:{WF[s]+4*f+3}], v[{HF[s]}:{HF[s]+3}], v[{ACC+16*f}:{ACC+16*f+15}]' for f in range(7)]
    def interleave(ms, fill):
        n = len(ms); k = 0
        for i, m in enumerate(ms):
            a(m)
            tgt = (len(fill) * (i + 1) + n - 1) // n
            while k < tgt:
                a(fill[k]); k += 1
    a('s_waitcnt vmcnt(30)')
    a('s_barrier')
    for x in reads(0, 0): a(x)
    a('g1_loop:')
    a('s_waitcnt lgkmcnt(0)')
    interleave(mfmas(0), reads(1, 1) + dma_stage() + stats(0))
    a('s_add_u32 s35, s35, %d' % G1_STAGE)
    a('s_cmp_eq_u32 s35, %d' % G1_LDS)
    a('s_cselect_b32 s36, %d, %d' % (-(G1_LDS - G1_STAGE) & 0xffffffff, 0))
    a('s_cselect_b32 s35, 0, s35')
    a('s_cselect_b32 s36, s36, %d' % G1_STAGE)
    a('s_waitcnt vmcnt(30) lgkmcnt(0)')
    a('s_barrier')
    a('v_add_u32 v10, s36, v10')
    a('v_add_u32 v11, s36, v11')
    interleave(mfmas(1), reads(0, 0) + stats(1))
    a('s_add_u32 s33, s33, 1')
    a('s_cmp_lt_u32 s33, 16')
    a('s_cbranch_scc1 g1_loop')
    a(f'v_add_f32 v{S1}, v{S1}, v{S1+1}')
    a(f'v_add_f32 v{S2}, v{S2}, v{S2+1}')
    a(f'v_mov_b32 v{S1+1}, v{S1}')
    a(f'v_mov_b32 v{S2+1}, v{S2}')
    a(f'v_permlane32_swap_b32 v{S1}, v{S1+1}')
    a(f'v_permlane32_swap_b32 v{S2}, v{S2+1}')
    a(f'v_add_f32 v{S1}, v{S1}, v{S1+1}')
    a(f'v_add_f32 v{S2}, v{S2}, v{S2+1}')
    a(f'v_mul_f32 v{S1}, 0x3b000000, v{S1}')
    a(f'v_mul_f32 v{S2}, 0x3b000000, v{S2}')
    a(f'v_fma_f32 v{S2}, -v{S1}, v{S1}, v{S2}')
    a(f'v_max_f32 v{S2}, 0, v{S2}')
    a(f'v_sub_f32 v{T0}, 0, v{S1}')
    a('s_waitcnt lgkmcnt(0)')
    for w in range(4):
        a(f'v_cvt_pk_bf16_f32 v{HF[0]+w}, v{T0}, v{T0}')
    for m in mfmas(0): a(m)
    RSV, C1, IR2 = 22, 23, 24
    ln_scalars(a, S1, S2, RSV)
    a(f'v_mul_f32 v{C1}, 0xbfb8aa3b, v{RSV}')
    a(f'v_mul_f32 v{IR2}, v{S2}, v{S2}')
    a('s_lshl_b32 s37, s21, 2')
    a('s_add_u32 s37, s37, s20')
    a('s_mul_i32 s37, s37, 112')
    a('s_mul_i32 s38, s22, 7')
    a('s_add_u32 s37, s37, s38')
    a('s_lshl_b32 s37, s37, 10')
    for f in range(7):
        g = ACC + 16 * f; u = g + 8
        T = 32 + 16 * (f & 1)
        for e in range(8): a(f'v_mul_f32 v{T+e}, v{g+e}, v{C1}')
        for e in range(8): a(f'v_exp_f32 v{T+e}, v{T+e}')
        for e in range(8): a(f'v_mul_f32 v{g+e}, v{g+e}, v{u+e}')
        for e in range(8): a(f'v_fma_f32 v{T+e}, v{T+e}, v{IR2}, v{IR2}')
        for e in range(8): a(f'v_rcp_f32 v{T+e}, v{T+e}')
        for e in range(8): a(f'v_mul_f32 v{g+e}, v{g+e}, v{T+e}')
        for w in range(4): a(f'v_cvt_pk_bf16_f32 v{T+8+w}, v{g+2*w}, v{g+2*w+1}')
        a(f'buffer_store_dwordx4 v[{T+8}:{T+11}], v3, s[{ACT}:{ACT+3}], s37 offen')
        if f < 6: a('s_add_u32 s37, s37, 1024')
    a('g1_end:')
    a('s_endpgm')
    return name, 208, 48, None

G2_RED = 0
G2_H = 49152
G2_LDS = G2_H + 8192

def gen_gemm2(a):
    name = 'gemm2_kernel'
    begin(a, name)
    WDF, ACT, HT, OUT = 8, 12, 16, 20
    a('s_cmp_ge_u32 s2, 256')
    a('s_cbranch_scc1 g2_end')
    a('s_load_dwordx2 s[4:5], s[0:1], 96')
    a('s_load_dwordx2 s[6:7], s[0:1], 80')
    a('v_lshrrev_b32 v1, 6, v0')
    a('v_and_b32 v2, 63, v0')
    a('v_readfirstlane_b32 s24, v1')
    a('s_and_b32 s25, s2, 7')
    a('s_lshl_b32 s25, s25, 2')
    a('s_bfe_u32 s26, s2, 0x20003')
    a('s_add_u32 s25, s25, s26')
    a('s_lshr_b32 s26, s2, 5')
    a('v_lshlrev_b32 v3, 4, v2')
    a('s_mul_i32 s27, s25, 224')
    a('s_mul_i32 s28, s24, 28')
    a('s_add_u32 s27, s27, s28')
    a('s_lshl_b32 s27, s27, 10')
    a('s_mul_i32 s29, s26, 112')
    a('s_add_u32 s29, s29, s28')
    a('s_lshl_b32 s29, s29, 11')
    a('v_add_u32 v4, 0x1c000, v3')
    a('s_waitcnt lgkmcnt(0)')
    srd(a, ACT, 4, 64 * 112 * 1024, WS_ACT)
    srd(a, WDF, 4, 1792 * 1024, WS_WDF)
    DEPTH = 14
    BUF = 16
    def loads(k):
        b = BUF + 16 * (k % DEPTH)
        L = [f'buffer_load_dwordx4 v[{b}:{b+3}], v3, s[{WDF}:{WDF+3}], s29 offen',
             f'buffer_load_dwordx4 v[{b+4}:{b+7}], v3, s[{WDF}:{WDF+3}], s29 offen offset:1024',
             f'buffer_load_dwordx4 v[{b+8}:{b+11}], v3, s[{ACT}:{ACT+3}], s27 offen',
             f'buffer_load_dwordx4 v[{b+12}:{b+15}], v4, s[{ACT}:{ACT+3}], s27 offen',
             's_add_u32 s29, s29, 2048',
             's_add_u32 s27, s27, 1024']
        return L
    for k in range(DEPTH):
        for x in loads(k): a(x)
    srd(a, HT, 4, 2 * MiB, WS_HT)
    srd(a, OUT, 6, 2 * MiB)
    a('v_lshrrev_b32 v5, 3, v2')
    a('v_and_b32 v6, 7, v2')
    a('v_lshlrev_b32 v5, 12, v5')
    a('v_lshl_add_u32 v5, v6, 4, v5')
    a('s_lshl_b32 s30, s26, 18')
    a('s_lshl_b32 s31, s24, 16')
    a('s_add_u32 s30, s30, s31')
    a('s_lshl_b32 s31, s25, 7')
    a('s_add_u32 s30, s30, s31')
    a('s_add_u32 s31, s30, 0x8000')
    a('s_lshl_b32 s32, s24, 11')
    a('s_add_u32 m0, s32, %d' % G2_H)
    a(f'buffer_load_dwordx4 v5, s[{HT}:{HT+3}], s30 offen lds')
    a('s_add_u32 m0, m0, 1024')
    a(f'buffer_load_dwordx4 v5, s[{HT}:{HT+3}], s31 offen lds')
    issued = 4 * DEPTH + 2
    order = [('k', k) for k in range(DEPTH) for _ in range(4)] + [('h', 0)] * 2
    for k in range(28):
        b = BUF + 16 * (k % DEPTH)
        last = max(i for i, o in enumerate(order) if o == ('k', k))
        a(f's_waitcnt vmcnt({len(order) - 1 - last})')
        for x in range(2):
            for y in range(2):
                t = 2 * x + y
                src = '0' if k == 0 else f'a[{16*t}:{16*t+15}]'
                a(f'v_mfma_f32_32x32x16_bf16 a[{16*t}:{16*t+15}], v[{b+4*x}:{b+4*x+3}], v[{b+8+4*y}:{b+8+4*y+3}], {src}')
        if k + DEPTH < 28:
            for x in loads(k + DEPTH): a(x)
            order += [('k', k + DEPTH)] * 4
    a('s_nop 7')
    for t in range(4):
        lab = f'g2_skip{t}'
        a(f's_cmp_eq_u32 s24, {t}')
        a(f's_cbranch_scc1 {lab}')
        a(f's_sub_u32 s33, s24, {t+1}')
        a('s_and_b32 s33, s33, 3')
        a('s_lshl_b32 s33, s33, 12')
        a(f'v_add_u32 v7, s33, v3')
        for j in range(4):
            a(f'ds_write_b128 v7, a[{16*t+4*j}:{16*t+4*j+3}] offset:{G2_RED+t*12288+1024*j}')
        a(f's_branch g2_next{t}')
        a(f'{lab}:')
        for r in range(16):
            a(f'v_accvgpr_read_b32 v{16+r}, a{16*t+r}')
        a(f'g2_next{t}:')
    a('s_waitcnt vmcnt(0) lgkmcnt(0)')
    a('s_barrier')
    a('s_mul_i32 s33, s24, 12288')
    a('v_add_u32 v7, s33, v3')
    for p in range(3):
        for j in range(4):
            a(f'ds_read_b128 v[{32+16*p+4*j}:{32+16*p+4*j+3}], v7 offset:{G2_RED+4096*p+1024*j}')
    a('v_and_b32 v8, 15, v2')
    a('v_lshrrev_b32 v9, 4, v2')
    a('v_lshrrev_b32 v10, 2, v8')
    a('v_and_b32 v11, 3, v8')
    a('v_lshrrev_b32 v12, 1, v9')
    a('v_and_b32 v13, 1, v9')
    a('v_lshl_add_u32 v14, v12, 2, v10')
    a('v_lshlrev_b32 v14, 7, v14')
    a('v_lshl_add_u32 v14, v13, 5, v14')
    a('v_lshl_add_u32 v14, v11, 3, v14')
    a('s_lshr_b32 s34, s24, 1')
    a('s_and_b32 s35, s24, 1')
    a('s_lshl_b32 s36, s34, 12')
    a('s_lshl_b32 s37, s35, 6')
    a('s_add_u32 s36, s36, s37')
    a('v_add_u32 v14, s36, v14')
    a('s_waitcnt lgkmcnt(8)')
    for q in range(4):
        a(f'ds_read_b64_tr_b16 v[{80+2*q}:{81+2*q}], v14 offset:{G2_H+1024*q}')
    a('v_and_b32 v15, 31, v2')
    a('v_lshlrev_b32 v15, 10, v15')
    a('v_lshl_add_u32 v15, v12, 3, v15')
    a('s_lshl_b32 s36, s25, 16')
    a('s_lshl_b32 s37, s35, 15')
    a('s_add_u32 s36, s36, s37')
    a('s_lshl_b32 s37, s26, 7')
    a('s_add_u32 s36, s36, s37')
    a('s_lshl_b32 s37, s34, 6')
    a('s_add_u32 s36, s36, s37')
    a('s_mov_b32 s38, 0xffff0000')
    a('s_waitcnt lgkmcnt(4)')
    for r in range(16):
        a(f'v_add_f32 v{16+r}, v{16+r}, v{32+r}')
        a(f'v_add_f32 v{48+r}, v{48+r}, v{64+r}')
    a('s_waitcnt lgkmcnt(0)')
    for q in range(4):
        a(f'v_lshlrev_b32 v{32+4*q}, 16, v{80+2*q}')
        a(f'v_and_b32 v{33+4*q}, s38, v{80+2*q}')
        a(f'v_lshlrev_b32 v{34+4*q}, 16, v{81+2*q}')
        a(f'v_and_b32 v{35+4*q}, s38, v{81+2*q}')
    for r in range(16):
        a(f'v_add_f32 v{16+r}, v{16+r}, v{48+r}')
    for r in range(16):
        a(f'v_add_f32 v{16+r}, v{16+r}, v{32+r}')
    for q in range(4):
        a(f'v_cvt_pk_bf16_f32 v{88+2*q}, v{16+4*q}, v{17+4*q}')
        a(f'v_cvt_pk_bf16_f32 v{89+2*q}, v{18+4*q}, v{19+4*q}')
        a(f'buffer_store_dwordx2 v[{88+2*q}:{89+2*q}], v15, s[{OUT}:{OUT+3}], s36 offen offset:{16*q}')
    a('g2_end:')
    a('s_endpgm')
    return name, 240 + 64, 48, 240

def main(out):
    a = Asm()
    ks = []
    launches = [('prep_kernel', 256, 0), ('conv_kernel', 256, CV_LDS), ('gemm1_kernel', 256, G1_LDS), ('gemm2_kernel', 256, G2_LDS)]
    txt = HEADER
    for n, g, l in launches:
        txt += f'; @launch kernel={n} grid=({g},1,1) block=(256,1,1) lds={l}\n'
    txt += '.amdgcn_target "amdgcn-amd-amdhsa--gfx950"\n.text\n'
    for g in (gen_prep, gen_conv, gen_gemm1, gen_gemm2):
        ks.append(g(a))
    txt += a.text()
    txt += '.section .rodata,"a"\n'
    for n, v, s, acc in ks:
        txt += kernel_desc(n, v, s, acc)
    open(out, 'w').write(txt)

if __name__ == '__main__':
    main(sys.argv[1] if len(sys.argv) > 1 else 'sequential_preLN__ssm_conv_h3__swiglu_ffn__prompt.s')
```

```python
import sys
sys.path.insert(0, 'dev')
from asmlib import *

MiB = 1 << 20
WS_XR0 = 0
WS_XR1 = 2 * MiB
WS_XT = 4 * MiB
WS_HT = 6 * MiB
WS_ST = 8 * MiB
WS_W1F = 8 * MiB + 65536
W1F_NT = 232 * 1024
PF_FILT = 1
PF_W1 = 1
PF_WD = 1
ROT1 = 1
ROT2 = 1
WS_WDF = 12 * MiB
WS_ACT = 14 * MiB
WS_END = 21 * MiB
WS_DBG = 32 * MiB

HEADER = open('sequential_preLN__ssm_conv_h3__swiglu_ffn__prompt.s.ref').read().split('; Override launch')[0]

def srd(a, d, base, size, off=None, offreg=None):
    if off:
        a(f's_add_u32 s{d}, s{base}, {hex(off)}')
        a(f's_addc_u32 s{d+1}, s{base+1}, 0')
        if offreg is not None:
            a(f's_add_u32 s{d}, s{d}, s{offreg}')
            a(f's_addc_u32 s{d+1}, s{d+1}, 0')
    elif offreg is not None:
        a(f's_add_u32 s{d}, s{base}, s{offreg}')
        a(f's_addc_u32 s{d+1}, s{base+1}, 0')
    else:
        a(f's_mov_b32 s{d}, s{base}')
        a(f's_mov_b32 s{d+1}, s{base+1}')
    a(f's_mov_b32 s{d+2}, {hex(size)}')
    a(f's_mov_b32 s{d+3}, 0x20000')

STAMP = False
def stamp(a, i, vst):
    if not STAMP: return
    a('s_memtime s[98:99]')
    a('s_waitcnt lgkmcnt(0)')
    a(f'v_writelane_b32 v{vst}, s98, {i}')
def stamp_rt(a, i, vst):
    if not STAMP: return
    a('s_memrealtime s[98:99]')
    a('s_waitcnt lgkmcnt(0)')
    a(f'v_writelane_b32 v{vst}, s98, {i}')
def stamp_begin(a, vst):
    if not STAMP: return
    a(f'v_mov_b32 v{vst}, 0')
    stamp_rt(a, 15, vst)
    stamp(a, 0, vst)
def stamp_end(a, i, vst, kidx, tmp):
    if not STAMP: return
    a('s_mov_b64 exec, -1')
    a('s_waitcnt vmcnt(0)')
    stamp(a, i, vst)
    stamp_rt(a, 14, vst)
    a('s_load_dwordx2 s[96:97], s[0:1], 96')
    a('s_waitcnt lgkmcnt(0)')
    srd(a, 92, 96, 4 << 20, WS_DBG)
    a(f'v_lshrrev_b32 v{tmp}, 6, v0')
    a(f'v_lshlrev_b32 v{tmp}, 6, v{tmp}')
    a(f'v_and_b32 v{tmp+1}, 63, v0')
    a(f'v_lshl_add_u32 v{tmp}, v{tmp+1}, 2, v{tmp}')
    a('s_lshl_b32 s98, s2, 9')
    a(f's_add_u32 s98, s98, {kidx*262144}')
    a('s_mov_b32 exec_lo, 0xffff')
    a('s_mov_b32 exec_hi, 0')
    a(f'buffer_store_dword v{vst}, v{tmp}, s[92:95], s98 offen')

def begin(a, name):
    a.raw(f'.globl {name}')
    a.raw('.p2align 8')
    a.raw(f'.type {name},@function')
    a.raw(f'{name}:')
    a.flush_hist()

def red32(a, v, t):
    a(f'v_add_f32_dpp v{v}, v{v}, v{v} quad_perm:[1,0,3,2] row_mask:0xf bank_mask:0xf')
    a(f'v_add_f32_dpp v{v}, v{v}, v{v} quad_perm:[2,3,0,1] row_mask:0xf bank_mask:0xf')
    a(f'v_add_f32_dpp v{v}, v{v}, v{v} row_half_mirror row_mask:0xf bank_mask:0xf')
    a(f'v_add_f32_dpp v{v}, v{v}, v{v} row_mirror row_mask:0xf bank_mask:0xf')
    a(f'v_mov_b32 v{t}, v{v}')
    a(f'v_permlane16_swap_b32 v{v}, v{t}')
    a(f'v_add_f32 v{v}, v{v}, v{t}')

def rne(a, d, s):
    a(f'v_cvt_pk_bf16_f32 v{d}, v{s}, v{s}')
    a(f'v_lshlrev_b32 v{d}, 16, v{d}')

def ln_sigma(a, var, rs):
    rne(a, var, var)
    a(f'v_add_f32 v{var}, 0x3727c5ac, v{var}')
    rne(a, var, var)
    a(f'v_sqrt_f32 v{var}, v{var}')
    rne(a, var, var)
    a(f'v_rcp_f32 v{rs}, v{var}')

def interleave(a, ms, fill, start=0):
    n = len(ms); k = 0
    for i, m in enumerate(ms):
        a(m)
        tgt = (len(fill) * (i + 1) + n - 1) // n
        while k < tgt:
            a(fill[k]); k += 1

P = lambda r: f'v[{r}:{r+1}]'
Q = lambda r: f'v[{r}:{r+3}]'

def gen_fmt_w1(a, VS):
    WG, WU, W1F = 20, 24, 32
    a('fmt1_begin:')
    a.flush_hist()
    a('s_cmp_ge_u32 s2, %d' % (256 + 112))
    a('s_cbranch_scc1 prep_end')
    stamp_begin(a, VS)
    a('s_load_dwordx4 s[8:11], s[0:1], 56')
    a('s_load_dwordx2 s[14:15], s[0:1], 96')
    a('v_lshrrev_b32 v1, 6, v0')
    a('v_and_b32 v2, 63, v0')
    a('v_readfirstlane_b32 s59, v1')
    a('s_sub_u32 s77, s2, 256')
    a('s_lshl_b32 s77, s77, 1')
    a('s_lshr_b32 s61, s59, 2')
    a('s_and_b32 s60, s59, 3')
    a('s_add_u32 s77, s77, s61')
    a('s_lshl_b32 s61, s61, 14')
    a('s_mul_hi_u32 s78, s77, %d' % (2**32 // 28 + 1))
    a('s_mul_i32 s79, s78, 28')
    a('s_sub_u32 s79, s77, s79')
    a('v_and_b32 v7, 7, v2')
    a('v_lshrrev_b32 v13, 3, v2')
    a('v_mul_u32_u24 v13, 3584, v13')
    a('v_lshl_add_u32 v13, v7, 4, v13')
    a('s_lshl_b32 s80, s78, 6')
    a('s_lshl_b32 s81, s60, 4')
    a('s_add_u32 s80, s80, s81')
    a('s_mul_i32 s80, s80, 3584')
    a('s_lshl_b32 s81, s79, 7')
    a('s_add_u32 s80, s80, s81')
    a('s_add_u32 s81, s80, %d' % (8 * 3584))
    a('s_lshl_b32 s82, s60, 11')
    a('s_add_u32 m0, s82, s61')
    a('s_waitcnt lgkmcnt(0)')
    srd(a, WG, 8, 512 * 3584)
    a(f'buffer_load_dwordx4 v13, s[{WG}:{WG+3}], s80 offen lds')
    a('s_add_u32 m0, m0, 1024')
    srd(a, WU, 10, 512 * 3584)
    a(f'buffer_load_dwordx4 v13, s[{WG}:{WG+3}], s81 offen lds')
    a('s_add_u32 m0, m0, %d' % (8192 - 1024))
    a(f'buffer_load_dwordx4 v13, s[{WU}:{WU+3}], s80 offen lds')
    a('s_add_u32 m0, m0, 1024')
    srd(a, W1F, 14, 16 * W1F_NT, WS_W1F)
    a(f'buffer_load_dwordx4 v13, s[{WU}:{WU+3}], s81 offen lds')
    a('v_and_b32 v3, 15, v2')
    a('v_lshrrev_b32 v4, 4, v2')
    a('v_lshlrev_b32 v6, 4, v2')
    a('v_lshrrev_b32 v20, 2, v3')
    a('v_and_b32 v21, 3, v3')
    a('v_lshrrev_b32 v22, 1, v4')
    a('v_and_b32 v23, 1, v4')
    a('v_lshl_add_u32 v24, v22, 3, v20')
    a('v_lshlrev_b32 v24, 7, v24')
    a('v_lshl_add_u32 v24, v23, 13, v24')
    a('v_lshl_add_u32 v24, v21, 3, v24')
    a('s_lshl_b32 s90, s60, 5')
    a('s_add_u32 s90, s90, s61')
    a('v_add_u32 v24, s90, v24')
    a('s_lshl_b32 s90, s79, 2')
    a('s_add_u32 s90, s90, s60')
    a('s_mul_hi_u32 s91, s90, %d' % (2**32 // 7 + 1))
    a('s_mul_i32 s43, s91, 7')
    a('s_sub_u32 s43, s90, s43')
    a('s_mul_i32 s91, s91, %d' % W1F_NT)
    a('s_lshl_b32 s43, s43, 10')
    a('s_add_u32 s91, s91, s43')
    a('s_mul_i32 s43, s78, %d' % (4 * 7168))
    a('s_add_u32 s43, s43, s91')
    a('s_lshr_b32 s46, s78, 2')
    a('s_lshl_b32 s46, s46, 9')
    a('s_and_b32 s44, s78, 3')
    a('s_lshl_b32 s44, s44, 2')
    a('s_add_u32 s46, s46, s44')
    a('s_add_u32 s46, s46, s91')
    a('s_add_u32 s46, s46, %d' % (32 * 7168))
    a('v_mov_b32 v30, 0')
    a('v_mov_b32 v31, 0')
    a('s_mov_b32 s45, 0x3f803f80')
    stamp(a, 1, VS)
    a('s_waitcnt vmcnt(0)')
    a('s_barrier')
    stamp(a, 2, VS)
    FF = 32
    for ks in range(4):
        a(f'ds_read_b64_tr_b16 {P(FF+4*ks)}, v24 offset:{2048*ks}')
        a(f'ds_read_b64_tr_b16 {P(FF+4*ks+2)}, v24 offset:{2048*ks+512}')
    for ks in range(4):
        a(f's_waitcnt lgkmcnt({6-2*ks})')
        a(f'buffer_store_dwordx4 {Q(FF+4*ks)}, v6, s[{W1F}:{W1F+3}], s43 offen')
        a('s_add_u32 s43, s43, 7168')
        for w in range(4):
            a(f'v_dot2c_f32_bf16 v{30+(w&1)}, s45, v{FF+4*ks+w}')
    a('s_nop 2')
    a('v_add_f32 v30, v30, v31')
    a('v_mov_b32 v31, v30')
    a('v_permlane32_swap_b32 v30, v31')
    a('v_add_f32 v30, v30, v31')
    rne(a, 31, 30)
    a('v_sub_f32 v30, v30, v31')
    a('v_cvt_pk_bf16_f32 v30, v31, v30')
    a('s_mov_b32 exec_hi, 0')
    a(f'buffer_store_dword v30, v6, s[{W1F}:{W1F+3}], s46 offen')
    stamp(a, 3, VS)
    stamp_end(a, 4, VS, 0, 26)

def gen_fmt_wd(a, VS):
    WD, WDF = 28, 36
    a('fmt_begin:')
    a.flush_hist()
    a('s_cmp_ge_u32 s2, %d' % (256 + NFMT))
    a('s_cbranch_scc1 conv_end')
    stamp_begin(a, VS)
    a('s_load_dwordx2 s[12:13], s[0:1], 72')
    a('s_load_dwordx2 s[14:15], s[0:1], 96')
    a('v_lshrrev_b32 v1, 6, v0')
    a('v_and_b32 v2, 63, v0')
    a('v_readfirstlane_b32 s60, v1')
    a('s_sub_u32 s84, s2, 256')
    a('v_lshlrev_b32 v6, 4, v2')
    a('s_lshl_b32 s86, s84, 14')
    a('s_lshl_b32 s87, s60, 12')
    a('s_add_u32 s86, s86, s87')
    a('s_mov_b32 m0, s87')
    a('s_waitcnt lgkmcnt(0)')
    srd(a, WD, 12, 1792 * 1024)
    for i in range(4):
        a(f'buffer_load_dwordx4 v6, s[{WD}:{WD+3}], s86 offen offset:{1024*i} lds')
    srd(a, WDF, 14, 1792 * 1024, WS_WDF)
    a('v_and_b32 v3, 15, v2')
    a('v_lshrrev_b32 v4, 4, v2')
    a('v_lshrrev_b32 v20, 2, v3')
    a('v_and_b32 v21, 3, v3')
    a('v_lshrrev_b32 v22, 1, v4')
    a('v_and_b32 v23, 1, v4')
    a('v_lshl_add_u32 v25, v22, 2, v20')
    a('v_lshlrev_b32 v25, 10, v25')
    a('v_lshl_add_u32 v25, v23, 5, v25')
    a('v_lshl_add_u32 v25, v21, 3, v25')
    a('s_lshl_b32 s90, s60, 8')
    a('v_add_u32 v25, s90, v25')
    a('s_mul_i32 s94, s60, 224')
    a('s_add_u32 s94, s94, s84')
    a('s_lshl_b32 s94, s94, 11')
    a('s_add_u32 s95, s94, %d' % (112 * 2048))
    stamp(a, 1, VS)
    a('s_waitcnt vmcnt(0)')
    a('s_barrier')
    stamp(a, 2, VS)
    FD = 32
    for x in range(4):
        a(f'ds_read_b64_tr_b16 {P(FD+4*x)}, v25 offset:{64*x}')
        a(f'ds_read_b64_tr_b16 {P(FD+4*x+2)}, v25 offset:{64*x+8192}')
    for x in range(4):
        a(f's_waitcnt lgkmcnt({6-2*x})')
        a(f'buffer_store_dwordx4 {Q(FD+4*x)}, v6, s[{WDF}:{WDF+3}], s{94+(x>>1)} offen offset:{1024*(x&1)}')
    stamp(a, 3, VS)
    stamp_end(a, 4, VS, 1, 228)

def gen_prep(a):
    name = 'prep_kernel'
    begin(a, name)
    VS = 39
    X, K, V, SH, O0, O1, ST = 16, 20, 24, 28, 32, 36, 40
    a('s_cmp_ge_u32 s2, 256')
    a('s_cbranch_scc1 fmt1_begin')
    stamp_begin(a, VS)
    a('s_load_dwordx8 s[4:11], s[0:1], 0')
    a('s_load_dwordx2 s[12:13], s[0:1], 96')
    a('v_lshrrev_b32 v1, 8, v0')
    a('v_and_b32 v4, 31, v0')
    a('v_readfirstlane_b32 s53, v1')
    a('v_bfe_u32 v5, v0, 5, 3')
    a('s_and_b32 s14, s2, 7')
    a('s_lshr_b32 s15, s2, 3')
    a('s_lshl_b32 s44, s15, 16')
    a('s_lshl_b32 s45, s14, 7')
    a('s_add_u32 s44, s44, s45')
    a('v_lshlrev_b32 v2, 13, v5')
    a('v_lshl_add_u32 v2, v4, 2, v2')
    a('v_add_u32 v2, s44, v2')
    a('v_add_u32 v3, 0x1000, v2')
    a('s_mov_b32 s47, 0x1000')
    a('s_mov_b32 s50, 0xffff0000')
    a('s_lshl_b32 s45, s14, 18')
    a('s_lshl_b32 s46, s15, 7')
    a('v_lshlrev_b32 v8, 13, v4')
    a('s_cmp_eq_u32 s53, 0')
    a('s_cbranch_scc0 prep_x')
    a('v_subrev_u32 v1, 0x1000, v2')
    a('s_lshl_b32 s48, s14, 9')
    a('v_lshlrev_b32 v6, 4, v4')
    a('v_add_u32 v6, s48, v6')
    a('s_sub_u32 s45, s45, s46')
    a('s_add_u32 s45, s45, 4080')
    a('v_lshlrev_b32 v9, 4, v5')
    a('v_sub_u32 v8, v8, v9')
    a('v_add_u32 v8, s45, v8')
    a('s_waitcnt lgkmcnt(0)')
    stamp(a, 1, VS)
    srd(a, K, 6, 2 * MiB)
    KR, VR, SHR = 10, 22, 32
    for r in range(12):
        a(f'buffer_load_dword v{KR+r}, v{1+r//4}, s[{K}:{K+3}], 0 offen offset:{(r%4)*1024}')
    srd(a, SH, 10, 4096)
    a(f'buffer_load_dwordx4 {Q(SHR)}, v6, s[{SH}:{SH+3}], 0 offen')
    srd(a, V, 8, 2 * MiB)
    for r in range(9):
        rr = r + 3
        a(f'buffer_load_dword v{VR+r}, v{1+rr//4}, s[{V}:{V+3}], 0 offen offset:{(rr%4)*1024}')
    srd(a, O0, 12, 2 * MiB, WS_XR0)
    srd(a, O1, 12, 2 * MiB, WS_XR1)
    KF, WP, VF, KV = 40, 64, 72, 92
    stamp(a, 2, VS)
    a('s_waitcnt vmcnt(10)')
    stamp(a, 3, VS)
    for r in range(12):
        a(f'v_lshlrev_b32 v{KF+2*r}, 16, v{KR+r}')
        a(f'v_and_b32 v{KF+2*r+1}, s50, v{KR+r}')
    a('s_waitcnt vmcnt(9)')
    for j in range(4):
        for c in range(2):
            src = SHR + 2 * c + j // 2
            if j % 2 == 0:
                a(f'v_lshlrev_b32 v{WP+2*j+c}, 16, v{src}')
            else:
                a(f'v_and_b32 v{WP+2*j+c}, s50, v{src}')
    for i in range(9):
        d = KV + 2 * i
        a(f'v_pk_mul_f32 {P(d)}, {P(KF+2*i)}, {P(WP+6)}')
    for j in (2, 1, 0):
        for i in range(9):
            d = KV + 2 * i
            a(f'v_pk_fma_f32 {P(d)}, {P(KF+2*(i+3-j))}, {P(WP+2*j)}, {P(d)}')
    a('s_waitcnt vmcnt(0)')
    for r in range(9):
        a(f'v_lshlrev_b32 v{VF+2*r}, 16, v{VR+r}')
        a(f'v_and_b32 v{VF+2*r+1}, s50, v{VR+r}')
    for i in range(9):
        d = KV + 2 * i
        a(f'v_pk_mul_f32 {P(d)}, {P(d)}, {P(VF+2*i)}')
    O = 112
    kv = lambda row, c: KV + 2 * (row + 1) + c
    for c in range(2):
        for w in range(4):
            a(f'v_cvt_pk_bf16_f32 v{O+4*c+w}, v{kv(7-2*w,c)}, v{kv(6-2*w,c)}')
        a(f'buffer_store_dwordx4 {Q(O+4*c)}, v8, s[{O0}:{O0+3}], {"s47" if c else "0"} offen')
    for c in range(2):
        for w in range(4):
            a(f'v_cvt_pk_bf16_f32 v{O+8+4*c+w}, v{kv(6-2*w,c)}, v{kv(5-2*w,c)}')
        a(f'buffer_store_dwordx4 {Q(O+8+4*c)}, v8, s[{O1}:{O1+3}], {"s47" if c else "0"} offen')
    stamp(a, 4, VS)
    stamp_end(a, 5, VS, 0, 36)
    a('s_endpgm')
    a('prep_x:')
    a.flush_hist()
    a('s_lshl_b32 s48, s2, 13')
    a('v_lshlrev_b32 v7, 10, v5')
    a('v_lshl_add_u32 v7, v4, 4, v7')
    a('v_add_u32 v7, s48, v7')
    a('s_add_u32 s45, s45, s46')
    a('v_lshl_add_u32 v8, v5, 4, v8')
    a('v_add_u32 v8, s45, v8')
    a('s_lshl_b32 s46, s2, 5')
    a('v_lshlrev_b32 v9, 2, v5')
    a('v_add_u32 v9, s46, v9')
    a('s_mov_b32 s48, 0x2000')
    a('s_mov_b32 s51, 0x05040100')
    a('s_mov_b32 s52, 0x07060302')
    a('s_load_dwordx2 s[54:55], s[0:1], 32')
    a('s_load_dwordx2 s[56:57], s[0:1], 72')
    a('s_waitcnt lgkmcnt(0)')
    stamp(a, 1, VS)
    srd(a, X, 4, 2 * MiB)
    XR, XS = 10, 20
    a(f'buffer_load_dwordx4 {Q(XS)}, v7, s[{X}:{X+3}], 0 offen')
    a(f'buffer_load_dwordx4 {Q(XS+4)}, v7, s[{X}:{X+3}], 0 offen offset:512')
    for r in range(8):
        a(f'buffer_load_dword v{XR+r}, v{2 if r < 4 else 3}, s[{X}:{X+3}], 0 offen offset:{(r%4)*1024}')
    srd(a, O0, 12, 2 * MiB, WS_XT)
    srd(a, ST, 12, 16384, WS_ST)
    if PF_FILT:
        srd(a, K, 54, 2 * MiB)
        srd(a, V, 56, 1792 * 1024)
        a('s_lshl_b32 s58, s14, 5')
        a('s_add_u32 s58, s58, s15')
        a('s_lshl_b32 s58, s58, 13')
        a('s_mul_i32 s59, s2, 7168')
        a('v_and_b32 v30, 63, v0')
        a('v_lshlrev_b32 v30, 7, v30')
        a('v_readfirstlane_b32 s60, v0')
        a('s_cmp_eq_u32 s60, 256')
        a(f's_cselect_b32 s{K+2}, s{K+2}, 0')
        a('s_cmp_eq_u32 s60, 320')
        a(f's_cselect_b32 s{V+2}, s{V+2}, 0')
        a(f'buffer_load_dword v31, v30, s[{K}:{K+3}], s58 offen')
        a(f'buffer_load_dword v32, v30, s[{V}:{V+3}], s59 offen')
    stamp(a, 2, VS)
    a('s_waitcnt vmcnt(%d)' % (10 if PF_FILT else 8))
    stamp(a, 3, VS)
    E = 60
    for r in range(8):
        a(f'v_lshlrev_b32 v{E+2*r}, 16, v{XS+r}')
        a(f'v_and_b32 v{E+2*r+1}, s50, v{XS+r}')
    S = 80
    a(f'v_pk_add_f32 {P(S)}, {P(E)}, {P(E+2)}')
    a(f'v_pk_add_f32 {P(S+2)}, {P(E+4)}, {P(E+6)}')
    a(f'v_pk_add_f32 {P(S+4)}, {P(E+8)}, {P(E+10)}')
    a(f'v_pk_add_f32 {P(S+6)}, {P(E+12)}, {P(E+14)}')
    a(f'v_pk_add_f32 {P(S)}, {P(S)}, {P(S+2)}')
    a(f'v_pk_add_f32 {P(S+4)}, {P(S+4)}, {P(S+6)}')
    a(f'v_pk_add_f32 {P(S)}, {P(S)}, {P(S+4)}')
    a(f'v_add_f32 v{S}, v{S}, v{S+1}')
    red32(a, S, S + 1)
    a(f'v_mul_f32 v{S}, 0xbb000000, v{S}')
    a(f'v_mov_b32 v{S+1}, v{S}')
    a('s_waitcnt vmcnt(%d)' % (2 if PF_FILT else 0))
    O2 = 100
    for c in range(2):
        for w in range(4):
            a(f'v_perm_b32 v{O2+4*c+w}, v{XR+2*w+1}, v{XR+2*w}, s{51+c}')
        a(f'buffer_store_dwordx4 {Q(O2+4*c)}, v8, s[{O0}:{O0+3}], {"s47" if c else "0"} offen')
    for r in range(8):
        a(f'v_pk_add_f32 {P(E+2*r)}, {P(E+2*r)}, {P(S)}')
    a(f'v_pk_mul_f32 {P(S+2)}, {P(E)}, {P(E)}')
    a(f'v_pk_mul_f32 {P(S+4)}, {P(E+2)}, {P(E+2)}')
    for r in range(2, 8):
        d = S + 2 + 2 * (r & 1)
        a(f'v_pk_fma_f32 {P(d)}, {P(E+2*r)}, {P(E+2*r)}, {P(d)}')
    a(f'v_pk_add_f32 {P(S+2)}, {P(S+2)}, {P(S+4)}')
    a(f'v_add_f32 v{S+2}, v{S+2}, v{S+3}')
    red32(a, S + 2, S + 3)
    a(f'v_mul_f32 v{S+2}, 0x3b000000, v{S+2}')
    rne(a, S, S)
    ln_sigma(a, S + 2, S + 4)
    a(f'v_mul_f32 v{S+5}, v{S}, v{S+4}')
    a('s_mov_b32 exec_lo, 1')
    a('s_mov_b32 exec_hi, 1')
    a(f'buffer_store_dword v{S+4}, v9, s[{ST}:{ST+3}], 0 offen')
    a(f'buffer_store_dword v{S+5}, v9, s[{ST}:{ST+3}], s48 offen')
    stamp(a, 4, VS)
    stamp_end(a, 5, VS, 0, 36)
    a('s_endpgm')
    gen_fmt_w1(a, 29)
    a('prep_end:')
    a('s_endpgm')
    return name, 128, 102, None

CV_XC = 0
CV_E = 2 * 4 * 4640
CV_RED = CV_E + 2 * 8448
CV_LDS = CV_RED + 16384
FM_W1 = 0
FM_WD = 16384
NFMT = 112

def gen_conv(a):
    name = 'conv_kernel'
    begin(a, name)
    VS = 230
    H, XRS, XT, HT, ST = 20, 24, 28, 32, 36
    a('s_cmp_ge_u32 s2, 256')
    a('s_cbranch_scc1 fmt_begin')
    stamp_begin(a, VS)
    a('s_load_dwordx4 s[4:7], s[0:1], 32')
    a('s_load_dwordx2 s[14:15], s[0:1], 96')
    a('v_lshrrev_b32 v1, 6, v0')
    a('v_and_b32 v2, 63, v0')
    a('v_readfirstlane_b32 s60, v1')
    a('s_and_b32 s16, s2, 7')
    a('s_lshr_b32 s17, s2, 3')
    a('s_lshl_b32 s16, s16, 5')
    a('s_add_u32 s16, s16, s17')
    a('s_lshr_b32 s61, s60, 1')
    a('s_and_b32 s62, s60, 1')
    a('s_lshl_b32 s63, s16, 1')
    a('s_add_u32 s63, s63, s61')
    a('s_lshl_b32 s64, s63, 12')
    a('s_lshl_b32 s65, s16, 2')
    a('v_lshlrev_b32 v5, 3, v2')
    a('v_lshlrev_b32 v6, 4, v2')
    a('s_mul_i32 s66, s61, 8448')
    a('s_add_u32 s66, s66, %d' % CV_E)
    a('s_mul_i32 s70, s61, 18560')
    a('s_mul_i32 s71, s62, 4640')
    a('s_add_u32 s71, s71, s70')
    a('s_xor_b32 s72, s62, 1')
    a('s_lshl_b32 s72, s72, 21')
    a('s_add_u32 s72, s72, s64')
    a('s_lshl_b32 s69, s62, 11')
    a('s_lshl_b32 s75, s62, 12')
    a('v_lshrrev_b32 v7, 2, v2')
    a('v_and_b32 v8, 3, v2')
    a('v_lshlrev_b32 v7, 3, v7')
    a('v_lshl_add_u32 v7, v8, 2, v7')
    a('v_add_u32 v7, 0xffffff80, v7')
    a('s_mov_b32 m0, s71')
    a('s_waitcnt lgkmcnt(0)')
    stamp(a, 1, VS)
    srd(a, XRS, 14, 4096, offreg=72)
    for i in range(4):
        a(f'buffer_load_dwordx4 v6, s[{XRS}:{XRS+3}], 4 offen offset:{1024*i} lds')
    a('s_add_u32 m0, m0, 9280')
    srd(a, H, 4, 4096, offreg=64)
    for i in range(4):
        a(f'buffer_load_dwordx4 v6, s[{XRS}:{XRS+3}], 0 offen offset:{1024*i} lds')
    a('s_add_u32 s68, s66, s75')
    a('s_add_u32 m0, s68, 256')
    a('s_load_dword s67, s[6:7], s65')
    for i in range(4):
        a(f'buffer_load_dwordx4 v5, s[{H}:{H+3}], s69 offen offset:{512*i} lds')
        a('s_add_u32 m0, m0, 512' if i < 3 else 's_mov_b32 m0, s66')
    a(f'buffer_load_dword v7, s[{H}:{H+3}], 0 offen lds')
    srd(a, XT, 14, 4096, WS_XT, offreg=64)
    srd(a, ST, 14, 16384, WS_ST)
    a('s_add_u32 s76, s75, 8192')
    XV, RS, MR = 16, 24, 40
    for t in range(4):
        a(f'buffer_load_dwordx2 {P(XV+2*t)}, v5, s[{XT}:{XT+3}], s69 offen offset:{512*t}')
        a(f'buffer_load_dwordx4 {Q(RS+4*t)}, v6, s[{ST}:{ST+3}], s75 offen offset:{1024*t}')
        a(f'buffer_load_dwordx4 {Q(MR+4*t)}, v6, s[{ST}:{ST+3}], s76 offen offset:{1024*t}')
    srd(a, HT, 14, 4096, WS_HT, offreg=64)
    if PF_W1:
        srd(a, 40, 14, 16 * W1F_NT, WS_W1F)
        a('s_bfe_u32 s77, s2, 0x20001')
        a('s_mul_i32 s77, s77, %d' % (4 * W1F_NT))
        a('s_mul_i32 s78, s17, %d' % (29 * 1024))
        a('s_add_u32 s77, s77, s78')
        a('v_min_u32 v226, 231, v0')
        a('v_lshlrev_b32 v226, 7, v226')
        a('buffer_load_dword v227, v226, s[40:43], s77 offen')
    a('v_mov_b32 v60, 0')
    a('v_mov_b32 v61, 0')
    a('v_add_u32 v62, s71, v5')
    a('ds_write_b64 v62, v[60:61] offset:4096')
    a('ds_write_b64 v62, v[60:61] offset:%d' % (4096 + 9280))
    XA, HA = 224, 225
    a('v_and_b32 v3, 15, v2')
    a('v_lshrrev_b32 v4, 4, v2')
    a('v_lshrrev_b32 v9, 2, v3')
    a('v_mul_u32_u24 v10, 4640, v8')
    a('v_lshlrev_b32 v9, 3, v9')
    a('v_sub_u32 v9, v4, v9')
    a('v_add_u32 v9, 24, v9')
    a(f'v_lshl_add_u32 v{XA}, v9, 4, v10')
    a('s_lshl_b32 s88, s62, 8')
    a('s_add_u32 s88, s88, s70')
    a(f'v_add_u32 v{XA}, s88, v{XA}')
    a(f'v_lshl_add_u32 v{HA}, v4, 1, v3')
    a(f'v_lshlrev_b32 v{HA}, 4, v{HA}')
    a('s_lshl_b32 s89, s62, 9')
    a('s_add_u32 s89, s89, s66')
    a('s_add_u32 s89, s89, 16')
    a(f'v_add_u32 v{HA}, s89, v{HA}')
    a('s_sub_u32 s89, s70, s69')
    a('s_add_u32 s89, s89, %d' % (3 * 4640 + 4088 - 1536))
    a('v_sub_u32 v11, s89, v5')
    a('s_lshl_b32 s90, s60, 12')
    a('s_add_u32 s91, s90, %d' % CV_RED)
    a('s_xor_b32 s90, s90, 0x1000')
    a('s_add_u32 s90, s90, %d' % CV_RED)
    a('v_add_u32 v62, s91, v6')
    a('v_add_u32 v63, s90, v6')
    a('s_mov_b32 s92, 0xffff0000')
    stamp(a, 2, VS)
    a('s_waitcnt vmcnt(%d) lgkmcnt(0)' % (13 if PF_W1 else 12))
    a('s_barrier')
    stamp(a, 3, VS)
    FH = [64, 128]; FX = [96, 160]; ACC = 192
    def rdH(s, ri, aa): return f'ds_read_b128 {Q(FH[s]+4*aa)}, v{HA} offset:{128*(8*aa+ri)}'
    def rdX(s, ri, bb): return f'ds_read_b128 {Q(FX[s]+4*bb)}, v{XA} offset:{64*(56-8*bb+ri)}'
    inited = [False] * 8
    def mf(s, aa, bb):
        nb = aa + bb
        c = Q(ACC + 4 * nb)
        src = c if inited[nb] else '0'
        inited[nb] = True
        return f'v_mfma_f32_16x16x32_bf16 {c}, {Q(FX[s]+4*bb)}, {Q(FH[s]+4*aa)}, {src}'
    pairs = sorted([(aa, bb) for aa in range(8) for bb in range(8) if aa + bb <= 7], key=lambda p: (max(p), p))
    queue = []
    def issue(txt, tag):
        a(txt); queue.append(tag)
    def need(tags):
        idx = max(queue.index(t) for t in tags)
        n = len(queue) - 1 - idx
        return n
    lastwait = [99, 0]
    done = [0]
    def wait_for(tags):
        idx = max(queue.index(t) for t in tags) + 1
        if idx > done[0]:
            n = len(queue) - idx
            a(f's_waitcnt lgkmcnt({min(n, 15)})')
            done[0] = len(queue) - min(n, 15)
    todo = []
    for ri in range(4):
        for x in range(8):
            todo.append((rdH(ri & 1, ri, x), ('H', ri, x)))
            todo.append((rdX(ri & 1, ri, x), ('X', ri, x)))
    for _ in range(12):
        issue(*todo.pop(0))
    for ri in range(4):
        s = ri & 1
        for n, (aa, bb) in enumerate(pairs):
            wait_for([('H', ri, aa), ('X', ri, bb)])
            a(mf(s, aa, bb))
            if todo and todo[0][1][1] <= ri + 1 and (n % 2 == 0 or todo[0][1][1] == ri):
                issue(*todo.pop(0))
    stamp(a, 4, VS)
    KVR = 56
    a('s_lshl_b32 s90, s61, 4')
    a('s_lshr_b32 s67, s67, s90')
    a('s_lshl_b32 s67, s67, 16')
    a('s_cmp_eq_u32 s62, 0')
    a('s_cbranch_scc0 conv_h1')
    for t in range(4):
        a(f'ds_write_b128 v62, {Q(ACC+16+4*t)} offset:{1024*t}')
    a('s_branch conv_join')
    a('conv_h1:')
    a('s_nop 4')
    for t in range(4):
        a(f'ds_write_b128 v62, {Q(ACC+4*t)} offset:{1024*t}')
    a('s_waitcnt lgkmcnt(0)')
    for r in range(16):
        a(f'v_mov_b32 v{ACC+r}, v{ACC+16+r}')
    a('conv_join:')
    for t in range(4):
        a(f'ds_read_b64 {P(96+2*t)}, v11 offset:{512*(3-t)}')
    a('s_waitcnt vmcnt(0)')
    XF = 112
    for t in range(4):
        a(f'v_lshlrev_b32 v{XF+4*t}, 16, v{XV+2*t}')
        a(f'v_and_b32 v{XF+4*t+1}, s92, v{XV+2*t}')
        a(f'v_lshlrev_b32 v{XF+4*t+2}, 16, v{XV+2*t+1}')
        a(f'v_and_b32 v{XF+4*t+3}, s92, v{XV+2*t+1}')
    a('s_waitcnt lgkmcnt(0)')
    a('s_barrier')
    stamp(a, 5, VS)
    PR = 64
    for t in range(4):
        a(f'ds_read_b128 {Q(PR+4*t)}, v63 offset:{1024*t}')
    for r in range(16):
        a(f'v_fma_f32 v{RS+r}, v{XF+r}, v{RS+r}, v{MR+r}')
    for t in range(4):
        a(f'v_and_b32 v{MR+4*t}, s92, v{97+2*t}')
        a(f'v_lshlrev_b32 v{MR+4*t+1}, 16, v{97+2*t}')
        a(f'v_and_b32 v{MR+4*t+2}, s92, v{96+2*t}')
        a(f'v_lshlrev_b32 v{MR+4*t+3}, 16, v{96+2*t}')
    for r in range(16):
        a(f'v_fmac_f32 v{ACC+r}, s67, v{MR+r}')
    for t in range(4):
        a(f's_waitcnt lgkmcnt({3-t})')
        for r in range(4):
            a(f'v_add_f32 v{ACC+4*t+r}, v{ACC+4*t+r}, v{PR+4*t+r}')
        for r in range(4):
            a(f'v_fmac_f32 v{XF+4*t+r}, v{RS+4*t+r}, v{ACC+4*t+r}')
        a(f'v_cvt_pk_bf16_f32 v{88+2*t}, v{XF+4*t}, v{XF+4*t+1}')
        a(f'v_cvt_pk_bf16_f32 v{89+2*t}, v{XF+4*t+2}, v{XF+4*t+3}')
        a(f'buffer_store_dwordx2 {P(88+2*t)}, v5, s[{HT}:{HT+3}], s69 offen offset:{512*t}')
    stamp(a, 6, VS)
    stamp_end(a, 7, VS, 1, 228)
    a('s_endpgm')

    gen_fmt_wd(a, VS)
    a('conv_end:')
    a('s_endpgm')
    return name, 232, 102, None

G1_SLOT = 22528
G1_NS = 7
G1_LDS = G1_SLOT * G1_NS
DEPTH2 = 8
G1_NODMA = 0
G1_NOSTAT = 0
G1_NOMFMA = 0
G1_NORD = 0

def epi_tile(g, T, C1, IR2):
    u = g + 8
    L = []
    for e in range(8): L.append(f'v_mul_f32 v{T+e}, v{g+e}, v{C1}')
    for e in range(8): L.append(f'v_exp_f32 v{T+e}, v{T+e}')
    for e in range(8): L.append(f'v_mul_f32 v{g+e}, v{g+e}, v{u+e}')
    for e in range(8): L.append(f'v_fma_f32 v{T+e}, v{T+e}, v{IR2}, v{IR2}')
    for e in range(8): L.append(f'v_rcp_f32 v{T+e}, v{T+e}')
    for e in range(8): L.append(f'v_mul_f32 v{g+e}, v{g+e}, v{T+e}')
    for w in range(4): L.append(f'v_cvt_pk_bf16_f32 v{T+8+w}, v{g+2*w}, v{g+2*w+1}')
    return L

class DsQ:
    def __init__(self, a):
        self.a = a; self.q = []; self.done = 0
    def op(self, txt, tag=None):
        self.a(txt); self.q.append(tag)
    def wait(self, *tags):
        idx = max(len(self.q) - 1 - self.q[::-1].index(t) for t in tags) + 1
        if idx > self.done:
            n = min(len(self.q) - idx, 15)
            self.a(f's_waitcnt lgkmcnt({n})')
            self.done = len(self.q) - n
    def drain(self):
        self.a('s_waitcnt lgkmcnt(0)'); self.done = len(self.q)

class Checks:
    def __init__(self, a, pfx):
        self.a = a; self.pfx = pfx; self.stubs = []
    def check(self, vf, vaddr, thr, off=0):
        n = len(self.stubs)
        self.a(f'v_cmp_gt_u32 vcc, {thr}, v{vf}')
        self.a(f's_cbranch_vccnz {self.pfx}_s{n}')
        self.a(f'{self.pfx}_g{n}:')
        self.stubs.append((vf, vaddr, thr, off))
    def emit(self):
        a = self.a
        for n, (vf, vaddr, thr, off) in enumerate(self.stubs):
            a(f'{self.pfx}_s{n}:')
            a(f'ds_read_b32 v{vf}, v{vaddr} offset:{off}')
            a('s_waitcnt lgkmcnt(0)')
            a(f'v_cmp_gt_u32 vcc, {thr}, v{vf}')
            a(f's_cbranch_vccnz {self.pfx}_s{n}')
            a(f's_branch {self.pfx}_g{n}')

def spin(a, vf, vaddr, thr, off=0):
    L = a.newlabel('spin')
    a(f'{L}:')
    a(f'ds_read_b32 v{vf}, v{vaddr} offset:{off}')
    a('s_waitcnt lgkmcnt(0)')
    a(f'v_cmp_gt_u32 vcc, {thr}, v{vf}')
    a(f's_cbranch_vccnz {L}')

def win(addr_regs, byte, span):
    k = byte // 55296
    return addr_regs[k], byte - 55296 * k

def gen_gemm1(a):
    name = 'gemm1_kernel'
    begin(a, name)
    VS = 250
    W1F, HT, ACT = 8, 12, 16
    a('s_cmp_ge_u32 s2, 256')
    a('s_cbranch_scc1 g1_end')
    stamp_begin(a, VS)
    a('s_load_dwordx2 s[4:5], s[0:1], 96')
    a('v_lshrrev_b32 v1, 6, v0')
    a('v_and_b32 v2, 63, v0')
    a('v_readfirstlane_b32 s19, v1')
    a('s_and_b32 s21, s2, 1')
    a('s_lshl_b32 s21, s21, 3')
    a('s_bfe_u32 s27, s2, 0x30003')
    a('s_add_u32 s21, s21, s27')
    a('s_bfe_u32 s22, s2, 0x20001')
    a('s_lshl_b32 s22, s22, 2')
    a('s_lshr_b32 s23, s2, 6')
    a('s_add_u32 s22, s22, s23')
    a('s_and_b32 s20, s19, 3')
    a('v_lshlrev_b32 v3, 4, v2')
    a('v_lshrrev_b32 v5, 4, v2')
    a('v_and_b32 v6, 15, v2')
    a('s_cmp_ge_u32 s19, 4')
    a('s_cbranch_scc1 g1_ld')
    a('v_lshrrev_b32 v12, 2, v6')
    a('v_and_b32 v13, 3, v6')
    a('v_lshrrev_b32 v14, 1, v5')
    a('v_and_b32 v15, 1, v5')
    a('v_lshl_add_u32 v11, v14, 3, v12')
    a('v_lshlrev_b32 v11, 8, v11')
    a('v_xor_b32 v12, s20, v12')
    a('v_lshl_add_u32 v11, v12, 6, v11')
    a('v_lshl_add_u32 v11, v15, 5, v11')
    a('v_lshl_add_u32 v11, v13, 3, v11')
    a('v_add_u32 v11, 14336, v11')
    a('v_mov_b32 v10, v3')
    a('s_lshl_b32 s37, s21, 2')
    a('s_add_u32 s37, s37, s20')
    a('s_mul_i32 s37, s37, 112')
    a('s_mul_i32 s38, s22, 7')
    a('s_add_u32 s37, s37, s38')
    a('s_lshl_b32 s37, s37, 10')
    WF = [32, 64]; HF = [60, 92]; ACC = 96
    S1, S2, T0 = 16, 18, 20
    for r in range(112):
        a(f'v_mov_b32 v{ACC+r}, 0')
    for r in range(4):
        a(f'v_mov_b32 v{S1+r}, 0')
    a('s_mov_b32 s34, 0xffff0000')
    a('s_mov_b32 s35, 0')
    a('s_mov_b32 s33, 0')
    def rdW(s, f): return f'ds_read_b128 {Q(WF[s]+4*f)}, v10 offset:{7168*s+1024*f}'
    def rdH(s): return [f'ds_read_b64_tr_b16 {P(HF[s])}, v11 offset:{4096*s}', f'ds_read_b64_tr_b16 {P(HF[s]+2)}, v11 offset:{4096*s+1024}']
    def stats(s):
        L = []
        for w in range(4):
            t = T0 + 2 * (w & 1)
            L.append(f'v_lshlrev_b32 v{t}, 16, v{HF[s]+w}')
            L.append(f'v_and_b32 v{t+1}, s34, v{HF[s]+w}')
            L.append(f'v_add_f32 v{S1}, v{S1}, v{t}')
            L.append(f'v_add_f32 v{S1+1}, v{S1+1}, v{t+1}')
            L.append(f'v_fmac_f32 v{S2}, v{t}, v{t}')
            L.append(f'v_fmac_f32 v{S2+1}, v{t+1}, v{t+1}')
        return L
    def mfma(s, f):
        return f'v_mfma_f32_32x32x16_bf16 v[{ACC+16*f}:{ACC+16*f+15}], {Q(WF[s]+4*f)}, {Q(HF[s])}, v[{ACC+16*f}:{ACC+16*f+15}]'
    adv = ['s_add_u32 s35, s35, %d' % G1_SLOT, 's_cmp_eq_u32 s35, %d' % G1_LDS,
           's_cselect_b32 s36, %d, 0' % (-(G1_LDS - G1_SLOT) & 0xffffffff), 's_cselect_b32 s35, 0, s35', 's_cselect_b32 s36, s36, %d' % G1_SLOT]
    a('s_waitcnt lgkmcnt(0)')
    srd(a, ACT, 4, 64 * 112 * 1024, WS_ACT)
    for x in adv: a(x)
    stamp(a, 1, VS)
    a('s_barrier')
    stamp(a, 2, VS)
    for s in range(2):
        for x in rdH(s)[::1]: pass
    for s in range(2):
        for f in range(7): a(rdW(s, f))
        for x in rdH(s): a(x)
    a('v_add_u32 v10, s36, v10')
    a('v_add_u32 v11, s36, v11')
    a('g1_loop:')
    for s in range(2):
        st = stats(s)
        a('s_waitcnt lgkmcnt(9)')
        for f in range(7):
            if not G1_NOMFMA: a(mfma(s, f))
            if s == 0 and f == 0: a('s_barrier')
            if not G1_NORD: a(rdW(s, f))
            if f < 6 and not G1_NOSTAT:
                for x in st[4*f:4*f+4]: a(x)
            if s == 1 and f == 2:
                for x in adv: a(x)
            if s == 1 and f == 5:
                a('s_add_u32 s33, s33, 1')
                a('s_cmp_lt_u32 s33, 16')
        for x in rdH(s): a(x)
    a('v_add_u32 v10, s36, v10')
    a('v_add_u32 v11, s36, v11')
    a('s_cbranch_scc1 g1_loop')
    stamp(a, 3, VS)
    a(f'v_add_f32 v{S1}, v{S1}, v{S1+1}')
    a(f'v_add_f32 v{S2}, v{S2}, v{S2+1}')
    a(f'v_mov_b32 v{S1+1}, v{S1}')
    a(f'v_mov_b32 v{S2+1}, v{S2}')
    a(f'v_permlane32_swap_b32 v{S1}, v{S1+1}')
    a(f'v_permlane32_swap_b32 v{S2}, v{S2+1}')
    a(f'v_add_f32 v{S1}, v{S1}, v{S1+1}')
    a(f'v_add_f32 v{S2}, v{S2}, v{S2+1}')
    a(f'v_mul_f32 v{S1}, 0xbb000000, v{S1}')
    a(f'v_mul_f32 v{S2}, 0x3b000000, v{S2}')
    a('s_waitcnt lgkmcnt(0)')
    for w in range(4):
        a(f'v_cvt_pk_bf16_f32 v{HF[0]+w}, v{S1}, v{S1}')
    a(f'v_fma_f32 v{S2}, -v{S1}, v{S1}, v{S2}')
    a(f'v_max_f32 v{S2}, 0, v{S2}')
    for f in range(7): a(mfma(0, f))
    C1, IR2 = 23, 24
    ln_sigma(a, S2, C1)
    a(f'v_mul_f32 v{IR2}, v{S2}, v{S2}')
    a(f'v_mul_f32 v{C1}, 0xbfb8aa3b, v{C1}')
    for f in range(7):
        T = 64 + 16 * (f & 1)
        for x in epi_tile(ACC + 16 * f, T, C1, IR2): a(x)
        a(f'buffer_store_dwordx4 {Q(T+8)}, v3, s[{ACT}:{ACT+3}], s37 offen offset:{1024*(f&3)}')
        if f == 3: a('s_add_u32 s37, s37, 4096')
    stamp(a, 4, VS)
    stamp_end(a, 5, VS, 2, 248)
    a('s_endpgm')
    a('g1_ld:')
    a.flush_hist()
    a('s_mul_i32 s28, s22, %d' % W1F_NT)
    a('s_mul_i32 s24, s20, 3584')
    a('v_add_u32 v4, s24, v3')
    a('v_lshlrev_b32 v7, 2, v5')
    a('v_xor_b32 v7, v7, v6')
    a('v_lshlrev_b32 v7, 4, v7')
    a('v_lshl_add_u32 v7, v5, 12, v7')
    a('s_lshl_b32 s25, s21, 8')
    a('s_lshl_b32 s26, s20, 15')
    a('s_add_u32 s25, s25, s26')
    a('v_add_u32 v7, s25, v7')
    a('v_add_u32 v8, %d, v7' % (0x4000 - 1024))
    a('s_lshl_b32 s26, s20, 11')
    a('s_add_u32 s26, s26, 14336')
    if ROT1: a('s_lshl_b32 s29, s23, 2')
    else: a('s_mov_b32 s29, 0')
    a('s_mov_b32 s32, 0')
    a('s_mov_b32 s33, 0')
    a('s_mul_i32 s30, s29, 14336')
    a('s_lshl_b32 s31, s29, 17')
    a('s_add_u32 m0, s32, s26')
    a('s_waitcnt lgkmcnt(0)')
    srd(a, HT, 4, 2 * MiB, WS_HT)
    srd(a, W1F, 4, 33 * 7168, WS_W1F, offreg=28)
    dma = f"""buffer_load_dwordx4 v7, s[{HT}:{HT+3}], s31 offen lds
buffer_load_dwordx4 v8, s[{HT}:{HT+3}], s31 offen offset:1024 lds
s_add_u32 m0, s32, s24
s_add_u32 s29, s29, 1
buffer_load_dwordx4 v4, s[{W1F}:{W1F+3}], s30 offen lds
s_and_b32 s29, s29, 15
s_add_u32 s33, s33, 1
buffer_load_dwordx4 v4, s[{W1F}:{W1F+3}], s30 offen offset:1024 lds
s_cmp_ge_u32 s33, 16
s_cselect_b32 s29, s33, s29
buffer_load_dwordx4 v4, s[{W1F}:{W1F+3}], s30 offen offset:2048 lds
s_mov_b32 exec_hi, 0
s_add_u32 s32, s32, {G1_SLOT}
buffer_load_dwordx4 v4, s[{W1F}:{W1F+3}], s30 offen offset:3072 lds
s_mov_b32 exec_hi, -1
s_cmp_eq_u32 s32, {G1_LDS}
s_cselect_b32 s32, 0, s32
s_mul_i32 s30, s29, 14336
s_lshl_b32 s31, s29, 17
s_add_u32 m0, s32, s26"""
    if G1_NODMA: dma = '\n'.join(l for l in dma.split('\n') if not l.startswith('buffer'))
    stamp(a, 1, VS)
    a(dma); a(dma)
    a('s_waitcnt vmcnt(6)')
    stamp(a, 2, VS)
    a('s_barrier')
    a(dma)
    a('s_waitcnt vmcnt(6)')
    a('s_barrier')
    a(dma); a(dma)
    a('s_waitcnt vmcnt(12)')
    a('s_barrier')
    a(dma); a(dma)
    a('s_waitcnt vmcnt(18)')
    if PF_WD:
        srd(a, 40, 4, 1792 * 1024, WS_WDF)
        a('s_lshr_b32 s44, s2, 3')
        a('s_mul_i32 s44, s44, 57344')
        a('v_and_b32 v20, 255, v0')
        a('v_lshlrev_b32 v20, 7, v20')
        a('v_min_u32 v21, %d, v20' % (191 * 128))
        a('s_add_u32 s45, s44, 32768')
    a('s_barrier')
    a(dma)
    a('g1_ldloop:')
    a(dma)
    a('s_cmp_lt_u32 s33, 17')
    a('s_waitcnt vmcnt(24)')
    a('s_barrier')
    a('s_cbranch_scc1 g1_ldloop')
    if PF_WD:
        a('buffer_load_dword v22, v20, s[40:43], s44 offen')
        a('buffer_load_dword v23, v21, s[40:43], s45 offen')
    e = 2 if PF_WD else 0
    for j in range(13, 17):
        a(f's_waitcnt vmcnt({6*(16-j)+e})')
        a('s_barrier')
    stamp(a, 3, VS)
    stamp_end(a, 4, VS, 2, 248)
    a('g1_end:')
    a('s_endpgm')
    return name, 252, 102, None

G2_RED = 0
G2_H = 49152
G2_LDS = G2_H + 8192

def gen_gemm2(a):
    name = 'gemm2_kernel'
    begin(a, name)
    VS = 242
    WS, OUT = 8, 12
    a('s_cmp_ge_u32 s2, 256')
    a('s_cbranch_scc1 g2_end')
    stamp_begin(a, VS)
    a('s_load_dwordx2 s[4:5], s[0:1], 96')
    a('s_load_dwordx2 s[6:7], s[0:1], 80')
    a('v_lshrrev_b32 v1, 6, v0')
    a('v_and_b32 v2, 63, v0')
    a('v_readfirstlane_b32 s24, v1')
    a('s_and_b32 s25, s2, 7')
    a('s_lshl_b32 s25, s25, 2')
    a('s_bfe_u32 s27, s2, 0x20003')
    a('s_add_u32 s25, s25, s27')
    a('s_lshr_b32 s26, s2, 5')
    a('v_lshlrev_b32 v3, 4, v2')
    a('s_mul_i32 s30, s25, 224')
    a('s_mul_i32 s28, s24, 28')
    a('s_add_u32 s30, s30, s28')
    a('s_lshl_b32 s30, s30, 10')
    a('s_add_u32 s30, s30, %d' % WS_ACT)
    a('s_mul_i32 s31, s26, 112')
    a('s_add_u32 s31, s31, s28')
    a('s_lshl_b32 s31, s31, 11')
    a('s_add_u32 s31, s31, %d' % WS_WDF)
    if ROT2:
        a('s_mul_i32 s29, s26, 7')
        a('s_lshr_b32 s29, s29, 1')
        a('s_lshl_b32 s29, s29, 10')
    else:
        a('s_mov_b32 s29, 0')
    a('s_lshr_b32 s34, s24, 1')
    a('s_and_b32 s35, s24, 1')
    a('s_lshl_b32 s36, s34, 10')
    a('v_add_u32 v224, s36, v3')
    a('v_xor_b32 v225, 0x400, v224')
    a('s_mul_i32 s36, s35, 0x1c000')
    a('v_add_u32 v226, s36, v3')
    a('v_xor_b32 v227, 0x1c000, v226')
    a('s_add_u32 s41, s30, s29')
    a('s_lshl_b32 s40, s29, 1')
    a('s_add_u32 s40, s40, s31')
    a('s_waitcnt lgkmcnt(0)')
    srd(a, WS, 4, WS_END)
    stamp(a, 1, VS)
    BUF = 16
    def loads(k):
        b = BUF + 16 * (k % DEPTH2)
        return [f'buffer_load_dwordx4 {Q(b+8)}, v226, s[{WS}:{WS+3}], s41 offen',
                f'buffer_load_dwordx4 {Q(b+12)}, v227, s[{WS}:{WS+3}], s41 offen\ns_add_u32 s29, s29, 1024\ns_cmp_eq_u32 s29, 28672\ns_cselect_b32 s29, 0, s29\ns_add_u32 s41, s30, s29',
                f'buffer_load_dwordx4 {Q(b)}, v224, s[{WS}:{WS+3}], s40 offen',
                f'buffer_load_dwordx4 {Q(b+4)}, v225, s[{WS}:{WS+3}], s40 offen\ns_lshl_b32 s40, s29, 1\ns_add_u32 s40, s40, s31']
    order = []
    for k in range(DEPTH2):
        for x in loads(k): a(x)
        order += [k] * 4
    srd(a, OUT, 6, 2 * MiB)
    a('v_lshrrev_b32 v5, 3, v2')
    a('v_and_b32 v6, 7, v2')
    a('v_lshlrev_b32 v5, 12, v5')
    a('v_lshl_add_u32 v5, v6, 4, v5')
    a('s_lshl_b32 s42, s26, 18')
    a('s_lshl_b32 s43, s24, 16')
    a('s_add_u32 s42, s42, s43')
    a('s_lshl_b32 s43, s25, 7')
    a('s_add_u32 s42, s42, s43')
    a('s_add_u32 s42, s42, %d' % WS_HT)
    a('s_add_u32 s43, s42, 0x8000')
    a('s_lshl_b32 s32, s24, 11')
    a('s_add_u32 m0, s32, %d' % G2_H)
    a(f'buffer_load_dwordx4 v5, s[{WS}:{WS+3}], s42 offen lds')
    a('s_add_u32 m0, m0, 1024')
    a(f'buffer_load_dwordx4 v5, s[{WS}:{WS+3}], s43 offen lds')
    order += ['h', 'h']
    a('v_and_b32 v8, 15, v2')
    a('v_lshrrev_b32 v9, 4, v2')
    a('v_lshrrev_b32 v10, 2, v8')
    a('v_and_b32 v11, 3, v8')
    a('v_lshrrev_b32 v12, 1, v9')
    a('v_and_b32 v13, 1, v9')
    a('v_lshl_add_u32 v14, v12, 2, v10')
    a('v_lshlrev_b32 v14, 7, v14')
    a('v_lshl_add_u32 v14, v13, 5, v14')
    a('v_lshl_add_u32 v14, v11, 3, v14')
    a('s_lshr_b32 s34, s24, 1')
    a('s_and_b32 s35, s24, 1')
    a('s_lshl_b32 s36, s34, 12')
    a('s_lshl_b32 s37, s35, 6')
    a('s_add_u32 s36, s36, s37')
    a('v_add_u32 v14, s36, v14')
    a('v_and_b32 v15, 31, v2')
    a('v_lshlrev_b32 v15, 10, v15')
    a('v_lshl_add_u32 v15, v12, 4, v15')
    a('s_lshl_b32 s36, s25, 16')
    a('s_lshl_b32 s37, s35, 15')
    a('s_add_u32 s36, s36, s37')
    a('s_lshl_b32 s37, s26, 7')
    a('s_add_u32 s36, s36, s37')
    a('s_lshl_b32 s37, s34, 6')
    a('s_add_u32 s36, s36, s37')
    a('s_mov_b32 s38, 0xffff0000')
    for p in (1, 2, 3):
        a(f's_xor_b32 s33, s24, {p}')
        a('s_mul_i32 s33, s33, 12288')
        a(f'v_add_u32 v{5+p}, s33, v3')
    a('s_mul_i32 s33, s24, 12288')
    a('v_add_u32 v9, s33, v3')
    return_marker = None
    for k in range(28):
        b = BUF + 16 * (k % DEPTH2)
        last = max(i for i, o in enumerate(order) if o == k)
        if k == 0: stamp(a, 2, VS)
        a(f's_waitcnt vmcnt({len(order) - 1 - last})')
        if k == 0: stamp(a, 3, VS)
        nl = loads(k + DEPTH2) if k + DEPTH2 < 28 else [None] * 4
        for p in (3, 2, 1, 0):
            px, py = p >> 1, p & 1
            src = '0' if k == 0 else f'a[{16*p}:{16*p+15}]'
            a(f'v_mfma_f32_32x32x16_bf16 a[{16*p}:{16*p+15}], {Q(b+4*px)}, {Q(b+8+4*py)}, {src}')
        if k + DEPTH2 < 28:
            for x in nl: a(x)
            order += [k + DEPTH2] * 4
        if k == 24:
            a('s_barrier')
            for x in range(4):
                a(f'ds_read_b64_tr_b16 {P(232+2*x)}, v14 offset:{G2_H+1024*x}')
    stamp(a, 4, VS)
    for p in (3, 2, 1):
        for j in range(4):
            a(f'ds_write_b128 v{5+p}, a[{16*p+4*j}:{16*p+4*j+3}] offset:{G2_RED+(p-1)*4096+1024*j}')
    R = 16
    for x in range(4):
        a(f'v_lshlrev_b32 v{R+4*x}, 16, v{232+2*x}') if x else (a('s_waitcnt lgkmcnt(12)'), a(f'v_lshlrev_b32 v{R}, 16, v232'))
        a(f'v_and_b32 v{R+4*x+1}, s38, v{232+2*x}')
        a(f'v_lshlrev_b32 v{R+4*x+2}, 16, v{233+2*x}')
        a(f'v_and_b32 v{R+4*x+3}, s38, v{233+2*x}')
    for r in range(16):
        a(f'v_accvgpr_read_b32 v{80+r}, a{r}')
    for r in range(16):
        a(f'v_add_f32 v{R+r}, v{R+r}, v{80+r}')
    a('s_waitcnt lgkmcnt(0)')
    a('s_barrier')
    stamp(a, 5, VS)
    for j in range(4):
        for p in range(3):
            a(f'ds_read_b128 {Q(32+16*p+4*j)}, v9 offset:{G2_RED+4096*p+1024*j}')
    for j in range(4):
        a(f's_waitcnt lgkmcnt({9-3*j})')
        for r in range(4*j, 4*j+4):
            a(f'v_add_f32 v{R+r}, v{R+r}, v{32+r}')
            a(f'v_add_f32 v{48+r}, v{48+r}, v{64+r}')
        for r in range(4*j, 4*j+4):
            a(f'v_add_f32 v{R+r}, v{R+r}, v{48+r}')
        a(f'v_cvt_pk_bf16_f32 v{100+2*j}, v{R+4*j}, v{R+4*j+1}')
        a(f'v_cvt_pk_bf16_f32 v{101+2*j}, v{R+4*j+2}, v{R+4*j+3}')
        if j & 1:
            p = j >> 1
            a(f'v_permlane32_swap_b32 v{100+4*p}, v{102+4*p}')
            a(f'v_permlane32_swap_b32 v{101+4*p}, v{103+4*p}')
            a(f'buffer_store_dwordx4 {Q(100+4*p)}, v15, s[{OUT}:{OUT+3}], s36 offen offset:{32*p}')
    stamp(a, 6, VS)
    stamp_end(a, 7, VS, 3, 240)
    a('g2_end:')
    a('s_endpgm')
    return name, 244 + 64, 102, 244

def main(out):
    a = Asm()
    ks = []
    launches = [('prep_kernel', 256 + 112, 512, 32768), ('conv_kernel', 256 + NFMT, 256, CV_LDS), ('gemm1_kernel', 256, 512, G1_LDS), ('gemm2_kernel', 256, 256, G2_LDS)]
    txt = HEADER
    for n, g, b, l in launches:
        txt += f'; @launch kernel={n} grid=({g},1,1) block=({b},1,1) lds={l}\n'
    txt += '.amdgcn_target "amdgcn-amd-amdhsa--gfx950"\n.text\n'
    for g in (gen_prep, gen_conv, gen_gemm1, gen_gemm2):
        ks.append(g(a))
    txt += a.text()
    txt += '.section .rodata,"a"\n'
    for n, v, s, acc in ks:
        txt += kernel_desc(n, v, s, acc)
    open(out, 'w').write(txt)

if __name__ == '__main__':
    for arg in sys.argv[2:]:
        if arg == 'stamp': STAMP = True
        elif '=' in arg:
            k, v = arg.split('='); globals()[k] = int(v, 0)
    main(sys.argv[1] if len(sys.argv) > 1 else 'sequential_preLN__ssm_conv_h3__swiglu_ffn__prompt.s')
```

```python
import sys
sys.path.insert(0, 'dev')
from asmlib import *

MiB = 1 << 20
WS_XR0 = 0
WS_XR1 = 2 * MiB
WS_XT = 4 * MiB
WS_HT = 6 * MiB
WS_ST = 8 * MiB
WS_W1F = 8 * MiB + 65536
W1F_NT = 232 * 1024
PF_FILT = 1
PF_W1 = 1
PF_WD = 1
ROT1 = 1
ROT2 = 1
WS_WDF = 12 * MiB
WS_ACT = 14 * MiB
WS_END = 21 * MiB
WS_DBG = 32 * MiB

HEADER = open('sequential_preLN__ssm_conv_h3__swiglu_ffn__prompt.s.ref').read().split('; Override launch')[0]

def srd(a, d, base, size, off=None, offreg=None):
    if off:
        a(f's_add_u32 s{d}, s{base}, {hex(off)}')
        a(f's_addc_u32 s{d+1}, s{base+1}, 0')
        if offreg is not None:
            a(f's_add_u32 s{d}, s{d}, s{offreg}')
            a(f's_addc_u32 s{d+1}, s{d+1}, 0')
    elif offreg is not None:
        a(f's_add_u32 s{d}, s{base}, s{offreg}')
        a(f's_addc_u32 s{d+1}, s{base+1}, 0')
    else:
        a(f's_mov_b32 s{d}, s{base}')
        a(f's_mov_b32 s{d+1}, s{base+1}')
    a(f's_mov_b32 s{d+2}, {hex(size)}')
    a(f's_mov_b32 s{d+3}, 0x20000')

STAMP = False
def stamp(a, i, vst):
    if not STAMP: return
    a('s_memtime s[98:99]')
    a('s_waitcnt lgkmcnt(0)')
    a(f'v_writelane_b32 v{vst}, s98, {i}')
def stamp_rt(a, i, vst):
    if not STAMP: return
    a('s_memrealtime s[98:99]')
    a('s_waitcnt lgkmcnt(0)')
    a(f'v_writelane_b32 v{vst}, s98, {i}')
def stamp_begin(a, vst):
    if not STAMP: return
    a(f'v_mov_b32 v{vst}, 0')
    stamp_rt(a, 15, vst)
    stamp(a, 0, vst)
def stamp_end(a, i, vst, kidx, tmp):
    if not STAMP: return
    a('s_mov_b64 exec, -1')
    a('s_waitcnt vmcnt(0)')
    stamp(a, i, vst)
    stamp_rt(a, 14, vst)
    a('s_load_dwordx2 s[96:97], s[0:1], 96')
    a('s_waitcnt lgkmcnt(0)')
    srd(a, 92, 96, 4 << 20, WS_DBG)
    a(f'v_lshrrev_b32 v{tmp}, 6, v0')
    a(f'v_lshlrev_b32 v{tmp}, 6, v{tmp}')
    a(f'v_and_b32 v{tmp+1}, 63, v0')
    a(f'v_lshl_add_u32 v{tmp}, v{tmp+1}, 2, v{tmp}')
    a('s_lshl_b32 s98, s2, 9')
    a(f's_add_u32 s98, s98, {kidx*262144}')
    a('s_mov_b32 exec_lo, 0xffff')
    a('s_mov_b32 exec_hi, 0')
    a(f'buffer_store_dword v{vst}, v{tmp}, s[92:95], s98 offen')

TLA = -1
TLB = -1
TLM = 4
_tl_idx = [0]
def tl_mark(a):
    if TLA < 0: return
    k = _tl_idx[0]; _tl_idx[0] += 1
    L = a.newlabel('tl')
    a('s_cmp_lg_u32 s2, 0')
    a(f's_cbranch_scc1 {L}')
    a('s_memrealtime s[98:99]')
    a('s_load_dwordx2 s[96:97], s[0:1], 96')
    a('s_waitcnt lgkmcnt(0)')
    srd(a, 92, 96, 4096, WS_DBG)
    a('v_mov_b32 v1, s98')
    a('v_mov_b32 v2, 0')
    a(f'buffer_store_dword v1, v2, s[92:95], 0 offen offset:{4*k}')
    a(f'{L}:')
def gen_tl(a):
    name = 'tl_kernel'
    a.raw(f'.globl {name}'); a.raw('.p2align 8'); a.raw(f'.type {name},@function'); a.raw(f'{name}:')
    a.flush_hist()
    a('s_cmp_lg_u32 s2, 0')
    a('s_cbranch_scc1 tl_end')
    a('s_memrealtime s[20:21]')
    a('s_load_dwordx2 s[4:5], s[0:1], 96')
    a('s_waitcnt lgkmcnt(0)')
    srd(a, 8, 4, 4096, WS_DBG)
    a('v_mov_b32 v2, 0')
    a('buffer_load_dwordx4 v[4:7], v2, s[8:11], 0 offen')
    a('v_mov_b32 v8, s20')
    a('s_waitcnt vmcnt(0)')
    a(f'v_sub_u32 v9, v{4+TLB}, v{4+TLA}')
    a('v_readfirstlane_b32 s22, v9')
    a('s_min_u32 s22, s22, 5000')
    a(f's_mul_i32 s22, s22, {TLM}')
    a('tl_spin:')
    a('s_memrealtime s[24:25]')
    a('s_waitcnt lgkmcnt(0)')
    a('s_sub_u32 s24, s24, s20')
    a('s_cmp_lt_u32 s24, s22')
    a('s_cbranch_scc1 tl_spin')
    a('tl_end:')
    a('s_endpgm')
    return name, 16, 32, None

def begin(a, name):
    a.raw(f'.globl {name}')
    a.raw('.p2align 8')
    a.raw(f'.type {name},@function')
    a.raw(f'{name}:')
    a.flush_hist()
    tl_mark(a)

def red32(a, v, t):
    a(f'v_add_f32_dpp v{v}, v{v}, v{v} quad_perm:[1,0,3,2] row_mask:0xf bank_mask:0xf')
    a(f'v_add_f32_dpp v{v}, v{v}, v{v} quad_perm:[2,3,0,1] row_mask:0xf bank_mask:0xf')
    a(f'v_add_f32_dpp v{v}, v{v}, v{v} row_half_mirror row_mask:0xf bank_mask:0xf')
    a(f'v_add_f32_dpp v{v}, v{v}, v{v} row_mirror row_mask:0xf bank_mask:0xf')
    a(f'v_mov_b32 v{t}, v{v}')
    a(f'v_permlane16_swap_b32 v{v}, v{t}')
    a(f'v_add_f32 v{v}, v{v}, v{t}')

def rne(a, d, s):
    a(f'v_cvt_pk_bf16_f32 v{d}, v{s}, v{s}')
    a(f'v_lshlrev_b32 v{d}, 16, v{d}')

def ln_sigma(a, var, rs):
    rne(a, var, var)
    a(f'v_add_f32 v{var}, 0x3727c5ac, v{var}')
    rne(a, var, var)
    a(f'v_sqrt_f32 v{var}, v{var}')
    rne(a, var, var)
    a(f'v_rcp_f32 v{rs}, v{var}')

def interleave(a, ms, fill, start=0):
    n = len(ms); k = 0
    for i, m in enumerate(ms):
        a(m)
        tgt = (len(fill) * (i + 1) + n - 1) // n
        while k < tgt:
            a(fill[k]); k += 1

P = lambda r: f'v[{r}:{r+1}]'
Q = lambda r: f'v[{r}:{r+3}]'

def gen_fmt_w1(a, VS):
    WG, WU, W1F = 20, 24, 32
    a('fmt1_begin:')
    a.flush_hist()
    a('s_cmp_ge_u32 s2, %d' % (256 + 112))
    a('s_cbranch_scc1 prep_end')
    stamp_begin(a, VS)
    a('s_load_dwordx4 s[8:11], s[0:1], 56')
    a('s_load_dwordx2 s[14:15], s[0:1], 96')
    a('v_lshrrev_b32 v1, 6, v0')
    a('v_and_b32 v2, 63, v0')
    a('v_readfirstlane_b32 s59, v1')
    a('s_sub_u32 s77, s2, 256')
    a('s_lshl_b32 s77, s77, 1')
    a('s_lshr_b32 s61, s59, 2')
    a('s_and_b32 s60, s59, 3')
    a('s_add_u32 s77, s77, s61')
    a('s_lshl_b32 s61, s61, 14')
    a('s_mul_hi_u32 s78, s77, %d' % (2**32 // 28 + 1))
    a('s_mul_i32 s79, s78, 28')
    a('s_sub_u32 s79, s77, s79')
    a('v_and_b32 v7, 7, v2')
    a('v_lshrrev_b32 v13, 3, v2')
    a('v_mul_u32_u24 v13, 3584, v13')
    a('v_lshl_add_u32 v13, v7, 4, v13')
    a('s_lshl_b32 s80, s78, 6')
    a('s_lshl_b32 s81, s60, 4')
    a('s_add_u32 s80, s80, s81')
    a('s_mul_i32 s80, s80, 3584')
    a('s_lshl_b32 s81, s79, 7')
    a('s_add_u32 s80, s80, s81')
    a('s_add_u32 s81, s80, %d' % (8 * 3584))
    a('s_lshl_b32 s82, s60, 11')
    a('s_add_u32 m0, s82, s61')
    a('s_waitcnt lgkmcnt(0)')
    srd(a, WG, 8, 512 * 3584)
    a(f'buffer_load_dwordx4 v13, s[{WG}:{WG+3}], s80 offen lds')
    a('s_add_u32 m0, m0, 1024')
    srd(a, WU, 10, 512 * 3584)
    a(f'buffer_load_dwordx4 v13, s[{WG}:{WG+3}], s81 offen lds')
    a('s_add_u32 m0, m0, %d' % (8192 - 1024))
    a(f'buffer_load_dwordx4 v13, s[{WU}:{WU+3}], s80 offen lds')
    a('s_add_u32 m0, m0, 1024')
    srd(a, W1F, 14, 16 * W1F_NT, WS_W1F)
    a(f'buffer_load_dwordx4 v13, s[{WU}:{WU+3}], s81 offen lds')
    a('v_and_b32 v3, 15, v2')
    a('v_lshrrev_b32 v4, 4, v2')
    a('v_lshlrev_b32 v6, 4, v2')
    a('v_lshrrev_b32 v20, 2, v3')
    a('v_and_b32 v21, 3, v3')
    a('v_lshrrev_b32 v22, 1, v4')
    a('v_and_b32 v23, 1, v4')
    a('v_lshl_add_u32 v24, v22, 3, v20')
    a('v_lshlrev_b32 v24, 7, v24')
    a('v_lshl_add_u32 v24, v23, 13, v24')
    a('v_lshl_add_u32 v24, v21, 3, v24')
    a('s_lshl_b32 s90, s60, 5')
    a('s_add_u32 s90, s90, s61')
    a('v_add_u32 v24, s90, v24')
    a('s_lshl_b32 s90, s79, 2')
    a('s_add_u32 s90, s90, s60')
    a('s_mul_hi_u32 s91, s90, %d' % (2**32 // 7 + 1))
    a('s_mul_i32 s43, s91, 7')
    a('s_sub_u32 s43, s90, s43')
    a('s_mul_i32 s91, s91, %d' % W1F_NT)
    a('s_lshl_b32 s43, s43, 10')
    a('s_add_u32 s91, s91, s43')
    a('s_mul_i32 s43, s78, %d' % (4 * 7168))
    a('s_add_u32 s43, s43, s91')
    a('s_lshr_b32 s46, s78, 2')
    a('s_lshl_b32 s46, s46, 9')
    a('s_and_b32 s44, s78, 3')
    a('s_lshl_b32 s44, s44, 2')
    a('s_add_u32 s46, s46, s44')
    a('s_add_u32 s46, s46, s91')
    a('s_add_u32 s46, s46, %d' % (32 * 7168))
    a('v_mov_b32 v30, 0')
    a('v_mov_b32 v31, 0')
    a('s_mov_b32 s45, 0x3f803f80')
    stamp(a, 1, VS)
    a('s_waitcnt vmcnt(0)')
    a('s_barrier')
    stamp(a, 2, VS)
    FF = 32
    for ks in range(4):
        a(f'ds_read_b64_tr_b16 {P(FF+4*ks)}, v24 offset:{2048*ks}')
        a(f'ds_read_b64_tr_b16 {P(FF+4*ks+2)}, v24 offset:{2048*ks+512}')
    for ks in range(4):
        a(f's_waitcnt lgkmcnt({6-2*ks})')
        a(f'buffer_store_dwordx4 {Q(FF+4*ks)}, v6, s[{W1F}:{W1F+3}], s43 offen')
        a('s_add_u32 s43, s43, 7168')
        for w in range(4):
            a(f'v_dot2c_f32_bf16 v{30+(w&1)}, s45, v{FF+4*ks+w}')
    a('s_nop 2')
    a('v_add_f32 v30, v30, v31')
    a('v_mov_b32 v31, v30')
    a('v_permlane32_swap_b32 v30, v31')
    a('v_add_f32 v30, v30, v31')
    rne(a, 31, 30)
    a('v_sub_f32 v30, v30, v31')
    a('v_cvt_pk_bf16_f32 v30, v31, v30')
    a('s_mov_b32 exec_hi, 0')
    a(f'buffer_store_dword v30, v6, s[{W1F}:{W1F+3}], s46 offen')
    stamp(a, 3, VS)
    stamp_end(a, 4, VS, 0, 26)

def gen_fmt_wd(a, VS):
    WD, WDF = 28, 36
    a('fmt_begin:')
    a.flush_hist()
    a('s_cmp_ge_u32 s2, %d' % (256 + NFMT))
    a('s_cbranch_scc1 conv_end')
    stamp_begin(a, VS)
    a('s_load_dwordx2 s[12:13], s[0:1], 72')
    a('s_load_dwordx2 s[14:15], s[0:1], 96')
    a('v_lshrrev_b32 v1, 6, v0')
    a('v_and_b32 v2, 63, v0')
    a('v_readfirstlane_b32 s60, v1')
    a('s_sub_u32 s84, s2, 256')
    a('v_lshlrev_b32 v6, 4, v2')
    a('s_lshl_b32 s86, s84, 14')
    a('s_lshl_b32 s87, s60, 12')
    a('s_add_u32 s86, s86, s87')
    a('s_mov_b32 m0, s87')
    a('s_waitcnt lgkmcnt(0)')
    srd(a, WD, 12, 1792 * 1024)
    for i in range(4):
        a(f'buffer_load_dwordx4 v6, s[{WD}:{WD+3}], s86 offen offset:{1024*i} lds')
    srd(a, WDF, 14, 1792 * 1024, WS_WDF)
    a('v_and_b32 v3, 15, v2')
    a('v_lshrrev_b32 v4, 4, v2')
    a('v_lshrrev_b32 v20, 2, v3')
    a('v_and_b32 v21, 3, v3')
    a('v_lshrrev_b32 v22, 1, v4')
    a('v_and_b32 v23, 1, v4')
    a('v_lshl_add_u32 v25, v22, 2, v20')
    a('v_lshlrev_b32 v25, 10, v25')
    a('v_lshl_add_u32 v25, v23, 5, v25')
    a('v_lshl_add_u32 v25, v21, 3, v25')
    a('s_lshl_b32 s90, s60, 8')
    a('v_add_u32 v25, s90, v25')
    a('s_mul_i32 s94, s60, 224')
    a('s_add_u32 s94, s94, s84')
    a('s_lshl_b32 s94, s94, 11')
    a('s_add_u32 s95, s94, %d' % (112 * 2048))
    stamp(a, 1, VS)
    a('s_waitcnt vmcnt(0)')
    a('s_barrier')
    stamp(a, 2, VS)
    FD = 32
    for x in range(4):
        a(f'ds_read_b64_tr_b16 {P(FD+4*x)}, v25 offset:{64*x}')
        a(f'ds_read_b64_tr_b16 {P(FD+4*x+2)}, v25 offset:{64*x+8192}')
    for x in range(4):
        a(f's_waitcnt lgkmcnt({6-2*x})')
        a(f'buffer_store_dwordx4 {Q(FD+4*x)}, v6, s[{WDF}:{WDF+3}], s{94+(x>>1)} offen offset:{1024*(x&1)}')
    stamp(a, 3, VS)
    stamp_end(a, 4, VS, 1, 228)

def gen_prep(a):
    name = 'prep_kernel'
    begin(a, name)
    VS = 39
    X, K, V, SH, O0, O1, ST = 16, 20, 24, 28, 32, 36, 40
    a('s_cmp_ge_u32 s2, 256')
    a('s_cbranch_scc1 fmt1_begin')
    stamp_begin(a, VS)
    a('s_load_dwordx8 s[4:11], s[0:1], 0')
    a('s_load_dwordx2 s[12:13], s[0:1], 96')
    a('v_lshrrev_b32 v1, 8, v0')
    a('v_and_b32 v4, 31, v0')
    a('v_readfirstlane_b32 s53, v1')
    a('v_bfe_u32 v5, v0, 5, 3')
    a('s_and_b32 s14, s2, 7')
    a('s_lshr_b32 s15, s2, 3')
    a('s_lshl_b32 s44, s15, 16')
    a('s_lshl_b32 s45, s14, 7')
    a('s_add_u32 s44, s44, s45')
    a('v_lshlrev_b32 v2, 13, v5')
    a('v_lshl_add_u32 v2, v4, 2, v2')
    a('v_add_u32 v2, s44, v2')
    a('v_add_u32 v3, 0x1000, v2')
    a('s_mov_b32 s47, 0x1000')
    a('s_mov_b32 s50, 0xffff0000')
    a('s_lshl_b32 s45, s14, 18')
    a('s_lshl_b32 s46, s15, 7')
    a('v_lshlrev_b32 v8, 13, v4')
    a('s_cmp_eq_u32 s53, 0')
    a('s_cbranch_scc0 prep_x')
    a('v_subrev_u32 v1, 0x1000, v2')
    a('s_lshl_b32 s48, s14, 9')
    a('v_lshlrev_b32 v6, 4, v4')
    a('v_add_u32 v6, s48, v6')
    a('s_sub_u32 s45, s45, s46')
    a('s_add_u32 s45, s45, 4080')
    a('v_lshlrev_b32 v9, 4, v5')
    a('v_sub_u32 v8, v8, v9')
    a('v_add_u32 v8, s45, v8')
    a('s_waitcnt lgkmcnt(0)')
    stamp(a, 1, VS)
    srd(a, K, 6, 2 * MiB)
    KR, VR, SHR = 10, 22, 32
    for r in range(12):
        a(f'buffer_load_dword v{KR+r}, v{1+r//4}, s[{K}:{K+3}], 0 offen offset:{(r%4)*1024}')
    srd(a, SH, 10, 4096)
    a(f'buffer_load_dwordx4 {Q(SHR)}, v6, s[{SH}:{SH+3}], 0 offen')
    srd(a, V, 8, 2 * MiB)
    for r in range(9):
        rr = r + 3
        a(f'buffer_load_dword v{VR+r}, v{1+rr//4}, s[{V}:{V+3}], 0 offen offset:{(rr%4)*1024}')
    srd(a, O0, 12, 2 * MiB, WS_XR0)
    srd(a, O1, 12, 2 * MiB, WS_XR1)
    KF, WP, VF, KV = 40, 64, 72, 92
    stamp(a, 2, VS)
    a('s_waitcnt vmcnt(10)')
    stamp(a, 3, VS)
    for r in range(12):
        a(f'v_lshlrev_b32 v{KF+2*r}, 16, v{KR+r}')
        a(f'v_and_b32 v{KF+2*r+1}, s50, v{KR+r}')
    a('s_waitcnt vmcnt(9)')
    for j in range(4):
        for c in range(2):
            src = SHR + 2 * c + j // 2
            if j % 2 == 0:
                a(f'v_lshlrev_b32 v{WP+2*j+c}, 16, v{src}')
            else:
                a(f'v_and_b32 v{WP+2*j+c}, s50, v{src}')
    for i in range(9):
        d = KV + 2 * i
        a(f'v_pk_mul_f32 {P(d)}, {P(KF+2*i)}, {P(WP+6)}')
    for j in (2, 1, 0):
        for i in range(9):
            d = KV + 2 * i
            a(f'v_pk_fma_f32 {P(d)}, {P(KF+2*(i+3-j))}, {P(WP+2*j)}, {P(d)}')
    a('s_waitcnt vmcnt(0)')
    for r in range(9):
        a(f'v_lshlrev_b32 v{VF+2*r}, 16, v{VR+r}')
        a(f'v_and_b32 v{VF+2*r+1}, s50, v{VR+r}')
    for i in range(9):
        d = KV + 2 * i
        a(f'v_pk_mul_f32 {P(d)}, {P(d)}, {P(VF+2*i)}')
    O = 112
    kv = lambda row, c: KV + 2 * (row + 1) + c
    for c in range(2):
        for w in range(4):
            a(f'v_cvt_pk_bf16_f32 v{O+4*c+w}, v{kv(7-2*w,c)}, v{kv(6-2*w,c)}')
        a(f'buffer_store_dwordx4 {Q(O+4*c)}, v8, s[{O0}:{O0+3}], {"s47" if c else "0"} offen')
    for c in range(2):
        for w in range(4):
            a(f'v_cvt_pk_bf16_f32 v{O+8+4*c+w}, v{kv(6-2*w,c)}, v{kv(5-2*w,c)}')
        a(f'buffer_store_dwordx4 {Q(O+8+4*c)}, v8, s[{O1}:{O1+3}], {"s47" if c else "0"} offen')
    stamp(a, 4, VS)
    stamp_end(a, 5, VS, 0, 36)
    a('s_endpgm')
    a('prep_x:')
    a.flush_hist()
    a('s_lshl_b32 s48, s2, 13')
    a('v_lshlrev_b32 v7, 10, v5')
    a('v_lshl_add_u32 v7, v4, 4, v7')
    a('v_add_u32 v7, s48, v7')
    a('s_add_u32 s45, s45, s46')
    a('v_lshl_add_u32 v8, v5, 4, v8')
    a('v_add_u32 v8, s45, v8')
    a('s_lshl_b32 s46, s2, 5')
    a('v_lshlrev_b32 v9, 2, v5')
    a('v_add_u32 v9, s46, v9')
    a('s_mov_b32 s48, 0x2000')
    a('s_mov_b32 s51, 0x05040100')
    a('s_mov_b32 s52, 0x07060302')
    a('s_load_dwordx2 s[54:55], s[0:1], 32')
    a('s_load_dwordx2 s[56:57], s[0:1], 72')
    a('s_waitcnt lgkmcnt(0)')
    stamp(a, 1, VS)
    srd(a, X, 4, 2 * MiB)
    XR, XS = 10, 20
    a(f'buffer_load_dwordx4 {Q(XS)}, v7, s[{X}:{X+3}], 0 offen')
    a(f'buffer_load_dwordx4 {Q(XS+4)}, v7, s[{X}:{X+3}], 0 offen offset:512')
    for r in range(8):
        a(f'buffer_load_dword v{XR+r}, v{2 if r < 4 else 3}, s[{X}:{X+3}], 0 offen offset:{(r%4)*1024}')
    srd(a, O0, 12, 2 * MiB, WS_XT)
    srd(a, ST, 12, 16384, WS_ST)
    if PF_FILT:
        srd(a, K, 54, 2 * MiB)
        srd(a, V, 56, 1792 * 1024)
        a('s_lshl_b32 s58, s14, 5')
        a('s_add_u32 s58, s58, s15')
        a('s_lshl_b32 s58, s58, 13')
        a('s_mul_i32 s59, s2, 7168')
        a('v_and_b32 v30, 63, v0')
        a('v_lshlrev_b32 v30, 7, v30')
        a('v_readfirstlane_b32 s60, v0')
        a('s_cmp_eq_u32 s60, 256')
        a(f's_cselect_b32 s{K+2}, s{K+2}, 0')
        a('s_cmp_eq_u32 s60, 320')
        a(f's_cselect_b32 s{V+2}, s{V+2}, 0')
        a(f'buffer_load_dword v31, v30, s[{K}:{K+3}], s58 offen')
        a(f'buffer_load_dword v32, v30, s[{V}:{V+3}], s59 offen')
    stamp(a, 2, VS)
    a('s_waitcnt vmcnt(%d)' % (10 if PF_FILT else 8))
    stamp(a, 3, VS)
    E = 60
    for r in range(8):
        a(f'v_lshlrev_b32 v{E+2*r}, 16, v{XS+r}')
        a(f'v_and_b32 v{E+2*r+1}, s50, v{XS+r}')
    S = 80
    a(f'v_pk_add_f32 {P(S)}, {P(E)}, {P(E+2)}')
    a(f'v_pk_add_f32 {P(S+2)}, {P(E+4)}, {P(E+6)}')
    a(f'v_pk_add_f32 {P(S+4)}, {P(E+8)}, {P(E+10)}')
    a(f'v_pk_add_f32 {P(S+6)}, {P(E+12)}, {P(E+14)}')
    a(f'v_pk_add_f32 {P(S)}, {P(S)}, {P(S+2)}')
    a(f'v_pk_add_f32 {P(S+4)}, {P(S+4)}, {P(S+6)}')
    a(f'v_pk_add_f32 {P(S)}, {P(S)}, {P(S+4)}')
    a(f'v_add_f32 v{S}, v{S}, v{S+1}')
    red32(a, S, S + 1)
    a(f'v_mul_f32 v{S}, 0xbb000000, v{S}')
    a(f'v_mov_b32 v{S+1}, v{S}')
    a('s_waitcnt vmcnt(%d)' % (2 if PF_FILT else 0))
    O2 = 100
    for c in range(2):
        for w in range(4):
            a(f'v_perm_b32 v{O2+4*c+w}, v{XR+2*w+1}, v{XR+2*w}, s{51+c}')
        a(f'buffer_store_dwordx4 {Q(O2+4*c)}, v8, s[{O0}:{O0+3}], {"s47" if c else "0"} offen')
    for r in range(8):
        a(f'v_pk_add_f32 {P(E+2*r)}, {P(E+2*r)}, {P(S)}')
    a(f'v_pk_mul_f32 {P(S+2)}, {P(E)}, {P(E)}')
    a(f'v_pk_mul_f32 {P(S+4)}, {P(E+2)}, {P(E+2)}')
    for r in range(2, 8):
        d = S + 2 + 2 * (r & 1)
        a(f'v_pk_fma_f32 {P(d)}, {P(E+2*r)}, {P(E+2*r)}, {P(d)}')
    a(f'v_pk_add_f32 {P(S+2)}, {P(S+2)}, {P(S+4)}')
    a(f'v_add_f32 v{S+2}, v{S+2}, v{S+3}')
    red32(a, S + 2, S + 3)
    a(f'v_mul_f32 v{S+2}, 0x3b000000, v{S+2}')
    rne(a, S, S)
    ln_sigma(a, S + 2, S + 4)
    a(f'v_mul_f32 v{S+5}, v{S}, v{S+4}')
    a('s_mov_b32 exec_lo, 1')
    a('s_mov_b32 exec_hi, 1')
    a(f'buffer_store_dword v{S+4}, v9, s[{ST}:{ST+3}], 0 offen')
    a(f'buffer_store_dword v{S+5}, v9, s[{ST}:{ST+3}], s48 offen')
    stamp(a, 4, VS)
    stamp_end(a, 5, VS, 0, 36)
    a('s_endpgm')
    gen_fmt_w1(a, 29)
    a('prep_end:')
    a('s_endpgm')
    return name, 128, 102, None

CV_XC = 0
CV_E = 2 * 4 * 4640
CV_RED = CV_E + 2 * 8448
CV_LDS = CV_RED + 16384
FM_W1 = 0
FM_WD = 16384
NFMT = 112

def gen_conv(a):
    name = 'conv_kernel'
    begin(a, name)
    VS = 230
    H, XRS, XT, HT, ST = 20, 24, 28, 32, 36
    a('s_cmp_ge_u32 s2, 256')
    a('s_cbranch_scc1 fmt_begin')
    stamp_begin(a, VS)
    a('s_load_dwordx4 s[4:7], s[0:1], 32')
    a('s_load_dwordx2 s[14:15], s[0:1], 96')
    a('v_lshrrev_b32 v1, 6, v0')
    a('v_and_b32 v2, 63, v0')
    a('v_readfirstlane_b32 s60, v1')
    a('s_and_b32 s16, s2, 7')
    a('s_lshr_b32 s17, s2, 3')
    a('s_lshl_b32 s16, s16, 5')
    a('s_add_u32 s16, s16, s17')
    a('s_lshr_b32 s61, s60, 1')
    a('s_and_b32 s62, s60, 1')
    a('s_lshl_b32 s63, s16, 1')
    a('s_add_u32 s63, s63, s61')
    a('s_lshl_b32 s64, s63, 12')
    a('s_lshl_b32 s65, s16, 2')
    a('v_lshlrev_b32 v5, 3, v2')
    a('v_lshlrev_b32 v6, 4, v2')
    a('s_mul_i32 s66, s61, 8448')
    a('s_add_u32 s66, s66, %d' % CV_E)
    a('s_mul_i32 s70, s61, 18560')
    a('s_mul_i32 s71, s62, 4640')
    a('s_add_u32 s71, s71, s70')
    a('s_xor_b32 s72, s62, 1')
    a('s_lshl_b32 s72, s72, 21')
    a('s_add_u32 s72, s72, s64')
    a('s_lshl_b32 s69, s62, 11')
    a('s_lshl_b32 s75, s62, 12')
    a('v_lshrrev_b32 v7, 2, v2')
    a('v_and_b32 v8, 3, v2')
    a('v_lshlrev_b32 v7, 3, v7')
    a('v_lshl_add_u32 v7, v8, 2, v7')
    a('v_add_u32 v7, 0xffffff80, v7')
    a('s_mov_b32 m0, s71')
    a('s_waitcnt lgkmcnt(0)')
    stamp(a, 1, VS)
    srd(a, XRS, 14, 4096, offreg=72)
    for i in range(4):
        a(f'buffer_load_dwordx4 v6, s[{XRS}:{XRS+3}], 4 offen offset:{1024*i} lds')
    a('s_add_u32 m0, m0, 9280')
    srd(a, H, 4, 4096, offreg=64)
    for i in range(4):
        a(f'buffer_load_dwordx4 v6, s[{XRS}:{XRS+3}], 0 offen offset:{1024*i} lds')
    a('s_add_u32 s68, s66, s75')
    a('s_add_u32 m0, s68, 256')
    a('s_load_dword s67, s[6:7], s65')
    for i in range(4):
        a(f'buffer_load_dwordx4 v5, s[{H}:{H+3}], s69 offen offset:{512*i} lds')
        a('s_add_u32 m0, m0, 512' if i < 3 else 's_mov_b32 m0, s66')
    a(f'buffer_load_dword v7, s[{H}:{H+3}], 0 offen lds')
    srd(a, XT, 14, 4096, WS_XT, offreg=64)
    srd(a, ST, 14, 16384, WS_ST)
    a('s_add_u32 s76, s75, 8192')
    XV, RS, MR = 16, 24, 40
    for t in range(4):
        a(f'buffer_load_dwordx2 {P(XV+2*t)}, v5, s[{XT}:{XT+3}], s69 offen offset:{512*t}')
        a(f'buffer_load_dwordx4 {Q(RS+4*t)}, v6, s[{ST}:{ST+3}], s75 offen offset:{1024*t}')
        a(f'buffer_load_dwordx4 {Q(MR+4*t)}, v6, s[{ST}:{ST+3}], s76 offen offset:{1024*t}')
    srd(a, HT, 14, 4096, WS_HT, offreg=64)
    if PF_W1:
        srd(a, 40, 14, 16 * W1F_NT, WS_W1F)
        a('s_bfe_u32 s77, s2, 0x20001')
        a('s_mul_i32 s77, s77, %d' % (4 * W1F_NT))
        a('s_mul_i32 s78, s17, %d' % (29 * 1024))
        a('s_add_u32 s77, s77, s78')
        a('v_min_u32 v226, 231, v0')
        a('v_lshlrev_b32 v226, 7, v226')
        a('buffer_load_dword v227, v226, s[40:43], s77 offen')
    a('v_mov_b32 v60, 0')
    a('v_mov_b32 v61, 0')
    a('v_add_u32 v62, s71, v5')
    a('ds_write_b64 v62, v[60:61] offset:4096')
    a('ds_write_b64 v62, v[60:61] offset:%d' % (4096 + 9280))
    XA, HA = 224, 225
    a('v_and_b32 v3, 15, v2')
    a('v_lshrrev_b32 v4, 4, v2')
    a('v_lshrrev_b32 v9, 2, v3')
    a('v_mul_u32_u24 v10, 4640, v8')
    a('v_lshlrev_b32 v9, 3, v9')
    a('v_sub_u32 v9, v4, v9')
    a('v_add_u32 v9, 24, v9')
    a(f'v_lshl_add_u32 v{XA}, v9, 4, v10')
    a('s_lshl_b32 s88, s62, 8')
    a('s_add_u32 s88, s88, s70')
    a(f'v_add_u32 v{XA}, s88, v{XA}')
    a(f'v_lshl_add_u32 v{HA}, v4, 1, v3')
    a(f'v_lshlrev_b32 v{HA}, 4, v{HA}')
    a('s_lshl_b32 s89, s62, 9')
    a('s_add_u32 s89, s89, s66')
    a('s_add_u32 s89, s89, 16')
    a(f'v_add_u32 v{HA}, s89, v{HA}')
    a('s_sub_u32 s89, s70, s69')
    a('s_add_u32 s89, s89, %d' % (3 * 4640 + 4088 - 1536))
    a('v_sub_u32 v11, s89, v5')
    a('s_lshl_b32 s90, s60, 12')
    a('s_add_u32 s91, s90, %d' % CV_RED)
    a('s_xor_b32 s90, s90, 0x1000')
    a('s_add_u32 s90, s90, %d' % CV_RED)
    a('v_add_u32 v62, s91, v6')
    a('v_add_u32 v63, s90, v6')
    a('s_mov_b32 s92, 0xffff0000')
    stamp(a, 2, VS)
    a('s_waitcnt vmcnt(%d) lgkmcnt(0)' % (13 if PF_W1 else 12))
    a('s_barrier')
    stamp(a, 3, VS)
    FH = [64, 128]; FX = [96, 160]; ACC = 192
    def rdH(s, ri, aa): return f'ds_read_b128 {Q(FH[s]+4*aa)}, v{HA} offset:{128*(8*aa+ri)}'
    def rdX(s, ri, bb): return f'ds_read_b128 {Q(FX[s]+4*bb)}, v{XA} offset:{64*(56-8*bb+ri)}'
    inited = [False] * 8
    def mf(s, aa, bb):
        nb = aa + bb
        c = Q(ACC + 4 * nb)
        src = c if inited[nb] else '0'
        inited[nb] = True
        return f'v_mfma_f32_16x16x32_bf16 {c}, {Q(FX[s]+4*bb)}, {Q(FH[s]+4*aa)}, {src}'
    pairs = sorted([(aa, bb) for aa in range(8) for bb in range(8) if aa + bb <= 7], key=lambda p: (max(p), p))
    queue = []
    def issue(txt, tag):
        a(txt); queue.append(tag)
    def need(tags):
        idx = max(queue.index(t) for t in tags)
        n = len(queue) - 1 - idx
        return n
    lastwait = [99, 0]
    done = [0]
    def wait_for(tags):
        idx = max(queue.index(t) for t in tags) + 1
        if idx > done[0]:
            n = len(queue) - idx
            a(f's_waitcnt lgkmcnt({min(n, 15)})')
            done[0] = len(queue) - min(n, 15)
    todo = []
    for ri in range(4):
        for x in range(8):
            todo.append((rdH(ri & 1, ri, x), ('H', ri, x)))
            todo.append((rdX(ri & 1, ri, x), ('X', ri, x)))
    for _ in range(12):
        issue(*todo.pop(0))
    for ri in range(4):
        s = ri & 1
        for n, (aa, bb) in enumerate(pairs):
            wait_for([('H', ri, aa), ('X', ri, bb)])
            a(mf(s, aa, bb))
            if todo and todo[0][1][1] <= ri + 1 and (n % 2 == 0 or todo[0][1][1] == ri):
                issue(*todo.pop(0))
    stamp(a, 4, VS)
    KVR = 56
    a('s_lshl_b32 s90, s61, 4')
    a('s_lshr_b32 s67, s67, s90')
    a('s_lshl_b32 s67, s67, 16')
    a('s_cmp_eq_u32 s62, 0')
    a('s_cbranch_scc0 conv_h1')
    for t in range(4):
        a(f'ds_write_b128 v62, {Q(ACC+16+4*t)} offset:{1024*t}')
    a('s_branch conv_join')
    a('conv_h1:')
    a('s_nop 4')
    for t in range(4):
        a(f'ds_write_b128 v62, {Q(ACC+4*t)} offset:{1024*t}')
    a('s_waitcnt lgkmcnt(0)')
    for r in range(16):
        a(f'v_mov_b32 v{ACC+r}, v{ACC+16+r}')
    a('conv_join:')
    for t in range(4):
        a(f'ds_read_b64 {P(96+2*t)}, v11 offset:{512*(3-t)}')
    a('s_waitcnt vmcnt(0)')
    XF = 112
    for t in range(4):
        a(f'v_lshlrev_b32 v{XF+4*t}, 16, v{XV+2*t}')
        a(f'v_and_b32 v{XF+4*t+1}, s92, v{XV+2*t}')
        a(f'v_lshlrev_b32 v{XF+4*t+2}, 16, v{XV+2*t+1}')
        a(f'v_and_b32 v{XF+4*t+3}, s92, v{XV+2*t+1}')
    a('s_waitcnt lgkmcnt(0)')
    a('s_barrier')
    stamp(a, 5, VS)
    PR = 64
    for t in range(4):
        a(f'ds_read_b128 {Q(PR+4*t)}, v63 offset:{1024*t}')
    for r in range(16):
        a(f'v_fma_f32 v{RS+r}, v{XF+r}, v{RS+r}, v{MR+r}')
    for t in range(4):
        a(f'v_and_b32 v{MR+4*t}, s92, v{97+2*t}')
        a(f'v_lshlrev_b32 v{MR+4*t+1}, 16, v{97+2*t}')
        a(f'v_and_b32 v{MR+4*t+2}, s92, v{96+2*t}')
        a(f'v_lshlrev_b32 v{MR+4*t+3}, 16, v{96+2*t}')
    for r in range(16):
        a(f'v_fmac_f32 v{ACC+r}, s67, v{MR+r}')
    for t in range(4):
        a(f's_waitcnt lgkmcnt({3-t})')
        for r in range(4):
            a(f'v_add_f32 v{ACC+4*t+r}, v{ACC+4*t+r}, v{PR+4*t+r}')
        for r in range(4):
            a(f'v_fmac_f32 v{XF+4*t+r}, v{RS+4*t+r}, v{ACC+4*t+r}')
        a(f'v_cvt_pk_bf16_f32 v{88+2*t}, v{XF+4*t}, v{XF+4*t+1}')
        a(f'v_cvt_pk_bf16_f32 v{89+2*t}, v{XF+4*t+2}, v{XF+4*t+3}')
        a(f'buffer_store_dwordx2 {P(88+2*t)}, v5, s[{HT}:{HT+3}], s69 offen offset:{512*t}')
    stamp(a, 6, VS)
    stamp_end(a, 7, VS, 1, 228)
    a('s_endpgm')

    gen_fmt_wd(a, VS)
    a('conv_end:')
    a('s_endpgm')
    return name, 232, 102, None

G1_SLOT = 22528
G1_NS = 7
G1_LDS = G1_SLOT * G1_NS
DEPTH2 = 8
G1_NODMA = 0
G1_NOSTAT = 0
G1_NOMFMA = 0
G1_NORD = 0

def epi_tile(g, T, C1, IR2):
    u = g + 8
    L = []
    for e in range(8): L.append(f'v_mul_f32 v{T+e}, v{g+e}, v{C1}')
    for e in range(8): L.append(f'v_exp_f32 v{T+e}, v{T+e}')
    for e in range(8): L.append(f'v_mul_f32 v{g+e}, v{g+e}, v{u+e}')
    for e in range(8): L.append(f'v_fma_f32 v{T+e}, v{T+e}, v{IR2}, v{IR2}')
    for e in range(8): L.append(f'v_rcp_f32 v{T+e}, v{T+e}')
    for e in range(8): L.append(f'v_mul_f32 v{g+e}, v{g+e}, v{T+e}')
    for w in range(4): L.append(f'v_cvt_pk_bf16_f32 v{T+8+w}, v{g+2*w}, v{g+2*w+1}')
    return L

class DsQ:
    def __init__(self, a):
        self.a = a; self.q = []; self.done = 0
    def op(self, txt, tag=None):
        self.a(txt); self.q.append(tag)
    def wait(self, *tags):
        idx = max(len(self.q) - 1 - self.q[::-1].index(t) for t in tags) + 1
        if idx > self.done:
            n = min(len(self.q) - idx, 15)
            self.a(f's_waitcnt lgkmcnt({n})')
            self.done = len(self.q) - n
    def drain(self):
        self.a('s_waitcnt lgkmcnt(0)'); self.done = len(self.q)

class Checks:
    def __init__(self, a, pfx):
        self.a = a; self.pfx = pfx; self.stubs = []
    def check(self, vf, vaddr, thr, off=0):
        n = len(self.stubs)
        self.a(f'v_cmp_gt_u32 vcc, {thr}, v{vf}')
        self.a(f's_cbranch_vccnz {self.pfx}_s{n}')
        self.a(f'{self.pfx}_g{n}:')
        self.stubs.append((vf, vaddr, thr, off))
    def emit(self):
        a = self.a
        for n, (vf, vaddr, thr, off) in enumerate(self.stubs):
            a(f'{self.pfx}_s{n}:')
            a(f'ds_read_b32 v{vf}, v{vaddr} offset:{off}')
            a('s_waitcnt lgkmcnt(0)')
            a(f'v_cmp_gt_u32 vcc, {thr}, v{vf}')
            a(f's_cbranch_vccnz {self.pfx}_s{n}')
            a(f's_branch {self.pfx}_g{n}')

def spin(a, vf, vaddr, thr, off=0):
    L = a.newlabel('spin')
    a(f'{L}:')
    a(f'ds_read_b32 v{vf}, v{vaddr} offset:{off}')
    a('s_waitcnt lgkmcnt(0)')
    a(f'v_cmp_gt_u32 vcc, {thr}, v{vf}')
    a(f's_cbranch_vccnz {L}')

def win(addr_regs, byte, span):
    k = byte // 55296
    return addr_regs[k], byte - 55296 * k

def gen_gemm1(a):
    name = 'gemm1_kernel'
    begin(a, name)
    VS = 250
    W1F, HT, ACT = 8, 12, 16
    a('s_cmp_ge_u32 s2, 256')
    a('s_cbranch_scc1 g1_end')
    stamp_begin(a, VS)
    a('s_load_dwordx2 s[4:5], s[0:1], 96')
    a('v_lshrrev_b32 v1, 6, v0')
    a('v_and_b32 v2, 63, v0')
    a('v_readfirstlane_b32 s19, v1')
    a('s_and_b32 s21, s2, 1')
    a('s_lshl_b32 s21, s21, 3')
    a('s_bfe_u32 s27, s2, 0x30003')
    a('s_add_u32 s21, s21, s27')
    a('s_bfe_u32 s22, s2, 0x20001')
    a('s_lshl_b32 s22, s22, 2')
    a('s_lshr_b32 s23, s2, 6')
    a('s_add_u32 s22, s22, s23')
    a('s_and_b32 s20, s19, 3')
    a('v_lshlrev_b32 v3, 4, v2')
    a('v_lshrrev_b32 v5, 4, v2')
    a('v_and_b32 v6, 15, v2')
    a('s_cmp_ge_u32 s19, 4')
    a('s_cbranch_scc1 g1_ld')
    a('v_lshrrev_b32 v12, 2, v6')
    a('v_and_b32 v13, 3, v6')
    a('v_lshrrev_b32 v14, 1, v5')
    a('v_and_b32 v15, 1, v5')
    a('v_lshl_add_u32 v11, v14, 3, v12')
    a('v_lshlrev_b32 v11, 8, v11')
    a('v_xor_b32 v12, s20, v12')
    a('v_lshl_add_u32 v11, v12, 6, v11')
    a('v_lshl_add_u32 v11, v15, 5, v11')
    a('v_lshl_add_u32 v11, v13, 3, v11')
    a('v_add_u32 v11, 14336, v11')
    a('v_mov_b32 v10, v3')
    a('s_lshl_b32 s37, s21, 2')
    a('s_add_u32 s37, s37, s20')
    a('s_mul_i32 s37, s37, 112')
    a('s_mul_i32 s38, s22, 7')
    a('s_add_u32 s37, s37, s38')
    a('s_lshl_b32 s37, s37, 10')
    WF = [32, 64]; HF = [60, 92]; ACC = 96
    S1, S2, T0 = 16, 18, 20
    for r in range(112):
        a(f'v_mov_b32 v{ACC+r}, 0')
    for r in range(4):
        a(f'v_mov_b32 v{S1+r}, 0')
    a('s_mov_b32 s34, 0xffff0000')
    a('s_mov_b32 s35, 0')
    a('s_mov_b32 s33, 0')
    def rdW(s, f): return f'ds_read_b128 {Q(WF[s]+4*f)}, v10 offset:{7168*s+1024*f}'
    def rdH(s): return [f'ds_read_b64_tr_b16 {P(HF[s])}, v11 offset:{4096*s}', f'ds_read_b64_tr_b16 {P(HF[s]+2)}, v11 offset:{4096*s+1024}']
    def stats(s):
        L = []
        for w in range(4):
            t = T0 + 2 * (w & 1)
            L.append(f'v_lshlrev_b32 v{t}, 16, v{HF[s]+w}')
            L.append(f'v_and_b32 v{t+1}, s34, v{HF[s]+w}')
            L.append(f'v_add_f32 v{S1}, v{S1}, v{t}')
            L.append(f'v_add_f32 v{S1+1}, v{S1+1}, v{t+1}')
            L.append(f'v_fmac_f32 v{S2}, v{t}, v{t}')
            L.append(f'v_fmac_f32 v{S2+1}, v{t+1}, v{t+1}')
        return L
    def mfma(s, f):
        return f'v_mfma_f32_32x32x16_bf16 v[{ACC+16*f}:{ACC+16*f+15}], {Q(WF[s]+4*f)}, {Q(HF[s])}, v[{ACC+16*f}:{ACC+16*f+15}]'
    adv = ['s_add_u32 s35, s35, %d' % G1_SLOT, 's_cmp_eq_u32 s35, %d' % G1_LDS,
           's_cselect_b32 s36, %d, 0' % (-(G1_LDS - G1_SLOT) & 0xffffffff), 's_cselect_b32 s35, 0, s35', 's_cselect_b32 s36, s36, %d' % G1_SLOT]
    a('s_waitcnt lgkmcnt(0)')
    srd(a, ACT, 4, 64 * 112 * 1024, WS_ACT)
    for x in adv: a(x)
    stamp(a, 1, VS)
    a('s_barrier')
    stamp(a, 2, VS)
    for s in range(2):
        for x in rdH(s)[::1]: pass
    for s in range(2):
        for f in range(7): a(rdW(s, f))
        for x in rdH(s): a(x)
    a('v_add_u32 v10, s36, v10')
    a('v_add_u32 v11, s36, v11')
    a('g1_loop:')
    for s in range(2):
        st = stats(s)
        a('s_waitcnt lgkmcnt(9)')
        for f in range(7):
            if not G1_NOMFMA: a(mfma(s, f))
            if s == 0 and f == 0: a('s_barrier')
            if not G1_NORD: a(rdW(s, f))
            if f < 6 and not G1_NOSTAT:
                for x in st[4*f:4*f+4]: a(x)
            if s == 1 and f == 2:
                for x in adv: a(x)
            if s == 1 and f == 5:
                a('s_add_u32 s33, s33, 1')
                a('s_cmp_lt_u32 s33, 16')
        for x in rdH(s): a(x)
    a('v_add_u32 v10, s36, v10')
    a('v_add_u32 v11, s36, v11')
    a('s_cbranch_scc1 g1_loop')
    stamp(a, 3, VS)
    a(f'v_add_f32 v{S1}, v{S1}, v{S1+1}')
    a(f'v_add_f32 v{S2}, v{S2}, v{S2+1}')
    a(f'v_mov_b32 v{S1+1}, v{S1}')
    a(f'v_mov_b32 v{S2+1}, v{S2}')
    a(f'v_permlane32_swap_b32 v{S1}, v{S1+1}')
    a(f'v_permlane32_swap_b32 v{S2}, v{S2+1}')
    a(f'v_add_f32 v{S1}, v{S1}, v{S1+1}')
    a(f'v_add_f32 v{S2}, v{S2}, v{S2+1}')
    a(f'v_mul_f32 v{S1}, 0xbb000000, v{S1}')
    a(f'v_mul_f32 v{S2}, 0x3b000000, v{S2}')
    a('s_waitcnt lgkmcnt(0)')
    for w in range(4):
        a(f'v_cvt_pk_bf16_f32 v{HF[0]+w}, v{S1}, v{S1}')
    a(f'v_fma_f32 v{S2}, -v{S1}, v{S1}, v{S2}')
    a(f'v_max_f32 v{S2}, 0, v{S2}')
    for f in range(7): a(mfma(0, f))
    C1, IR2 = 23, 24
    ln_sigma(a, S2, C1)
    a(f'v_mul_f32 v{IR2}, v{S2}, v{S2}')
    a(f'v_mul_f32 v{C1}, 0xbfb8aa3b, v{C1}')
    for f in range(7):
        T = 64 + 16 * (f & 1)
        for x in epi_tile(ACC + 16 * f, T, C1, IR2): a(x)
        a(f'buffer_store_dwordx4 {Q(T+8)}, v3, s[{ACT}:{ACT+3}], s37 offen offset:{1024*(f&3)}')
        if f == 3: a('s_add_u32 s37, s37, 4096')
    stamp(a, 4, VS)
    stamp_end(a, 5, VS, 2, 248)
    a('s_endpgm')
    a('g1_ld:')
    a.flush_hist()
    a('s_mul_i32 s28, s22, %d' % W1F_NT)
    a('s_mul_i32 s24, s20, 3584')
    a('v_add_u32 v4, s24, v3')
    a('v_lshlrev_b32 v7, 2, v5')
    a('v_xor_b32 v7, v7, v6')
    a('v_lshlrev_b32 v7, 4, v7')
    a('v_lshl_add_u32 v7, v5, 12, v7')
    a('s_lshl_b32 s25, s21, 8')
    a('s_lshl_b32 s26, s20, 15')
    a('s_add_u32 s25, s25, s26')
    a('v_add_u32 v7, s25, v7')
    a('v_add_u32 v8, %d, v7' % (0x4000 - 1024))
    a('s_lshl_b32 s26, s20, 11')
    a('s_add_u32 s26, s26, 14336')
    if ROT1: a('s_lshl_b32 s29, s23, 2')
    else: a('s_mov_b32 s29, 0')
    a('s_mov_b32 s32, 0')
    a('s_mov_b32 s33, 0')
    a('s_mul_i32 s30, s29, 14336')
    a('s_lshl_b32 s31, s29, 17')
    a('s_add_u32 m0, s32, s26')
    a('s_waitcnt lgkmcnt(0)')
    srd(a, HT, 4, 2 * MiB, WS_HT)
    srd(a, W1F, 4, 33 * 7168, WS_W1F, offreg=28)
    dma = f"""buffer_load_dwordx4 v7, s[{HT}:{HT+3}], s31 offen lds
buffer_load_dwordx4 v8, s[{HT}:{HT+3}], s31 offen offset:1024 lds
s_add_u32 m0, s32, s24
s_add_u32 s29, s29, 1
buffer_load_dwordx4 v4, s[{W1F}:{W1F+3}], s30 offen lds
s_and_b32 s29, s29, 15
s_add_u32 s33, s33, 1
buffer_load_dwordx4 v4, s[{W1F}:{W1F+3}], s30 offen offset:1024 lds
s_cmp_ge_u32 s33, 16
s_cselect_b32 s29, s33, s29
buffer_load_dwordx4 v4, s[{W1F}:{W1F+3}], s30 offen offset:2048 lds
s_mov_b32 exec_hi, 0
s_add_u32 s32, s32, {G1_SLOT}
buffer_load_dwordx4 v4, s[{W1F}:{W1F+3}], s30 offen offset:3072 lds
s_mov_b32 exec_hi, -1
s_cmp_eq_u32 s32, {G1_LDS}
s_cselect_b32 s32, 0, s32
s_mul_i32 s30, s29, 14336
s_lshl_b32 s31, s29, 17
s_add_u32 m0, s32, s26"""
    if G1_NODMA: dma = '\n'.join(l for l in dma.split('\n') if not l.startswith('buffer'))
    stamp(a, 1, VS)
    a(dma); a(dma)
    a('s_waitcnt vmcnt(6)')
    stamp(a, 2, VS)
    a('s_barrier')
    a(dma)
    a('s_waitcnt vmcnt(6)')
    a('s_barrier')
    a(dma); a(dma)
    a('s_waitcnt vmcnt(12)')
    a('s_barrier')
    a(dma); a(dma)
    a('s_waitcnt vmcnt(18)')
    if PF_WD:
        srd(a, 40, 4, 1792 * 1024, WS_WDF)
        a('s_lshr_b32 s44, s2, 3')
        a('s_mul_i32 s44, s44, 57344')
        a('v_and_b32 v20, 255, v0')
        a('v_lshlrev_b32 v20, 7, v20')
        a('v_min_u32 v21, %d, v20' % (191 * 128))
        a('s_add_u32 s45, s44, 32768')
    a('s_barrier')
    a(dma)
    a('g1_ldloop:')
    a(dma)
    a('s_cmp_lt_u32 s33, 17')
    a('s_waitcnt vmcnt(24)')
    a('s_barrier')
    a('s_cbranch_scc1 g1_ldloop')
    if PF_WD:
        a('buffer_load_dword v22, v20, s[40:43], s44 offen')
        a('buffer_load_dword v23, v21, s[40:43], s45 offen')
    e = 2 if PF_WD else 0
    for j in range(13, 17):
        a(f's_waitcnt vmcnt({6*(16-j)+e})')
        a('s_barrier')
    stamp(a, 3, VS)
    stamp_end(a, 4, VS, 2, 248)
    a('g1_end:')
    a('s_endpgm')
    return name, 252, 102, None

G2_RED = 0
G2_H = 49152
G2_LDS = G2_H + 8192

def gen_gemm2(a):
    name = 'gemm2_kernel'
    begin(a, name)
    VS = 242
    WS, OUT = 8, 12
    a('s_cmp_ge_u32 s2, 256')
    a('s_cbranch_scc1 g2_end')
    stamp_begin(a, VS)
    a('s_load_dwordx2 s[4:5], s[0:1], 96')
    a('s_load_dwordx2 s[6:7], s[0:1], 80')
    a('v_lshrrev_b32 v1, 6, v0')
    a('v_and_b32 v2, 63, v0')
    a('v_readfirstlane_b32 s24, v1')
    a('s_and_b32 s25, s2, 7')
    a('s_lshl_b32 s25, s25, 2')
    a('s_bfe_u32 s27, s2, 0x20003')
    a('s_add_u32 s25, s25, s27')
    a('s_lshr_b32 s26, s2, 5')
    a('v_lshlrev_b32 v3, 4, v2')
    a('s_mul_i32 s30, s25, 224')
    a('s_mul_i32 s28, s24, 28')
    a('s_add_u32 s30, s30, s28')
    a('s_lshl_b32 s30, s30, 10')
    a('s_add_u32 s30, s30, %d' % WS_ACT)
    a('s_mul_i32 s31, s26, 112')
    a('s_add_u32 s31, s31, s28')
    a('s_lshl_b32 s31, s31, 11')
    a('s_add_u32 s31, s31, %d' % WS_WDF)
    if ROT2:
        a('s_mul_i32 s29, s26, 7')
        a('s_lshr_b32 s29, s29, 1')
        a('s_lshl_b32 s29, s29, 10')
    else:
        a('s_mov_b32 s29, 0')
    a('s_lshr_b32 s34, s24, 1')
    a('s_and_b32 s35, s24, 1')
    a('s_lshl_b32 s36, s34, 10')
    a('v_add_u32 v224, s36, v3')
    a('v_xor_b32 v225, 0x400, v224')
    a('s_mul_i32 s36, s35, 0x1c000')
    a('v_add_u32 v226, s36, v3')
    a('v_xor_b32 v227, 0x1c000, v226')
    a('s_add_u32 s41, s30, s29')
    a('s_lshl_b32 s40, s29, 1')
    a('s_add_u32 s40, s40, s31')
    a('s_waitcnt lgkmcnt(0)')
    srd(a, WS, 4, WS_END)
    stamp(a, 1, VS)
    BUF = 16
    def loads(k):
        b = BUF + 16 * (k % DEPTH2)
        return [f'buffer_load_dwordx4 {Q(b+8)}, v226, s[{WS}:{WS+3}], s41 offen',
                f'buffer_load_dwordx4 {Q(b+12)}, v227, s[{WS}:{WS+3}], s41 offen\ns_add_u32 s29, s29, 1024\ns_cmp_eq_u32 s29, 28672\ns_cselect_b32 s29, 0, s29\ns_add_u32 s41, s30, s29',
                f'buffer_load_dwordx4 {Q(b)}, v224, s[{WS}:{WS+3}], s40 offen',
                f'buffer_load_dwordx4 {Q(b+4)}, v225, s[{WS}:{WS+3}], s40 offen\ns_lshl_b32 s40, s29, 1\ns_add_u32 s40, s40, s31']
    order = []
    for k in range(DEPTH2):
        for x in loads(k): a(x)
        order += [k] * 4
    srd(a, OUT, 6, 2 * MiB)
    a('v_lshrrev_b32 v5, 3, v2')
    a('v_and_b32 v6, 7, v2')
    a('v_lshlrev_b32 v5, 12, v5')
    a('v_lshl_add_u32 v5, v6, 4, v5')
    a('s_lshl_b32 s42, s26, 18')
    a('s_lshl_b32 s43, s24, 16')
    a('s_add_u32 s42, s42, s43')
    a('s_lshl_b32 s43, s25, 7')
    a('s_add_u32 s42, s42, s43')
    a('s_add_u32 s42, s42, %d' % WS_HT)
    a('s_add_u32 s43, s42, 0x8000')
    a('s_lshl_b32 s32, s24, 11')
    a('s_add_u32 m0, s32, %d' % G2_H)
    a(f'buffer_load_dwordx4 v5, s[{WS}:{WS+3}], s42 offen lds')
    a('s_add_u32 m0, m0, 1024')
    a(f'buffer_load_dwordx4 v5, s[{WS}:{WS+3}], s43 offen lds')
    order += ['h', 'h']
    a('v_and_b32 v8, 15, v2')
    a('v_lshrrev_b32 v9, 4, v2')
    a('v_lshrrev_b32 v10, 2, v8')
    a('v_and_b32 v11, 3, v8')
    a('v_lshrrev_b32 v12, 1, v9')
    a('v_and_b32 v13, 1, v9')
    a('v_lshl_add_u32 v14, v12, 2, v10')
    a('v_lshlrev_b32 v14, 7, v14')
    a('v_lshl_add_u32 v14, v13, 5, v14')
    a('v_lshl_add_u32 v14, v11, 3, v14')
    a('s_lshr_b32 s34, s24, 1')
    a('s_and_b32 s35, s24, 1')
    a('s_lshl_b32 s36, s34, 12')
    a('s_lshl_b32 s37, s35, 6')
    a('s_add_u32 s36, s36, s37')
    a('v_add_u32 v14, s36, v14')
    a('v_and_b32 v15, 31, v2')
    a('v_lshlrev_b32 v15, 10, v15')
    a('v_lshl_add_u32 v15, v12, 4, v15')
    a('s_lshl_b32 s36, s25, 16')
    a('s_lshl_b32 s37, s35, 15')
    a('s_add_u32 s36, s36, s37')
    a('s_lshl_b32 s37, s26, 7')
    a('s_add_u32 s36, s36, s37')
    a('s_lshl_b32 s37, s34, 6')
    a('s_add_u32 s36, s36, s37')
    a('s_mov_b32 s38, 0xffff0000')
    for p in (1, 2, 3):
        a(f's_xor_b32 s33, s24, {p}')
        a('s_mul_i32 s33, s33, 12288')
        a(f'v_add_u32 v{5+p}, s33, v3')
    a('s_mul_i32 s33, s24, 12288')
    a('v_add_u32 v9, s33, v3')
    return_marker = None
    for k in range(28):
        b = BUF + 16 * (k % DEPTH2)
        last = max(i for i, o in enumerate(order) if o == k)
        if k == 0: stamp(a, 2, VS)
        a(f's_waitcnt vmcnt({len(order) - 1 - last})')
        if k == 0: stamp(a, 3, VS)
        nl = loads(k + DEPTH2) if k + DEPTH2 < 28 else [None] * 4
        for p in (3, 2, 1, 0):
            px, py = p >> 1, p & 1
            src = '0' if k == 0 else f'a[{16*p}:{16*p+15}]'
            a(f'v_mfma_f32_32x32x16_bf16 a[{16*p}:{16*p+15}], {Q(b+4*px)}, {Q(b+8+4*py)}, {src}')
        if k + DEPTH2 < 28:
            for x in nl: a(x)
            order += [k + DEPTH2] * 4
        if k == 24:
            a('s_barrier')
            for x in range(4):
                a(f'ds_read_b64_tr_b16 {P(232+2*x)}, v14 offset:{G2_H+1024*x}')
    stamp(a, 4, VS)
    for p in (3, 2, 1):
        for j in range(4):
            a(f'ds_write_b128 v{5+p}, a[{16*p+4*j}:{16*p+4*j+3}] offset:{G2_RED+(p-1)*4096+1024*j}')
    R = 16
    for x in range(4):
        a(f'v_lshlrev_b32 v{R+4*x}, 16, v{232+2*x}') if x else (a('s_waitcnt lgkmcnt(12)'), a(f'v_lshlrev_b32 v{R}, 16, v232'))
        a(f'v_and_b32 v{R+4*x+1}, s38, v{232+2*x}')
        a(f'v_lshlrev_b32 v{R+4*x+2}, 16, v{233+2*x}')
        a(f'v_and_b32 v{R+4*x+3}, s38, v{233+2*x}')
    for r in range(16):
        a(f'v_accvgpr_read_b32 v{80+r}, a{r}')
    for r in range(16):
        a(f'v_add_f32 v{R+r}, v{R+r}, v{80+r}')
    a('s_waitcnt lgkmcnt(0)')
    a('s_barrier')
    stamp(a, 5, VS)
    for j in range(4):
        for p in range(3):
            a(f'ds_read_b128 {Q(32+16*p+4*j)}, v9 offset:{G2_RED+4096*p+1024*j}')
    for j in range(4):
        a(f's_waitcnt lgkmcnt({9-3*j})')
        for r in range(4*j, 4*j+4):
            a(f'v_add_f32 v{R+r}, v{R+r}, v{32+r}')
            a(f'v_add_f32 v{48+r}, v{48+r}, v{64+r}')
        for r in range(4*j, 4*j+4):
            a(f'v_add_f32 v{R+r}, v{R+r}, v{48+r}')
        a(f'v_cvt_pk_bf16_f32 v{100+2*j}, v{R+4*j}, v{R+4*j+1}')
        a(f'v_cvt_pk_bf16_f32 v{101+2*j}, v{R+4*j+2}, v{R+4*j+3}')
        if j & 1:
            p = j >> 1
            a(f'v_permlane32_swap_b32 v{100+4*p}, v{102+4*p}')
            a(f'v_permlane32_swap_b32 v{101+4*p}, v{103+4*p}')
            a(f'buffer_store_dwordx4 {Q(100+4*p)}, v15, s[{OUT}:{OUT+3}], s36 offen offset:{32*p}')
    stamp(a, 6, VS)
    stamp_end(a, 7, VS, 3, 240)
    a('g2_end:')
    a('s_endpgm')
    return name, 244 + 64, 102, 244

def main(out):
    a = Asm()
    ks = []
    launches = [('prep_kernel', 256 + 112, 512, 32768), ('conv_kernel', 256 + NFMT, 256, CV_LDS), ('gemm1_kernel', 256, 512, G1_LDS), ('gemm2_kernel', 256, 256, G2_LDS)]
    gens = [gen_prep, gen_conv, gen_gemm1, gen_gemm2]
    if TLA >= 0:
        launches.append(('tl_kernel', 1, 64, 0)); gens.append(gen_tl)
    txt = HEADER
    for n, g, b, l in launches:
        txt += f'; @launch kernel={n} grid=({g},1,1) block=({b},1,1) lds={l}\n'
    txt += '.amdgcn_target "amdgcn-amd-amdhsa--gfx950"\n.text\n'
    for g in gens:
        ks.append(g(a))
    txt += a.text()
    txt += '.section .rodata,"a"\n'
    for n, v, s, acc in ks:
        txt += kernel_desc(n, v, s, acc)
    open(out, 'w').write(txt)

if __name__ == '__main__':
    for arg in sys.argv[2:]:
        if arg == 'stamp': STAMP = True
        elif '=' in arg:
            k, v = arg.split('='); globals()[k] = int(v, 0)
    main(sys.argv[1] if len(sys.argv) > 1 else 'sequential_preLN__ssm_conv_h3__swiglu_ffn__prompt.s')
```

```python
import sys
sys.path.insert(0, 'dev')
from asmlib import *

MiB = 1 << 20
CS = 4224
CHB = 512 * CS
WS_XR0 = 0
WS_XR1 = CHB
WS_XT = 2 * CHB
WS_ST = 3 * CHB
WS_GF = 3 * CHB + 32768
WS_HT = 3 * CHB + 65536
WS_W1F = WS_HT + 2 * MiB
W1F_NT = 232 * 1024
PF_FILT = 1
PF_W1 = 0
PF_WD = 1
ROT1 = 0
ROT2 = 1
WS_WDF = WS_W1F + 16 * W1F_NT
WS_ACT = WS_WDF + 1792 * 1024
WS_END = WS_ACT + 7 * MiB
WS_DBG = 32 * MiB

HEADER = open('sequential_preLN__ssm_conv_h3__swiglu_ffn__prompt.s.ref').read().split('; Override launch')[0]

def srd(a, d, base, size, off=None, offreg=None):
    if off:
        a(f's_add_u32 s{d}, s{base}, {hex(off)}')
        a(f's_addc_u32 s{d+1}, s{base+1}, 0')
        if offreg is not None:
            a(f's_add_u32 s{d}, s{d}, s{offreg}')
            a(f's_addc_u32 s{d+1}, s{d+1}, 0')
    elif offreg is not None:
        a(f's_add_u32 s{d}, s{base}, s{offreg}')
        a(f's_addc_u32 s{d+1}, s{base+1}, 0')
    else:
        a(f's_mov_b32 s{d}, s{base}')
        a(f's_mov_b32 s{d+1}, s{base+1}')
    a(f's_mov_b32 s{d+2}, {hex(size)}')
    a(f's_mov_b32 s{d+3}, 0x20000')

STAMP = False
def stamp(a, i, vst):
    if not STAMP: return
    a('s_memtime s[98:99]')
    a('s_waitcnt lgkmcnt(0)')
    a(f'v_writelane_b32 v{vst}, s98, {i}')
def stamp_rt(a, i, vst):
    if not STAMP: return
    a('s_memrealtime s[98:99]')
    a('s_waitcnt lgkmcnt(0)')
    a(f'v_writelane_b32 v{vst}, s98, {i}')
def stamp_begin(a, vst):
    if not STAMP: return
    a(f'v_mov_b32 v{vst}, 0')
    stamp_rt(a, 15, vst)
    stamp(a, 0, vst)
def stamp_end(a, i, vst, kidx, tmp):
    if not STAMP: return
    a('s_mov_b64 exec, -1')
    a('s_waitcnt vmcnt(0)')
    stamp(a, i, vst)
    stamp_rt(a, 14, vst)
    a('s_load_dwordx2 s[96:97], s[0:1], 96')
    a('s_waitcnt lgkmcnt(0)')
    srd(a, 92, 96, 4 << 20, WS_DBG)
    a(f'v_lshrrev_b32 v{tmp}, 6, v0')
    a(f'v_lshlrev_b32 v{tmp}, 6, v{tmp}')
    a(f'v_and_b32 v{tmp+1}, 63, v0')
    a(f'v_lshl_add_u32 v{tmp}, v{tmp+1}, 2, v{tmp}')
    a('s_lshl_b32 s98, s2, 9')
    a(f's_add_u32 s98, s98, {kidx*262144}')
    a('s_mov_b32 exec_lo, 0xffff')
    a('s_mov_b32 exec_hi, 0')
    a(f'buffer_store_dword v{vst}, v{tmp}, s[92:95], s98 offen')

TLA = -1
TLB = -1
TLM = 4
_tl_idx = [0]
def tl_mark(a):
    if TLA < 0: return
    k = _tl_idx[0]; _tl_idx[0] += 1
    L = a.newlabel('tl')
    a('s_cmp_lg_u32 s2, 0')
    a(f's_cbranch_scc1 {L}')
    a('s_memrealtime s[98:99]')
    a('s_load_dwordx2 s[96:97], s[0:1], 96')
    a('s_waitcnt lgkmcnt(0)')
    srd(a, 92, 96, 4096, WS_DBG)
    a('v_mov_b32 v1, s98')
    a('v_mov_b32 v2, 0')
    a(f'buffer_store_dword v1, v2, s[92:95], 0 offen offset:{4*k}')
    a(f'{L}:')
def gen_tl(a):
    name = 'tl_kernel'
    a.raw(f'.globl {name}'); a.raw('.p2align 8'); a.raw(f'.type {name},@function'); a.raw(f'{name}:')
    a.flush_hist()
    a('s_cmp_lg_u32 s2, 0')
    a('s_cbranch_scc1 tl_end')
    a('s_memrealtime s[20:21]')
    a('s_load_dwordx2 s[4:5], s[0:1], 96')
    a('s_waitcnt lgkmcnt(0)')
    srd(a, 8, 4, 4096, WS_DBG)
    a('v_mov_b32 v2, 0')
    a('buffer_load_dwordx4 v[4:7], v2, s[8:11], 0 offen')
    a('v_mov_b32 v8, s20')
    a('s_waitcnt vmcnt(0)')
    a(f'v_sub_u32 v9, v{4+TLB}, v{4+TLA}')
    a('v_readfirstlane_b32 s22, v9')
    a('s_min_u32 s22, s22, 5000')
    a(f's_mul_i32 s22, s22, {TLM}')
    a('tl_spin:')
    a('s_memrealtime s[24:25]')
    a('s_waitcnt lgkmcnt(0)')
    a('s_sub_u32 s24, s24, s20')
    a('s_cmp_lt_u32 s24, s22')
    a('s_cbranch_scc1 tl_spin')
    a('tl_end:')
    a('s_endpgm')
    return name, 16, 32, None

def begin(a, name):
    a.raw(f'.globl {name}')
    a.raw('.p2align 8')
    a.raw(f'.type {name},@function')
    a.raw(f'{name}:')
    a.flush_hist()
    tl_mark(a)

def red32(a, v, t):
    a(f'v_add_f32_dpp v{v}, v{v}, v{v} quad_perm:[1,0,3,2] row_mask:0xf bank_mask:0xf')
    a(f'v_add_f32_dpp v{v}, v{v}, v{v} quad_perm:[2,3,0,1] row_mask:0xf bank_mask:0xf')
    a(f'v_add_f32_dpp v{v}, v{v}, v{v} row_half_mirror row_mask:0xf bank_mask:0xf')
    a(f'v_add_f32_dpp v{v}, v{v}, v{v} row_mirror row_mask:0xf bank_mask:0xf')
    a(f'v_mov_b32 v{t}, v{v}')
    a(f'v_permlane16_swap_b32 v{v}, v{t}')
    a(f'v_add_f32 v{v}, v{v}, v{t}')

def rne(a, d, s):
    a(f'v_cvt_pk_bf16_f32 v{d}, v{s}, v{s}')
    a(f'v_lshlrev_b32 v{d}, 16, v{d}')

def ln_sigma(a, var, rs):
    rne(a, var, var)
    a(f'v_add_f32 v{var}, 0x3727c5ac, v{var}')
    rne(a, var, var)
    a(f'v_sqrt_f32 v{var}, v{var}')
    rne(a, var, var)
    a(f'v_rcp_f32 v{rs}, v{var}')

def interleave(a, ms, fill, start=0):
    n = len(ms); k = 0
    for i, m in enumerate(ms):
        a(m)
        tgt = (len(fill) * (i + 1) + n - 1) // n
        while k < tgt:
            a(fill[k]); k += 1

P = lambda r: f'v[{r}:{r+1}]'
Q = lambda r: f'v[{r}:{r+3}]'

def gen_prep(a):
    name = 'prep_kernel'
    begin(a, name)
    VS = 39
    X, K, V, SH, O0, O1, ST = 16, 20, 24, 28, 32, 36, 40
    a('s_cmp_ge_u32 s2, 256')
    a('s_cbranch_scc1 prep_end')
    stamp_begin(a, VS)
    a('s_load_dwordx8 s[4:11], s[0:1], 0')
    a('s_load_dwordx2 s[12:13], s[0:1], 96')
    a('v_lshrrev_b32 v1, 8, v0')
    a('v_and_b32 v4, 31, v0')
    a('v_readfirstlane_b32 s53, v1')
    a('v_bfe_u32 v5, v0, 5, 3')
    a('s_and_b32 s14, s2, 7')
    a('s_lshr_b32 s15, s2, 3')
    a('s_lshl_b32 s44, s15, 16')
    a('s_lshl_b32 s45, s14, 7')
    a('s_add_u32 s44, s44, s45')
    a('v_lshlrev_b32 v2, 13, v5')
    a('v_lshl_add_u32 v2, v4, 2, v2')
    a('v_add_u32 v2, s44, v2')
    a('v_add_u32 v3, 0x1000, v2')
    a('s_mov_b32 s47, %d' % CS)
    a('s_mov_b32 s50, 0xffff0000')
    a('s_mul_i32 s45, s14, %d' % (64 * CS))
    a('s_lshl_b32 s46, s15, 7')
    a('v_mul_u32_u24 v8, %d, v4' % (2 * CS))
    a('s_cmp_eq_u32 s53, 0')
    a('s_cbranch_scc0 prep_x')
    a('v_subrev_u32 v1, 0x1000, v2')
    a('s_lshl_b32 s48, s14, 9')
    a('v_lshlrev_b32 v6, 4, v4')
    a('v_add_u32 v6, s48, v6')
    a('s_sub_u32 s45, s45, s46')
    a('s_add_u32 s45, s45, 4080')
    a('v_lshlrev_b32 v9, 4, v5')
    a('v_sub_u32 v8, v8, v9')
    a('v_add_u32 v8, s45, v8')
    a('s_waitcnt lgkmcnt(0)')
    stamp(a, 1, VS)
    srd(a, K, 6, 2 * MiB)
    KR, VR, SHR = 10, 22, 32
    for r in range(12):
        a(f'buffer_load_dword v{KR+r}, v{1+r//4}, s[{K}:{K+3}], 0 offen offset:{(r%4)*1024}')
    srd(a, SH, 10, 4096)
    a(f'buffer_load_dwordx4 {Q(SHR)}, v6, s[{SH}:{SH+3}], 0 offen')
    srd(a, V, 8, 2 * MiB)
    for r in range(9):
        rr = r + 3
        a(f'buffer_load_dword v{VR+r}, v{1+rr//4}, s[{V}:{V+3}], 0 offen offset:{(rr%4)*1024}')
    srd(a, O0, 12, CHB, WS_XR0)
    srd(a, O1, 12, CHB, WS_XR1)
    KF, WP, VF, KV = 40, 64, 72, 92
    stamp(a, 2, VS)
    a('s_waitcnt vmcnt(10)')
    stamp(a, 3, VS)
    for r in range(12):
        a(f'v_lshlrev_b32 v{KF+2*r}, 16, v{KR+r}')
        a(f'v_and_b32 v{KF+2*r+1}, s50, v{KR+r}')
    a('s_waitcnt vmcnt(9)')
    for j in range(4):
        for c in range(2):
            src = SHR + 2 * c + j // 2
            if j % 2 == 0:
                a(f'v_lshlrev_b32 v{WP+2*j+c}, 16, v{src}')
            else:
                a(f'v_and_b32 v{WP+2*j+c}, s50, v{src}')
    for i in range(9):
        d = KV + 2 * i
        a(f'v_pk_mul_f32 {P(d)}, {P(KF+2*i)}, {P(WP+6)}')
    for j in (2, 1, 0):
        for i in range(9):
            d = KV + 2 * i
            a(f'v_pk_fma_f32 {P(d)}, {P(KF+2*(i+3-j))}, {P(WP+2*j)}, {P(d)}')
    a('s_waitcnt vmcnt(0)')
    for r in range(9):
        a(f'v_lshlrev_b32 v{VF+2*r}, 16, v{VR+r}')
        a(f'v_and_b32 v{VF+2*r+1}, s50, v{VR+r}')
    for i in range(9):
        d = KV + 2 * i
        a(f'v_pk_mul_f32 {P(d)}, {P(d)}, {P(VF+2*i)}')
    O = 112
    kv = lambda row, c: KV + 2 * (row + 1) + c
    for c in range(2):
        for w in range(4):
            a(f'v_cvt_pk_bf16_f32 v{O+4*c+w}, v{kv(7-2*w,c)}, v{kv(6-2*w,c)}')
        a(f'buffer_store_dwordx4 {Q(O+4*c)}, v8, s[{O0}:{O0+3}], {"s47" if c else "0"} offen')
    for c in range(2):
        for w in range(4):
            a(f'v_cvt_pk_bf16_f32 v{O+8+4*c+w}, v{kv(6-2*w,c)}, v{kv(5-2*w,c)}')
        a(f'buffer_store_dwordx4 {Q(O+8+4*c)}, v8, s[{O1}:{O1+3}], {"s47" if c else "0"} offen')
    stamp(a, 4, VS)
    stamp_end(a, 5, VS, 0, 36)
    a('s_endpgm')
    a('prep_x:')
    a.flush_hist()
    a('s_lshl_b32 s48, s2, 13')
    a('v_lshlrev_b32 v7, 10, v5')
    a('v_lshl_add_u32 v7, v4, 4, v7')
    a('v_add_u32 v7, s48, v7')
    a('s_add_u32 s45, s45, s46')
    a('v_lshl_add_u32 v8, v5, 4, v8')
    a('v_add_u32 v8, s45, v8')
    a('s_lshl_b32 s46, s2, 5')
    a('v_lshlrev_b32 v9, 2, v5')
    a('v_add_u32 v9, s46, v9')
    a('s_mov_b32 s48, 0x2000')
    a('s_mov_b32 s51, 0x05040100')
    a('s_mov_b32 s52, 0x07060302')
    a('s_load_dwordx2 s[54:55], s[0:1], 32')
    a('s_load_dwordx2 s[56:57], s[0:1], 72')
    a('s_waitcnt lgkmcnt(0)')
    stamp(a, 1, VS)
    srd(a, X, 4, 2 * MiB)
    XR, XS = 10, 20
    a(f'buffer_load_dwordx4 {Q(XS)}, v7, s[{X}:{X+3}], 0 offen')
    a(f'buffer_load_dwordx4 {Q(XS+4)}, v7, s[{X}:{X+3}], 0 offen offset:512')
    for r in range(8):
        a(f'buffer_load_dword v{XR+r}, v{2 if r < 4 else 3}, s[{X}:{X+3}], 0 offen offset:{(r%4)*1024}')
    srd(a, O0, 12, CHB, WS_XT)
    srd(a, ST, 12, 65536, WS_ST)
    if PF_FILT:
        srd(a, K, 54, 2 * MiB)
        srd(a, V, 56, 1792 * 1024)
        a('s_lshl_b32 s58, s14, 5')
        a('s_add_u32 s58, s58, s15')
        a('s_lshl_b32 s58, s58, 13')
        a('s_mul_i32 s59, s2, 7168')
        a('v_and_b32 v30, 63, v0')
        a('v_lshlrev_b32 v30, 7, v30')
        a('v_readfirstlane_b32 s60, v0')
        a('s_cmp_eq_u32 s60, 256')
        a(f's_cselect_b32 s{K+2}, s{K+2}, 0')
        a('s_cmp_eq_u32 s60, 320')
        a(f's_cselect_b32 s{V+2}, s{V+2}, 0')
        a(f'buffer_load_dword v31, v30, s[{K}:{K+3}], s58 offen')
        a(f'buffer_load_dword v32, v30, s[{V}:{V+3}], s59 offen')
    stamp(a, 2, VS)
    a('s_waitcnt vmcnt(%d)' % (10 if PF_FILT else 8))
    stamp(a, 3, VS)
    E = 60
    for r in range(8):
        a(f'v_lshlrev_b32 v{E+2*r}, 16, v{XS+r}')
        a(f'v_and_b32 v{E+2*r+1}, s50, v{XS+r}')
    S = 80
    a(f'v_pk_add_f32 {P(S)}, {P(E)}, {P(E+2)}')
    a(f'v_pk_add_f32 {P(S+2)}, {P(E+4)}, {P(E+6)}')
    a(f'v_pk_add_f32 {P(S+4)}, {P(E+8)}, {P(E+10)}')
    a(f'v_pk_add_f32 {P(S+6)}, {P(E+12)}, {P(E+14)}')
    a(f'v_pk_add_f32 {P(S)}, {P(S)}, {P(S+2)}')
    a(f'v_pk_add_f32 {P(S+4)}, {P(S+4)}, {P(S+6)}')
    a(f'v_pk_add_f32 {P(S)}, {P(S)}, {P(S+4)}')
    a(f'v_add_f32 v{S}, v{S}, v{S+1}')
    red32(a, S, S + 1)
    a(f'v_mul_f32 v{S}, 0xbb000000, v{S}')
    a(f'v_mov_b32 v{S+1}, v{S}')
    a('s_waitcnt vmcnt(%d)' % (2 if PF_FILT else 0))
    O2 = 100
    for c in range(2):
        for w in range(4):
            a(f'v_perm_b32 v{O2+4*c+w}, v{XR+2*w+1}, v{XR+2*w}, s{51+c}')
        a(f'buffer_store_dwordx4 {Q(O2+4*c)}, v8, s[{O0}:{O0+3}], {"s47" if c else "0"} offen')
    for r in range(8):
        a(f'v_pk_add_f32 {P(E+2*r)}, {P(E+2*r)}, {P(S)}')
    a(f'v_pk_mul_f32 {P(S+2)}, {P(E)}, {P(E)}')
    a(f'v_pk_mul_f32 {P(S+4)}, {P(E+2)}, {P(E+2)}')
    for r in range(2, 8):
        d = S + 2 + 2 * (r & 1)
        a(f'v_pk_fma_f32 {P(d)}, {P(E+2*r)}, {P(E+2*r)}, {P(d)}')
    a(f'v_pk_add_f32 {P(S+2)}, {P(S+2)}, {P(S+4)}')
    a(f'v_add_f32 v{S+2}, v{S+2}, v{S+3}')
    red32(a, S + 2, S + 3)
    a(f'v_mul_f32 v{S+2}, 0x3b000000, v{S+2}')
    rne(a, S, S)
    ln_sigma(a, S + 2, S + 4)
    a(f'v_mul_f32 v{S+5}, v{S}, v{S+4}')
    a('v_mov_b32 v33, 0')
    a('v_lshrrev_b32 v34, 1, v9')
    a('s_mov_b32 s61, 0x8000')
    a('s_mov_b32 exec_lo, 1')
    a('s_mov_b32 exec_hi, 1')
    a(f'buffer_store_short v33, v34, s[{ST}:{ST+3}], s61 offen')
    a(f'buffer_store_dword v{S+4}, v9, s[{ST}:{ST+3}], 0 offen')
    a(f'buffer_store_dword v{S+5}, v9, s[{ST}:{ST+3}], s48 offen')
    stamp(a, 4, VS)
    stamp_end(a, 5, VS, 0, 36)
    a('prep_end:')
    a('s_endpgm')
    return name, 128, 102, None

CV_XC = 0
CV_E = 2 * 4 * 4640
CV_RED = CV_E + 2 * 8448
CV_LDS = CV_RED + 16384
FM_W1 = 0
FM_WD = 16384
NFMT = 224

def gen_conv(a):
    name = 'conv_kernel'
    begin(a, name)
    VS = 230
    H, XRS, XT, HT, ST = 20, 24, 28, 32, 36
    a('s_cmp_ge_u32 s2, 256')
    a('s_cbranch_scc1 fmt_begin')
    stamp_begin(a, VS)
    a('s_load_dwordx4 s[4:7], s[0:1], 32')
    a('s_load_dwordx2 s[14:15], s[0:1], 96')
    a('v_lshrrev_b32 v1, 6, v0')
    a('v_and_b32 v2, 63, v0')
    a('v_readfirstlane_b32 s60, v1')
    a('s_and_b32 s16, s2, 7')
    a('s_lshr_b32 s17, s2, 3')
    a('s_lshl_b32 s16, s16, 5')
    a('s_add_u32 s16, s16, s17')
    a('s_lshr_b32 s61, s60, 1')
    a('s_and_b32 s62, s60, 1')
    a('s_lshl_b32 s63, s16, 1')
    a('s_add_u32 s63, s63, s61')
    a('s_lshl_b32 s64, s63, 12')
    a('s_lshl_b32 s65, s16, 2')
    a('v_lshlrev_b32 v5, 3, v2')
    a('v_lshlrev_b32 v6, 4, v2')
    a('s_mul_i32 s66, s61, 8448')
    a('s_add_u32 s66, s66, %d' % CV_E)
    a('s_mul_i32 s70, s61, 18560')
    a('s_mul_i32 s71, s62, 4640')
    a('s_add_u32 s71, s71, s70')
    a('s_xor_b32 s72, s62, 1')
    a('s_mul_i32 s72, s72, %d' % CHB)
    a('s_mul_i32 s73, s63, %d' % CS)
    a('s_add_u32 s72, s72, s73')
    a('s_lshl_b32 s69, s62, 11')
    a('s_lshl_b32 s75, s62, 12')
    a('v_lshrrev_b32 v7, 2, v2')
    a('v_and_b32 v8, 3, v2')
    a('v_lshlrev_b32 v7, 3, v7')
    a('v_lshl_add_u32 v7, v8, 2, v7')
    a('v_add_u32 v7, 0xffffff80, v7')
    a('s_mov_b32 m0, s71')
    a('s_waitcnt lgkmcnt(0)')
    stamp(a, 1, VS)
    srd(a, XRS, 14, 4096, offreg=72)
    for i in range(4):
        a(f'buffer_load_dwordx4 v6, s[{XRS}:{XRS+3}], 4 offen offset:{1024*i} lds')
    a('s_add_u32 m0, m0, 9280')
    srd(a, H, 4, 4096, offreg=64)
    for i in range(4):
        a(f'buffer_load_dwordx4 v6, s[{XRS}:{XRS+3}], 0 offen offset:{1024*i} lds')
    a('s_add_u32 s68, s66, s75')
    a('s_add_u32 m0, s68, 256')
    a('s_load_dword s67, s[6:7], s65')
    for i in range(4):
        a(f'buffer_load_dwordx4 v5, s[{H}:{H+3}], s69 offen offset:{512*i} lds')
        a('s_add_u32 m0, m0, 512' if i < 3 else 's_mov_b32 m0, s66')
    a(f'buffer_load_dword v7, s[{H}:{H+3}], 0 offen lds')
    srd(a, XT, 14, 4096, WS_XT, offreg=73)
    srd(a, ST, 14, 16384, WS_ST)
    a('s_add_u32 s76, s75, 8192')
    XV, RS, MR = 16, 24, 40
    for t in range(4):
        a(f'buffer_load_dwordx2 {P(XV+2*t)}, v5, s[{XT}:{XT+3}], s69 offen offset:{512*t}')
        a(f'buffer_load_dwordx4 {Q(RS+4*t)}, v6, s[{ST}:{ST+3}], s75 offen offset:{1024*t}')
        a(f'buffer_load_dwordx4 {Q(MR+4*t)}, v6, s[{ST}:{ST+3}], s76 offen offset:{1024*t}')
    srd(a, HT, 14, 2 * MiB, WS_HT)
    a('v_and_b32 v12, 31, v2')
    a('v_lshlrev_b32 v12, 3, v12')
    a('s_and_b32 s74, s63, 3')
    a('s_lshl_b32 s74, s74, 6')
    a('v_xor_b32 v12, s74, v12')
    a('v_lshrrev_b32 v13, 5, v2')
    a('v_lshl_add_u32 v12, v13, 17, v12')
    a('s_lshl_b32 s74, s62, 20')
    a('s_lshl_b32 s79, s63, 8')
    a('s_add_u32 s74, s74, s79')
    if PF_W1:
        srd(a, 40, 14, 16 * W1F_NT, WS_W1F)
        a('s_bfe_u32 s77, s2, 0x20001')
        a('s_mul_i32 s77, s77, %d' % (4 * W1F_NT))
        a('s_mul_i32 s78, s17, %d' % (29 * 1024))
        a('s_add_u32 s77, s77, s78')
        a('v_min_u32 v226, 231, v0')
        a('v_lshlrev_b32 v226, 7, v226')
        a('buffer_load_dword v227, v226, s[40:43], s77 offen')
    a('v_mov_b32 v60, 0')
    a('v_mov_b32 v61, 0')
    a('v_add_u32 v62, s71, v5')
    a('ds_write_b64 v62, v[60:61] offset:4096')
    a('ds_write_b64 v62, v[60:61] offset:%d' % (4096 + 9280))
    XA, HA = 224, 225
    a('v_and_b32 v3, 15, v2')
    a('v_lshrrev_b32 v4, 4, v2')
    a('v_lshrrev_b32 v9, 2, v3')
    a('v_mul_u32_u24 v10, 4640, v8')
    a('v_lshlrev_b32 v9, 3, v9')
    a('v_sub_u32 v9, v4, v9')
    a('v_add_u32 v9, 24, v9')
    a(f'v_lshl_add_u32 v{XA}, v9, 4, v10')
    a('s_lshl_b32 s88, s62, 8')
    a('s_add_u32 s88, s88, s70')
    a(f'v_add_u32 v{XA}, s88, v{XA}')
    a(f'v_lshl_add_u32 v{HA}, v4, 1, v3')
    a(f'v_lshlrev_b32 v{HA}, 4, v{HA}')
    a('s_lshl_b32 s89, s62, 9')
    a('s_add_u32 s89, s89, s66')
    a('s_add_u32 s89, s89, 16')
    a(f'v_add_u32 v{HA}, s89, v{HA}')
    a('s_sub_u32 s89, s70, s69')
    a('s_add_u32 s89, s89, %d' % (3 * 4640 + 4088 - 1536))
    a('v_sub_u32 v11, s89, v5')
    a('s_lshl_b32 s90, s60, 12')
    a('s_add_u32 s91, s90, %d' % CV_RED)
    a('s_xor_b32 s90, s90, 0x1000')
    a('s_add_u32 s90, s90, %d' % CV_RED)
    a('v_add_u32 v62, s91, v6')
    a('v_add_u32 v63, s90, v6')
    a('s_mov_b32 s92, 0xffff0000')
    stamp(a, 2, VS)
    a('s_waitcnt vmcnt(%d) lgkmcnt(0)' % (13 if PF_W1 else 12))
    a('s_barrier')
    stamp(a, 3, VS)
    FH = [64, 128]; FX = [96, 160]; ACC = 192
    def rdH(s, ri, aa): return f'ds_read_b128 {Q(FH[s]+4*aa)}, v{HA} offset:{128*(8*aa+ri)}'
    def rdX(s, ri, bb): return f'ds_read_b128 {Q(FX[s]+4*bb)}, v{XA} offset:{64*(56-8*bb+ri)}'
    inited = [False] * 8
    def mf(s, aa, bb):
        nb = aa + bb
        c = Q(ACC + 4 * nb)
        src = c if inited[nb] else '0'
        inited[nb] = True
        return f'v_mfma_f32_16x16x32_bf16 {c}, {Q(FX[s]+4*bb)}, {Q(FH[s]+4*aa)}, {src}'
    pairs = sorted([(aa, bb) for aa in range(8) for bb in range(8) if aa + bb <= 7], key=lambda p: (max(p), p))
    queue = []
    def issue(txt, tag):
        a(txt); queue.append(tag)
    def need(tags):
        idx = max(queue.index(t) for t in tags)
        n = len(queue) - 1 - idx
        return n
    lastwait = [99, 0]
    done = [0]
    def wait_for(tags):
        idx = max(queue.index(t) for t in tags) + 1
        if idx > done[0]:
            n = len(queue) - idx
            a(f's_waitcnt lgkmcnt({min(n, 15)})')
            done[0] = len(queue) - min(n, 15)
    todo = []
    for ri in range(4):
        for x in range(8):
            todo.append((rdH(ri & 1, ri, x), ('H', ri, x)))
            todo.append((rdX(ri & 1, ri, x), ('X', ri, x)))
    for _ in range(12):
        issue(*todo.pop(0))
    for ri in range(4):
        s = ri & 1
        for n, (aa, bb) in enumerate(pairs):
            wait_for([('H', ri, aa), ('X', ri, bb)])
            a(mf(s, aa, bb))
            if todo and todo[0][1][1] <= ri + 1 and (n % 2 == 0 or todo[0][1][1] == ri):
                issue(*todo.pop(0))
    stamp(a, 4, VS)
    KVR = 56
    a('s_lshl_b32 s90, s61, 4')
    a('s_lshr_b32 s67, s67, s90')
    a('s_lshl_b32 s67, s67, 16')
    a('s_cmp_eq_u32 s62, 0')
    a('s_cbranch_scc0 conv_h1')
    for t in range(4):
        a(f'ds_write_b128 v62, {Q(ACC+16+4*t)} offset:{1024*t}')
    a('s_branch conv_join')
    a('conv_h1:')
    a('s_nop 4')
    for t in range(4):
        a(f'ds_write_b128 v62, {Q(ACC+4*t)} offset:{1024*t}')
    a('s_waitcnt lgkmcnt(0)')
    for r in range(16):
        a(f'v_mov_b32 v{ACC+r}, v{ACC+16+r}')
    a('conv_join:')
    for t in range(4):
        a(f'ds_read_b64 {P(96+2*t)}, v11 offset:{512*(3-t)}')
    a('s_waitcnt vmcnt(0)')
    XF = 112
    for t in range(4):
        a(f'v_lshlrev_b32 v{XF+4*t}, 16, v{XV+2*t}')
        a(f'v_and_b32 v{XF+4*t+1}, s92, v{XV+2*t}')
        a(f'v_lshlrev_b32 v{XF+4*t+2}, 16, v{XV+2*t+1}')
        a(f'v_and_b32 v{XF+4*t+3}, s92, v{XV+2*t+1}')
    a('s_waitcnt lgkmcnt(0)')
    a('s_barrier')
    stamp(a, 5, VS)
    PR = 64
    for t in range(4):
        a(f'ds_read_b128 {Q(PR+4*t)}, v63 offset:{1024*t}')
    for r in range(16):
        a(f'v_fma_f32 v{RS+r}, v{XF+r}, v{RS+r}, v{MR+r}')
    for t in range(4):
        a(f'v_and_b32 v{MR+4*t}, s92, v{97+2*t}')
        a(f'v_lshlrev_b32 v{MR+4*t+1}, 16, v{97+2*t}')
        a(f'v_and_b32 v{MR+4*t+2}, s92, v{96+2*t}')
        a(f'v_lshlrev_b32 v{MR+4*t+3}, 16, v{96+2*t}')
    for r in range(16):
        a(f'v_fmac_f32 v{ACC+r}, s67, v{MR+r}')
    for t in range(4):
        a(f's_waitcnt lgkmcnt({3-t})')
        for r in range(4):
            a(f'v_add_f32 v{ACC+4*t+r}, v{ACC+4*t+r}, v{PR+4*t+r}')
        for r in range(4):
            a(f'v_fmac_f32 v{XF+4*t+r}, v{RS+4*t+r}, v{ACC+4*t+r}')
        a(f'v_cvt_pk_bf16_f32 v{88+2*t}, v{XF+4*t}, v{XF+4*t+1}')
        a(f'v_cvt_pk_bf16_f32 v{89+2*t}, v{XF+4*t+2}, v{XF+4*t+3}')
        a(f'buffer_store_dwordx2 {P(88+2*t)}, v12, s[{HT}:{HT+3}], s74 offen')
        if t < 3: a('s_add_u32 s74, s74, 0x40000')
    stamp(a, 6, VS)
    stamp_end(a, 7, VS, 1, 228)
    a('s_endpgm')

    WG, WU, WD, W1F, WDF = 20, 24, 28, 32, 36
    a('fmt_begin:')
    a.flush_hist()
    a('s_cmp_ge_u32 s2, %d' % (256 + NFMT))
    a('s_cbranch_scc1 conv_end')
    stamp_begin(a, VS)
    a('s_load_dwordx4 s[8:11], s[0:1], 56')
    a('s_load_dwordx2 s[12:13], s[0:1], 72')
    a('s_load_dwordx2 s[14:15], s[0:1], 96')
    a('v_lshrrev_b32 v1, 6, v0')
    a('v_and_b32 v2, 63, v0')
    a('v_readfirstlane_b32 s60, v1')
    a('s_sub_u32 s77, s2, 256')
    a('s_mul_hi_u32 s78, s77, %d' % (2**32 // 28 + 1))
    a('s_mul_i32 s79, s78, 28')
    a('s_sub_u32 s79, s77, s79')
    a('v_and_b32 v7, 7, v2')
    a('v_lshrrev_b32 v13, 3, v2')
    a('v_mul_u32_u24 v13, 3584, v13')
    a('v_lshl_add_u32 v13, v7, 4, v13')
    a('s_lshl_b32 s80, s78, 6')
    a('s_lshl_b32 s81, s60, 4')
    a('s_add_u32 s80, s80, s81')
    a('s_mul_i32 s80, s80, 3584')
    a('s_lshl_b32 s81, s79, 7')
    a('s_add_u32 s80, s80, s81')
    a('s_add_u32 s81, s80, %d' % (8 * 3584))
    a('s_lshl_b32 s82, s60, 11')
    a('v_lshrrev_b32 v14, 5, v2')
    a('v_lshlrev_b32 v14, 10, v14')
    a('v_and_b32 v15, 31, v2')
    a('v_lshl_add_u32 v14, v15, 4, v14')
    a('s_lshr_b32 s84, s77, 1')
    a('s_and_b32 s85, s77, 1')
    a('s_lshl_b32 s86, s84, 14')
    a('s_lshl_b32 s87, s85, 9')
    a('s_add_u32 s86, s86, s87')
    a('s_lshl_b32 s87, s60, 12')
    a('s_add_u32 s86, s86, s87')
    a('s_add_u32 s87, s86, 2048')
    a('s_add_u32 m0, s82, %d' % FM_W1)
    a('s_waitcnt lgkmcnt(0)')
    srd(a, WG, 8, 512 * 3584)
    a(f'buffer_load_dwordx4 v13, s[{WG}:{WG+3}], s80 offen lds')
    a('s_add_u32 m0, m0, 1024')
    srd(a, WU, 10, 512 * 3584)
    a(f'buffer_load_dwordx4 v13, s[{WG}:{WG+3}], s81 offen lds')
    a('s_add_u32 m0, m0, %d' % (8192 - 1024))
    a(f'buffer_load_dwordx4 v13, s[{WU}:{WU+3}], s80 offen lds')
    a('s_add_u32 m0, m0, 1024')
    srd(a, WD, 12, 1792 * 1024)
    a(f'buffer_load_dwordx4 v13, s[{WU}:{WU+3}], s81 offen lds')
    a('s_add_u32 m0, s82, %d' % FM_WD)
    a(f'buffer_load_dwordx4 v14, s[{WD}:{WD+3}], s86 offen lds')
    a('s_add_u32 m0, m0, 1024')
    a(f'buffer_load_dwordx4 v14, s[{WD}:{WD+3}], s87 offen lds')
    srd(a, W1F, 14, 16 * W1F_NT, WS_W1F)
    srd(a, WDF, 14, 1792 * 1024, WS_WDF)
    a('v_and_b32 v3, 15, v2')
    a('v_lshrrev_b32 v4, 4, v2')
    a('v_lshlrev_b32 v6, 4, v2')
    a('v_lshrrev_b32 v20, 2, v3')
    a('v_and_b32 v21, 3, v3')
    a('v_lshrrev_b32 v22, 1, v4')
    a('v_and_b32 v23, 1, v4')
    a('v_lshl_add_u32 v24, v22, 3, v20')
    a('v_lshlrev_b32 v24, 7, v24')
    a('v_lshl_add_u32 v24, v23, 13, v24')
    a('v_lshl_add_u32 v24, v21, 3, v24')
    a('s_lshl_b32 s90, s60, 5')
    a('v_add_u32 v24, s90, v24')
    a('v_lshl_add_u32 v25, v22, 2, v20')
    a('v_lshlrev_b32 v25, 9, v25')
    a('v_lshl_add_u32 v25, v23, 5, v25')
    a('v_lshl_add_u32 v25, v21, 3, v25')
    a('s_lshl_b32 s90, s60, 7')
    a('v_add_u32 v25, s90, v25')
    a('s_lshl_b32 s90, s79, 2')
    a('s_add_u32 s90, s90, s60')
    a('s_mul_hi_u32 s91, s90, %d' % (2**32 // 7 + 1))
    a('s_mul_i32 s93, s91, 7')
    a('s_sub_u32 s93, s90, s93')
    a('s_mul_i32 s91, s91, %d' % W1F_NT)
    a('s_lshl_b32 s40, s93, 10')
    a('s_add_u32 s91, s91, s40')
    a('s_mul_i32 s43, s78, %d' % (4 * 7168))
    a('s_add_u32 s43, s43, s91')
    a('s_movk_i32 s42, 7168')
    a('s_lshr_b32 s95, s78, 2')
    a('s_lshl_b32 s95, s95, 9')
    a('s_and_b32 s44, s78, 3')
    a('s_lshl_b32 s44, s44, 2')
    a('s_add_u32 s95, s95, s44')
    a('s_add_u32 s95, s95, s91')
    a('s_add_u32 s95, s95, %d' % (32 * 7168))
    a('s_lshl_b32 s94, s85, 2')
    a('s_add_u32 s94, s94, s60')
    a('s_mul_i32 s94, s94, 112')
    a('s_add_u32 s94, s94, s84')
    a('s_lshl_b32 s94, s94, 11')
    a('v_mov_b32 v30, 0')
    a('v_mov_b32 v31, 0')
    a('s_mov_b32 s45, 0x3f803f80')
    stamp(a, 1, VS)
    a('s_waitcnt vmcnt(0)')
    a('s_barrier')
    stamp(a, 2, VS)
    FF, FD = 32, 48
    for ks in range(4):
        a(f'ds_read_b64_tr_b16 {P(FF+4*ks)}, v24 offset:{FM_W1+2048*ks}')
        a(f'ds_read_b64_tr_b16 {P(FF+4*ks+2)}, v24 offset:{FM_W1+2048*ks+512}')
    for x in range(2):
        a(f'ds_read_b64_tr_b16 {P(FD+4*x)}, v25 offset:{FM_WD+64*x}')
        a(f'ds_read_b64_tr_b16 {P(FD+4*x+2)}, v25 offset:{FM_WD+64*x+4096}')
    for ks in range(4):
        a(f's_waitcnt lgkmcnt({10-2*ks})')
        a(f'buffer_store_dwordx4 {Q(FF+4*ks)}, v6, s[{W1F}:{W1F+3}], s43 offen')
        a('s_add_u32 s43, s43, s42')
        for w in range(4):
            a(f'v_dot2c_f32_bf16 v{30+(w&1)}, s45, v{FF+4*ks+w}')
    a('s_waitcnt lgkmcnt(0)')
    a(f'buffer_store_dwordx4 {Q(FD)}, v6, s[{WDF}:{WDF+3}], s94 offen')
    a(f'buffer_store_dwordx4 {Q(FD+4)}, v6, s[{WDF}:{WDF+3}], s94 offen offset:1024')
    a('s_nop 2')
    a('v_add_f32 v30, v30, v31')
    a('v_mov_b32 v31, v30')
    a('v_permlane32_swap_b32 v30, v31')
    a('v_add_f32 v30, v30, v31')
    rne(a, 31, 30)
    a('v_sub_f32 v30, v30, v31')
    a('v_cvt_pk_bf16_f32 v30, v31, v30')
    a('s_mov_b32 exec_hi, 0')
    a(f'buffer_store_dword v30, v6, s[{W1F}:{W1F+3}], s95 offen')
    stamp(a, 3, VS)
    stamp_end(a, 4, VS, 1, 228)
    a('conv_end:')
    a('s_endpgm')
    return name, 232, 102, None

G1_SLOT = 22528
G1_NS = 7
G1_RING = G1_SLOT * G1_NS
FF_FLG = G1_RING
FF_LDS = FF_FLG + 512
FF_WD = 3 * G1_SLOT
FF_WD2 = 5 * G1_SLOT
FF_H = FF_WD + 40960
FF_RED = 0
BARS = {2: 5, 4: 7, 6: 9, 8: 11, 10: 13, 14: 18}
RK = 18
LK = 10
SC = ' sc1'
NOSTAT = 0
BAR14 = 4
PACE = 0
XPRIO = 0
NOBAR = 0
NODMA = 0

def epi_tile(g, T, C1, IR2):
    u = g + 8
    L = []
    for e in range(0, 8, 2): L.append(f'v_pk_mul_f32 {P(T+e)}, {P(g+e)}, {P(C1)}')
    for e in range(8): L.append(f'v_exp_f32 v{T+e}, v{T+e}')
    for e in range(0, 8, 2): L.append(f'v_pk_mul_f32 {P(g+e)}, {P(g+e)}, {P(u+e)}')
    for e in range(0, 8, 2): L.append(f'v_pk_fma_f32 {P(T+e)}, {P(T+e)}, {P(IR2)}, {P(IR2)}')
    for e in range(8): L.append(f'v_rcp_f32 v{T+e}, v{T+e}')
    for e in range(0, 8, 2): L.append(f'v_pk_mul_f32 {P(g+e)}, {P(g+e)}, {P(T+e)}')
    for w in range(4): L.append(f'v_cvt_pk_bf16_f32 v{T+8+w}, v{g+2*w}, v{g+2*w+1}')
    return L

def gen_ffn(a):
    name = 'ffn_kernel'
    begin(a, name)
    W1F, HT, WS, OUT = 8, 12, 16, 40
    a('s_cmp_ge_u32 s2, 256')
    a('s_cbranch_scc1 ff_end')
    a('s_load_dwordx2 s[4:5], s[0:1], 96')
    a('s_load_dwordx2 s[6:7], s[0:1], 80')
    a('v_lshrrev_b32 v1, 6, v0')
    a('v_and_b32 v2, 63, v0')
    a('v_readfirstlane_b32 s46, v1')
    a('s_and_b32 s21, s2, 1')
    a('s_lshl_b32 s21, s21, 3')
    a('s_bfe_u32 s27, s2, 0x30003')
    a('s_add_u32 s21, s21, s27')
    a('s_bfe_u32 s22, s2, 0x20001')
    a('s_lshl_b32 s22, s22, 2')
    a('s_lshr_b32 s23, s2, 6')
    a('s_add_u32 s22, s22, s23')
    a('s_and_b32 s20, s46, 3')
    a('v_lshlrev_b32 v3, 4, v2')
    a('s_cmp_ge_u32 s46, 4')
    a('s_cbranch_scc1 ff_ld')
    VS = 250
    stamp_begin(a, VS)
    a('v_lshlrev_b32 v9, 1, v0')
    a('v_add_u32 v9, %d, v9' % FF_FLG)
    a('v_mov_b32 v8, -1')
    a('ds_write_b16 v9, v8')
    a('v_lshrrev_b32 v5, 4, v2')
    a('v_and_b32 v6, 15, v2')
    a('v_lshrrev_b32 v12, 2, v6')
    a('v_and_b32 v13, 3, v6')
    a('s_waitcnt lgkmcnt(0)')
    a('s_barrier')
    a('v_lshrrev_b32 v14, 1, v5')
    a('v_and_b32 v15, 1, v5')
    a('v_lshl_add_u32 v11, v14, 3, v12')
    a('v_lshlrev_b32 v11, 8, v11')
    a('v_xor_b32 v12, s20, v12')
    a('v_lshl_add_u32 v11, v12, 6, v11')
    a('v_lshl_add_u32 v11, v15, 5, v11')
    a('v_lshl_add_u32 v11, v13, 3, v11')
    a('v_add_u32 v11, 14336, v11')
    a('v_mov_b32 v10, v3')
    a('v_lshlrev_b32 v8, 2, v13')
    a('v_add_u32 v8, %d, v8' % FF_FLG)
    a('s_lshl_b32 s37, s21, 2')
    a('s_add_u32 s37, s37, s20')
    a('s_mul_i32 s37, s37, 112')
    a('s_mul_i32 s38, s22, 7')
    a('s_add_u32 s37, s37, s38')
    a('s_lshl_b32 s37, s37, 10')
    a('s_add_u32 s37, s37, %d' % WS_ACT)
    a('s_lshl_b32 s38, s21, 1')
    a('s_lshr_b32 s39, s20, 1')
    a('s_add_u32 s38, s38, s39')
    a('s_lshl_b32 s38, s38, 7')
    a('s_lshl_b32 s39, s22, 3')
    a('s_add_u32 s38, s38, s39')
    a('s_and_b32 s39, s20, 1')
    a('s_lshl_b32 s39, s39, 2')
    a('s_add_u32 s38, s38, s39')
    a('s_add_u32 s38, s38, %d' % WS_GF)
    WF = [32, 60]; HF = [88, 92, 216, 220]; ACC = 96
    S1, S2, PV = 16, 18, 24
    for r in range(112):
        a(f'v_mov_b32 v{ACC+r}, 0')
    for r in range(4):
        a(f'v_mov_b32 v{S1+r}, 0')
    a('s_mov_b32 s34, 0xffff0000')
    a('s_mov_b32 s35, %d' % G1_SLOT)
    a('s_mov_b32 s33, 0')
    a('s_mov_b32 s32, %d' % sum(1 << k for k in BARS))
    a('s_mov_b32 s30, %d' % (-(G1_RING - G1_SLOT) & 0xffffffff))
    a('s_mov_b32 s31, %d' % G1_SLOT)
    srd(a, WS, 4, WS_END)
    def rdW(s, f): return f'ds_read_b128 {Q(WF[s]+4*f)}, v10 offset:{7168*s+1024*f}'
    def rdH(h, s): return [f'ds_read_b64_tr_b16 {P(h)}, v11 offset:{4096*s}', f'ds_read_b64_tr_b16 {P(h+2)}, v11 offset:{4096*s+1024}']
    def stats(h):
        U = []; A = []
        for w in range(4):
            t = 208 + 2 * w
            U.append([f'v_lshlrev_b32 v{t}, 16, v{h+w}', f'v_and_b32 v{t+1}, s34, v{h+w}'])
            A.append([f'v_add_f32 v{S1}, v{S1}, v{t}', f'v_fmac_f32 v{S2}, v{t}, v{t}', f'v_add_f32 v{S1+1}, v{S1+1}, v{t+1}', f'v_fmac_f32 v{S2+1}, v{t+1}, v{t+1}'])
        return U[0] + U[1] + A[0] + U[2] + A[1] + U[3] + A[2] + A[3]
    def mfma(s, f, h=None):
        h = HF[s] if h is None else h
        return f'v_mfma_f32_32x32x16_bf16 v[{ACC+16*f}:{ACC+16*f+15}], {Q(WF[s]+4*f)}, {Q(h)}, v[{ACC+16*f}:{ACC+16*f+15}]'
    stamp(a, 1, VS)
    if XPRIO: a(f's_setprio {XPRIO}')
    a('s_mov_b32 s44, 0')
    a('ff_x0:')
    a(f'ds_read_b32 v{PV}, v8')
    a('s_add_u32 s44, s44, 1')
    a('s_cmp_gt_u32 s44, 0x100000')
    a('s_cbranch_scc1 ff_x1')
    a('s_waitcnt lgkmcnt(0)')
    a(f'v_cmp_ne_u32 vcc, 0, v{PV}')
    a('s_cbranch_vccnz ff_x0')
    a('ff_x1:')
    stamp(a, 2, VS)
    for x in rdH(HF[0], 0): a(x)
    for f in range(7): a(rdW(0, f))
    a(f'ds_read_b32 v{PV}, v8 offset:16')
    for x in rdH(HF[1], 1): a(x)
    for f in range(7): a(rdW(1, f))
    a('v_add_u32 v10, %d, v10' % G1_SLOT)
    a('v_add_u32 v11, %d, v11' % G1_SLOT)
    a('s_branch ff_loop')
    a('ff_loopb:')
    a('s_barrier')
    a('ff_loop:')
    for ks in range(4):
        s = ks & 1; h = HF[ks]; hn = HF[(ks + 2) % 4]; st2 = ks // 2
        S = stats(h) if not NOSTAT else []
        ex = [[] for _ in range(7)]
        rh = rdH(hn, s)
        if s == 0:
            ex[0] = [f'v_cmp_ne_u32 vcc, 0, v{PV}', f's_cbranch_vccnz ff_xspin{st2}\nff_xgo{st2}:']
            ex[1] = [rh[0]]; ex[2] = [rh[1]]
            ex[3] = ['s_add_u32 s35, s35, %d' % G1_SLOT]; ex[4] = ['s_cmp_eq_u32 s35, %d' % G1_RING]; ex[5] = ['s_cselect_b32 s36, s30, s31']
        else:
            ex[0] = [f'ds_read_b32 v{PV}, v8 offset:{32+16*st2}']
            ex[1] = [rh[0]]; ex[2] = [rh[1], 's_cselect_b32 s35, 0, s35']
            ex[3] = ['v_add_u32 v11, s36, v11']
            if ks == 3:
                ex[4] = ['s_add_u32 s33, s33, 2', 'v_add_u32 v8, 32, v8']; ex[5] = ['s_bitcmp1_b32 s32, s33']
            ex[6] = ['v_add_u32 v10, s36, v10']
        tot = [1 + len(e) for e in ex]; tot[6] += 1 + (2 if ks == 3 else 0)
        cnts = [0] * 7
        for _ in range(len(S)):
            i = min(range(7), key=lambda j: (tot[j] + cnts[j], j)); cnts[i] += 1
        k = 0
        a('s_waitcnt lgkmcnt(9)')
        for f in range(7):
            a(mfma(s, f, h))
            for x in (ex[f] + [rdW(s, f)] if f == 0 else [rdW(s, f)] + ex[f]): a(x)
            for x in S[k:k+cnts[f]]: a(x)
            k += cnts[f]
    a('s_cbranch_scc1 ff_loopb')
    a('s_cmp_lt_u32 s33, 16')
    a('s_cbranch_scc1 ff_loop')
    stamp(a, 3, VS)
    if STAMP: a(f'v_writelane_b32 v{VS}, s44, 13')
    a(f'v_add_f32 v{S1}, v{S1}, v{S1+1}')
    a(f'v_add_f32 v{S2}, v{S2}, v{S2+1}')
    a(f'v_mov_b32 v{S1+1}, v{S1}')
    a(f'v_mov_b32 v{S2+1}, v{S2}')
    a(f'v_permlane32_swap_b32 v{S1}, v{S1+1}')
    a(f'v_permlane32_swap_b32 v{S2}, v{S2+1}')
    a(f'v_add_f32 v{S1}, v{S1}, v{S1+1}')
    a(f'v_add_f32 v{S2}, v{S2}, v{S2+1}')
    a(f'v_mul_f32 v{S1}, 0xbb000000, v{S1}')
    a(f'v_mul_f32 v{S2}, 0x3b000000, v{S2}')
    a('s_waitcnt lgkmcnt(0)')
    for w in range(4):
        a(f'v_cvt_pk_bf16_f32 v{HF[0]+w}, v{S1}, v{S1}')
    a(f'v_fma_f32 v{S2}, -v{S1}, v{S1}, v{S2}')
    a(f'v_max_f32 v{S2}, 0, v{S2}')
    C1, IR2 = 24, 26
    b = Asm()
    ln_sigma(b, S2, C1)
    b(f'v_mul_f32 v{IR2}, v{S2}, v{S2}')
    b(f'v_mul_f32 v{C1}, 0xbfb8aa3b, v{C1}')
    b(f'v_mov_b32 v{IR2+1}, v{IR2}')
    b(f'v_mov_b32 v{C1+1}, v{C1}')
    fin = [l.strip() for l in b.lines if not l.strip().startswith('s_nop')]
    ep = [epi_tile(ACC + 16 * f, 64 + 16 * (f & 1), C1, IR2) for f in range(7)]
    a(mfma(0, 0))
    for x in fin[:5]: a(x)
    a(mfma(0, 1))
    for x in fin[5:10]: a(x)
    a(mfma(0, 2))
    for x in fin[10:]: a(x)
    e0 = ep[0]
    for f in range(3, 7):
        a(mfma(0, f))
        for x in e0[4*(f-3):4*(f-3)+4]: a(x)
    ep[0] = e0[16:]
    for f in range(7):
        T = 64 + 16 * (f & 1)
        for x in ep[f]: a(x)
        a(f'buffer_store_dwordx4 {Q(T+8)}, v3, s[{WS}:{WS+3}], s37 offen offset:{1024*(f&3)}{SC}')
        if f == 3: a('s_add_u32 s37, s37, 4096')
    stamp(a, 4, VS)
    a('v_mov_b32 v4, 1')
    a('v_mov_b32 v5, 0')
    a('s_waitcnt vmcnt(0)')
    a('s_mov_b64 exec, 1')
    a(f'buffer_store_dword v4, v5, s[{WS}:{WS+3}], s38 offen sc1')
    stamp(a, 5, VS)
    stamp_end(a, 6, VS, 2, 248)
    a('s_endpgm')
    for st2 in range(2):
        a(f'ff_xspin{st2}:')
        a(f'ds_read_b32 v{PV}, v8 offset:{16+16*st2}')
        a('s_add_u32 s44, s44, 1')
        a('s_cmp_gt_u32 s44, 0x100000')
        a('s_waitcnt lgkmcnt(0)')
        a(f's_cbranch_scc1 ff_xgo{st2}')
        a(f'v_cmp_ne_u32 vcc, 0, v{PV}')
        a(f's_cbranch_vccnz ff_xspin{st2}')
        a(f's_branch ff_xgo{st2}')
    a('ff_ld:')
    a.flush_hist()
    VS = 1
    stamp_begin(a, VS)
    a('s_mul_i32 s28, s22, %d' % W1F_NT)
    a('s_mul_i32 s24, s20, 3584')
    a('v_add_u32 v4, s24, v3')
    a('s_lshl_b32 s25, s21, 17')
    a('s_lshl_b32 s26, s20, 11')
    a('v_add_u32 v7, s26, v3')
    a('s_add_u32 s26, s26, 14336')
    a('s_mov_b32 s30, 0')
    a('s_mov_b32 s31, 0')
    a('s_lshl_b32 s29, s20, 2')
    a('s_add_u32 s29, s29, %d' % FF_FLG)
    a('s_mov_b32 s47, 0x7f000000')
    a('s_mov_b32 m0, s26')
    a('s_waitcnt lgkmcnt(0)')
    srd(a, HT, 4, 131072, WS_HT, offreg=25)
    srd(a, W1F, 4, 33 * 7168, WS_W1F, offreg=28)
    def pace():
        if PACE: a(f's_waitcnt vmcnt({PACE})')
    def dma(j):
        slot = (j % G1_NS) * G1_SLOT
        if j < 16:
            if j: a('s_add_u32 m0, s26, %d' % slot)
            pace()
            a(f'buffer_load_dwordx4 v7, s[{HT}:{HT+3}], s31 offen lds')
            pace()
            a(f'buffer_load_dwordx4 v7, s[{HT}:{HT+3}], s31 offen offset:1024 lds')
        a('s_add_u32 m0, s24, %d' % slot)
        a('s_add_u32 s31, s31, 8192')
        pace()
        a(f'buffer_load_dwordx4 v4, s[{W1F}:{W1F+3}], s30 offen lds')
        pace()
        a(f'buffer_load_dwordx4 v4, s[{W1F}:{W1F+3}], s30 offen offset:1024 lds')
        pace()
        a(f'buffer_load_dwordx4 v4, s[{W1F}:{W1F+3}], s30 offen offset:2048 lds')
        a('s_mov_b32 exec_hi, 0')
        pace()
        a(f'buffer_load_dwordx4 v4, s[{W1F}:{W1F+3}], s30 offen offset:3072 lds')
        if j == 0: a('s_barrier')
        a('s_add_u32 m0, s29, %d' % (16 * j))
        a('s_mov_b32 exec_lo, 1')
        a('s_add_u32 s30, s30, 14336')
        a(f'buffer_load_dword v4, s[{W1F}:{W1F+3}], s47 offen lds')
        a('s_mov_b64 exec, -1')
        if j >= 6 and not PACE: a('s_waitcnt vmcnt(49)')
    stamp(a, 1, VS)
    pos2s = {p: st for st, p in BARS.items()}
    allowed = G1_NS - 1
    for j in range(17):
        assert j <= allowed, (j, allowed)
        dma(j)
        if j == 1:
            a('s_and_b32 s48, s2, 7')
            a('s_lshl_b32 s48, s48, 2')
            a('s_bfe_u32 s49, s2, 0x20003')
            a('s_add_u32 s48, s48, s49')
            a('s_lshr_b32 s49, s2, 5')
            a('s_mul_i32 s50, s48, 224')
            a('s_mul_i32 s52, s20, 28')
            a('s_add_u32 s50, s50, s52')
            a('s_lshl_b32 s50, s50, 10')
            a('s_add_u32 s50, s50, %d' % WS_ACT)
            a('s_mul_i32 s51, s49, 112')
            a('s_add_u32 s51, s51, s52')
            a('s_lshl_b32 s51, s51, 11')
            a('s_add_u32 s51, s51, %d' % WS_WDF)
            if ROT2:
                a('s_mul_i32 s53, s49, 7')
                a('s_lshr_b32 s53, s53, 1')
                a('s_lshl_b32 s53, s53, 10')
            else:
                a('s_mov_b32 s53, 0')
            a('s_lshl_b32 s54, s53, 1')
            a('s_lshr_b32 s56, s20, 1')
            a('s_and_b32 s57, s20, 1')
            a('s_lshl_b32 s58, s56, 10')
            a('v_add_u32 v8, s58, v3')
            a('v_xor_b32 v9, 0x400, v8')
            a('s_mul_i32 s58, s57, 0x1c000')
            a('v_add_u32 v10, s58, v3')
            a('v_xor_b32 v11, 0x1c000, v10')
            srd(a, WS, 4, WS_END)
            srd(a, OUT, 6, 2 * MiB)
        if j in pos2s:
            a('s_barrier')
            allowed = pos2s[j] - 1 + G1_NS
    stamp(a, 2, VS)
    wd_next = 's_add_u32 s54, s54, 2048\ns_cmp_eq_u32 s54, 57344\ns_cselect_b32 s54, 0, s54\ns_add_u32 s55, s51, s54'
    order = []
    ACC = 16
    WDR = 112
    a('s_add_u32 s55, s51, s54')
    wreg = {}
    for k in range(RK):
        wreg[k] = WDR + 8 * k
        a(f'buffer_load_dwordx4 {Q(wreg[k])}, v8, s[{WS}:{WS+3}], s55 offen')
        a(f'buffer_load_dwordx4 {Q(wreg[k]+4)}, v9, s[{WS}:{WS+3}], s55 offen')
        a(wd_next)
        if k % 4 == 3 or PACE: a('s_waitcnt vmcnt(%d)' % (PACE - 1 if PACE else 50))
        if k == BAR14: a('s_barrier')
    a('s_mul_i32 s58, s20, 10240')
    a('s_add_u32 s58, s58, %d' % FF_WD)
    a('s_mov_b32 m0, s58')
    for k in range(LK):
        a(f'buffer_load_dwordx4 v8, s[{WS}:{WS+3}], s55 offen lds')
        a('s_add_u32 m0, m0, 1024')
        a(f'buffer_load_dwordx4 v9, s[{WS}:{WS+3}], s55 offen lds')
        a('s_add_u32 m0, m0, %d' % (1024 if k != 4 else FF_WD2 - FF_WD - 9216))
        a(wd_next)
        if k % 4 == 3 or PACE: a('s_waitcnt vmcnt(%d)' % (PACE - 1 if PACE else 50))
    a('v_add_u32 v12, s58, v3')
    a('v_lshrrev_b32 v5, 3, v2')
    a('v_and_b32 v6, 7, v2')
    a('s_and_b32 s59, s48, 1')
    a('s_lshl_b32 s59, s59, 3')
    a('v_or_b32 v6, s59, v6')
    a('v_and_b32 v7, 3, v5')
    a('v_lshlrev_b32 v7, 2, v7')
    a('v_xor_b32 v6, v6, v7')
    a('v_lshlrev_b32 v5, 8, v5')
    a('v_lshl_add_u32 v5, v6, 4, v5')
    a('s_lshl_b32 s59, s49, 14')
    a('s_lshl_b32 s60, s20, 12')
    a('s_add_u32 s59, s59, s60')
    a('s_lshr_b32 s60, s48, 1')
    a('s_lshl_b32 s60, s60, 17')
    a('s_add_u32 s59, s59, s60')
    a('s_add_u32 s59, s59, %d' % WS_HT)
    a('s_add_u32 s60, s59, 0x800')
    a('s_lshl_b32 s61, s57, 11')
    a('s_mul_i32 s64, s56, %d' % (FF_WD2 - FF_WD))
    a('s_add_u32 s61, s61, s64')
    a('s_add_u32 m0, s61, %d' % FF_H)
    a(f'buffer_load_dwordx4 v5, s[{WS}:{WS+3}], s59 offen lds')
    a('s_add_u32 m0, m0, 1024')
    a(f'buffer_load_dwordx4 v5, s[{WS}:{WS+3}], s60 offen lds')
    a('v_and_b32 v4, 15, v2')
    a('v_lshrrev_b32 v5, 4, v2')
    a('v_lshrrev_b32 v6, 2, v4')
    a('v_and_b32 v7, 3, v4')
    a('v_lshrrev_b32 v13, 1, v5')
    a('v_and_b32 v5, 1, v5')
    a('v_lshl_add_u32 v14, v13, 2, v6')
    a('v_lshlrev_b32 v14, 7, v14')
    a('v_lshl_add_u32 v14, v5, 5, v14')
    a('v_lshl_add_u32 v14, v7, 3, v14')
    a('s_lshl_b32 s60, s57, 6')
    a('s_add_u32 s59, s64, s60')
    a('s_add_u32 s59, s59, %d' % FF_H)
    a('v_add_u32 v14, s59, v14')
    a('v_and_b32 v15, 31, v2')
    a('v_lshlrev_b32 v15, 10, v15')
    a('v_lshl_add_u32 v15, v13, 4, v15')
    a('s_lshl_b32 s62, s48, 16')
    a('s_lshl_b32 s60, s57, 15')
    a('s_add_u32 s62, s62, s60')
    a('s_lshl_b32 s60, s49, 7')
    a('s_add_u32 s62, s62, s60')
    a('s_lshl_b32 s60, s56, 6')
    a('s_add_u32 s62, s62, s60')
    a('s_mov_b32 s63, 0xffff0000')
    a('s_lshl_b32 s59, s48, 7')
    a('s_lshl_b32 s60, s20, 5')
    a('s_add_u32 s59, s59, s60')
    a('s_add_u32 s59, s59, %d' % WS_GF)
    a('v_and_b32 v4, 7, v2')
    a('v_lshlrev_b32 v4, 2, v4')
    a('s_mov_b32 s60, 0')
    stamp(a, 3, VS)
    a('ff_poll:')
    a(f'buffer_load_dword v5, v4, s[{WS}:{WS+3}], s59 offen sc1')
    a('s_add_u32 s60, s60, 1')
    a('s_waitcnt vmcnt(0)')
    a('v_cmp_eq_u32 vcc, 0, v5')
    a('s_cbranch_vccz ff_ready')
    a('s_cmp_lt_u32 s60, 0x40000')
    a('s_sleep 2')
    a('s_cbranch_scc1 ff_poll')
    a('ff_ready:')
    stamp(a, 4, VS)
    for p in (1, 2, 3):
        a(f's_xor_b32 s33, s20, {p}')
        a('s_mul_i32 s33, s33, 12288')
        a(f'v_add_u32 v{3+p}, s33, v3')
    a('s_mul_i32 s33, s20, 12288')
    a('v_add_u32 v7, s33, v3')
    a('s_add_u32 s41, s50, s53') if False else None
    a('s_add_u32 s61, s50, s53')
    act_next = 's_add_u32 s53, s53, 1024\ns_cmp_eq_u32 s53, 28672\ns_cselect_b32 s53, 0, s53\ns_add_u32 s61, s50, s53'
    free = [80, 88, 96, 104]
    areg = {}
    order = []
    q = DsQ(a)
    nact = 0; nwl = RK
    DA = 6
    def issue(k_now):
        nonlocal nact, nwl
        while True:
            if nwl < 28 and nwl <= k_now + (3 if nwl < RK + LK else DA) and free and nwl <= nact:
                r = free.pop(0); wreg[nwl] = r
                if nwl < RK + LK:
                    lo = 2048 * ((nwl - RK) % 5) + (FF_WD2 - FF_WD) * ((nwl - RK) // 5)
                    q.op(f'ds_read_b128 {Q(r)}, v12 offset:{lo}', nwl)
                    q.op(f'ds_read_b128 {Q(r+4)}, v12 offset:{lo+1024}', nwl)
                else:
                    a(f'buffer_load_dwordx4 {Q(r)}, v8, s[{WS}:{WS+3}], s55 offen')
                    a(f'buffer_load_dwordx4 {Q(r+4)}, v9, s[{WS}:{WS+3}], s55 offen')
                    a(wd_next)
                    order.extend([nwl] * 2)
                nwl += 1
            elif nact < 28 and nact <= k_now + DA and free:
                r = free.pop(0); areg[nact] = r
                a(f'buffer_load_dwordx4 {Q(r)}, v10, s[{WS}:{WS+3}], s61 offen{SC}')
                a(f'buffer_load_dwordx4 {Q(r+4)}, v11, s[{WS}:{WS+3}], s61 offen{SC}')
                a(act_next)
                order.extend([nact] * 2)
                nact += 1
            else:
                break
    issue(0)
    RESR = None
    for k in range(28):
        last = max(i for i, o in enumerate(order) if o == k)
        a(f's_waitcnt vmcnt({len(order) - 1 - last})')
        if RK <= k < RK + LK: q.wait(k)
        for p in (3, 2, 1, 0):
            px, py = p >> 1, p & 1
            c = f'v[{ACC+16*p}:{ACC+16*p+15}]'
            a(f'v_mfma_f32_32x32x16_bf16 {c}, {Q(wreg[k]+4*px)}, {Q(areg[k]+4*py)}, {"0" if k == 0 else c}')
        free += [wreg[k], areg[k]]
        issue(k + 1)
        if k == 25:
            a('s_barrier')
            RESR = free.pop(0)
            for x in range(4):
                q.op(f'ds_read_b64_tr_b16 {P(RESR+2*x)}, v14 offset:{1024*x}', 'res')
    stamp(a, 5, VS)
    for p in (3, 2, 1):
        for j in range(4):
            q.op(f'ds_write_b128 v{3+p}, {Q(ACC+16*p+4*j)} offset:{FF_RED+(p-1)*4096+1024*j}', 'w')
    R = 224 if 224 != RESR and 232 != RESR else 192
    assert RESR not in (R, R + 8)
    q.wait('res')
    for x in range(4):
        a(f'v_lshlrev_b32 v{R+4*x}, 16, v{RESR+2*x}')
        a(f'v_and_b32 v{R+4*x+1}, s63, v{RESR+2*x}')
        a(f'v_lshlrev_b32 v{R+4*x+2}, 16, v{RESR+2*x+1}')
        a(f'v_and_b32 v{R+4*x+3}, s63, v{RESR+2*x+1}')
    for r in range(0, 16, 2):
        a(f'v_pk_add_f32 {P(R+r)}, {P(R+r)}, {P(ACC+r)}')
    a('s_waitcnt lgkmcnt(0)')
    a('s_barrier')
    stamp(a, 6, VS)
    for j in range(4):
        for p in range(3):
            a(f'ds_read_b128 {Q(32+16*p+4*j)}, v7 offset:{FF_RED+4096*p+1024*j}')
    for j in range(4):
        a(f's_waitcnt lgkmcnt({9-3*j})')
        for r in range(4*j, 4*j+4, 2):
            a(f'v_pk_add_f32 {P(R+r)}, {P(R+r)}, {P(32+r)}')
            a(f'v_pk_add_f32 {P(48+r)}, {P(48+r)}, {P(64+r)}')
        for r in range(4*j, 4*j+4, 2):
            a(f'v_pk_add_f32 {P(R+r)}, {P(R+r)}, {P(48+r)}')
        a(f'v_cvt_pk_bf16_f32 v{100+2*j}, v{R+4*j}, v{R+4*j+1}')
        a(f'v_cvt_pk_bf16_f32 v{101+2*j}, v{R+4*j+2}, v{R+4*j+3}')
        if j & 1:
            p = j >> 1
            a(f'v_permlane32_swap_b32 v{100+4*p}, v{102+4*p}')
            a(f'v_permlane32_swap_b32 v{101+4*p}, v{103+4*p}')
            a(f'buffer_store_dwordx4 {Q(100+4*p)}, v15, s[{OUT}:{OUT+3}], s62 offen offset:{32*p}')
    stamp(a, 7, VS)
    stamp_end(a, 8, VS, 2, 110)
    a('ff_end:')
    a('s_endpgm')
    return name, 256, 102, None

class DsQ:
    def __init__(self, a):
        self.a = a; self.q = []; self.done = 0
    def op(self, txt, tag=None):
        self.a(txt); self.q.append(tag)
    def wait(self, *tags):
        idx = max(len(self.q) - 1 - self.q[::-1].index(t) for t in tags) + 1
        if idx > self.done:
            n = min(len(self.q) - idx, 15)
            self.a(f's_waitcnt lgkmcnt({n})')
            self.done = len(self.q) - n

def main(out):
    a = Asm()
    ks = []
    launches = [('prep_kernel', 256, 512, 0), ('conv_kernel', 256 + NFMT, 256, CV_LDS), ('ffn_kernel', 256, 512, FF_LDS)]
    gens = [gen_prep, gen_conv, gen_ffn]
    if TLA >= 0:
        launches.append(('tl_kernel', 1, 64, 0)); gens.append(gen_tl)
    txt = HEADER
    for n, g, b, l in launches:
        txt += f'; @launch kernel={n} grid=({g},1,1) block=({b},1,1) lds={l}\n'
    txt += '.amdgcn_target "amdgcn-amd-amdhsa--gfx950"\n.text\n'
    for g in gens:
        ks.append(g(a))
    txt += a.text()
    txt += '.section .rodata,"a"\n'
    for n, v, s, acc in ks:
        txt += kernel_desc(n, v, s, acc)
    open(out, 'w').write(txt)

if __name__ == '__main__':
    for arg in sys.argv[2:]:
        if arg == 'stamp': STAMP = True
        elif '=' in arg:
            k, v = arg.split('='); globals()[k] = int(v, 0)
    main(sys.argv[1] if len(sys.argv) > 1 else 'sequential_preLN__ssm_conv_h3__swiglu_ffn__prompt.s')
```

```python
import sys
sys.path.insert(0, 'dev')
from asmlib import *

MiB = 1 << 20
CS = 4224
CHB = 512 * CS
WS_XR0 = 0
WS_XR1 = CHB
WS_XT = 2 * CHB
WS_ST = 3 * CHB
WS_GF = 3 * CHB + 32768
WS_HT = 3 * CHB + 65536
WS_W1F = WS_HT + 2 * MiB
W1F_NT = 232 * 1024
PF_FILT = 1
PF_W1 = 0
PF_WD = 1
ROT1 = 0
ROT2 = 1
WS_WDF = WS_W1F + 16 * W1F_NT
WS_ACT = WS_WDF + 1792 * 1024
WS_END = WS_ACT + 7 * MiB
WS_DBG = 32 * MiB

HEADER = open('sequential_preLN__ssm_conv_h3__swiglu_ffn__prompt.s.ref').read().split('; Override launch')[0]

def srd(a, d, base, size, off=None, offreg=None):
    if off:
        a(f's_add_u32 s{d}, s{base}, {hex(off)}')
        a(f's_addc_u32 s{d+1}, s{base+1}, 0')
        if offreg is not None:
            a(f's_add_u32 s{d}, s{d}, s{offreg}')
            a(f's_addc_u32 s{d+1}, s{d+1}, 0')
    elif offreg is not None:
        a(f's_add_u32 s{d}, s{base}, s{offreg}')
        a(f's_addc_u32 s{d+1}, s{base+1}, 0')
    else:
        a(f's_mov_b32 s{d}, s{base}')
        a(f's_mov_b32 s{d+1}, s{base+1}')
    a(f's_mov_b32 s{d+2}, {hex(size)}')
    a(f's_mov_b32 s{d+3}, 0x20000')

STAMP = False
def stamp(a, i, vst):
    if not STAMP: return
    a('s_memtime s[98:99]')
    a('s_waitcnt lgkmcnt(0)')
    a(f'v_writelane_b32 v{vst}, s98, {i}')
def stamp_rt(a, i, vst):
    if not STAMP: return
    a('s_memrealtime s[98:99]')
    a('s_waitcnt lgkmcnt(0)')
    a(f'v_writelane_b32 v{vst}, s98, {i}')
def stamp_begin(a, vst):
    if not STAMP: return
    a(f'v_mov_b32 v{vst}, 0')
    stamp_rt(a, 15, vst)
    stamp(a, 0, vst)
def stamp_end(a, i, vst, kidx, tmp):
    if not STAMP: return
    a('s_mov_b64 exec, -1')
    a('s_waitcnt vmcnt(0)')
    stamp(a, i, vst)
    stamp_rt(a, 14, vst)
    a('s_load_dwordx2 s[96:97], s[0:1], 96')
    a('s_waitcnt lgkmcnt(0)')
    srd(a, 92, 96, 4 << 20, WS_DBG)
    a(f'v_lshrrev_b32 v{tmp}, 6, v0')
    a(f'v_lshlrev_b32 v{tmp}, 6, v{tmp}')
    a(f'v_and_b32 v{tmp+1}, 63, v0')
    a(f'v_lshl_add_u32 v{tmp}, v{tmp+1}, 2, v{tmp}')
    a('s_lshl_b32 s98, s2, 9')
    a(f's_add_u32 s98, s98, {kidx*262144}')
    a('s_mov_b32 exec_lo, 0xffff')
    a('s_mov_b32 exec_hi, 0')
    a(f'buffer_store_dword v{vst}, v{tmp}, s[92:95], s98 offen')

TLA = -1
TLB = -1
TLM = 4
_tl_idx = [0]
def tl_mark(a):
    if TLA < 0: return
    k = _tl_idx[0]; _tl_idx[0] += 1
    L = a.newlabel('tl')
    a('s_cmp_lg_u32 s2, 0')
    a(f's_cbranch_scc1 {L}')
    a('s_memrealtime s[98:99]')
    a('s_load_dwordx2 s[96:97], s[0:1], 96')
    a('s_waitcnt lgkmcnt(0)')
    srd(a, 92, 96, 4096, WS_DBG)
    a('v_mov_b32 v1, s98')
    a('v_mov_b32 v2, 0')
    a(f'buffer_store_dword v1, v2, s[92:95], 0 offen offset:{4*k}')
    a(f'{L}:')
def gen_tl(a):
    name = 'tl_kernel'
    a.raw(f'.globl {name}'); a.raw('.p2align 8'); a.raw(f'.type {name},@function'); a.raw(f'{name}:')
    a.flush_hist()
    a('s_cmp_lg_u32 s2, 0')
    a('s_cbranch_scc1 tl_end')
    a('s_memrealtime s[20:21]')
    a('s_load_dwordx2 s[4:5], s[0:1], 96')
    a('s_waitcnt lgkmcnt(0)')
    srd(a, 8, 4, 4096, WS_DBG)
    a('v_mov_b32 v2, 0')
    a('buffer_load_dwordx4 v[4:7], v2, s[8:11], 0 offen')
    a('s_waitcnt vmcnt(0)')
    a('v_mov_b32 v%d, s20' % (4 + _tl_idx[0]))
    a(f'v_sub_u32 v9, v{4+TLB}, v{4+TLA}')
    a('v_readfirstlane_b32 s22, v9')
    a('s_min_u32 s22, s22, 5000')
    a(f's_mul_i32 s22, s22, {TLM}')
    a('tl_spin:')
    a('s_memrealtime s[24:25]')
    a('s_waitcnt lgkmcnt(0)')
    a('s_sub_u32 s24, s24, s20')
    a('s_cmp_lt_u32 s24, s22')
    a('s_cbranch_scc1 tl_spin')
    a('tl_end:')
    a('s_endpgm')
    return name, 16, 32, None

def begin(a, name):
    a.raw(f'.globl {name}')
    a.raw('.p2align 8')
    a.raw(f'.type {name},@function')
    a.raw(f'{name}:')
    a.flush_hist()
    tl_mark(a)

def red32(a, v, t):
    a(f'v_add_f32_dpp v{v}, v{v}, v{v} quad_perm:[1,0,3,2] row_mask:0xf bank_mask:0xf')
    a(f'v_add_f32_dpp v{v}, v{v}, v{v} quad_perm:[2,3,0,1] row_mask:0xf bank_mask:0xf')
    a(f'v_add_f32_dpp v{v}, v{v}, v{v} row_half_mirror row_mask:0xf bank_mask:0xf')
    a(f'v_add_f32_dpp v{v}, v{v}, v{v} row_mirror row_mask:0xf bank_mask:0xf')
    a(f'v_mov_b32 v{t}, v{v}')
    a(f'v_permlane16_swap_b32 v{v}, v{t}')
    a(f'v_add_f32 v{v}, v{v}, v{t}')

def rne(a, d, s):
    a(f'v_cvt_pk_bf16_f32 v{d}, v{s}, v{s}')
    a(f'v_lshlrev_b32 v{d}, 16, v{d}')

def ln_sigma(a, var, rs):
    rne(a, var, var)
    a(f'v_add_f32 v{var}, 0x3727c5ac, v{var}')
    rne(a, var, var)
    a(f'v_sqrt_f32 v{var}, v{var}')
    rne(a, var, var)
    a(f'v_rcp_f32 v{rs}, v{var}')

def interleave(a, ms, fill, start=0):
    n = len(ms); k = 0
    for i, m in enumerate(ms):
        a(m)
        tgt = (len(fill) * (i + 1) + n - 1) // n
        while k < tgt:
            a(fill[k]); k += 1

P = lambda r: f'v[{r}:{r+1}]'
Q = lambda r: f'v[{r}:{r+3}]'

def gen_prep(a):
    name = 'prep_kernel'
    begin(a, name)
    VS = 39
    X, K, V, SH, O0, O1, ST = 16, 20, 24, 28, 32, 36, 40
    a('s_cmp_ge_u32 s2, 256')
    a('s_cbranch_scc1 prep_end')
    stamp_begin(a, VS)
    a('s_load_dwordx8 s[4:11], s[0:1], 0')
    a('s_load_dwordx2 s[12:13], s[0:1], 96')
    a('v_lshrrev_b32 v1, 8, v0')
    a('v_and_b32 v4, 31, v0')
    a('v_readfirstlane_b32 s53, v1')
    a('v_bfe_u32 v5, v0, 5, 3')
    a('s_and_b32 s14, s2, 7')
    a('s_lshr_b32 s15, s2, 3')
    a('s_lshl_b32 s44, s15, 16')
    a('s_lshl_b32 s45, s14, 7')
    a('s_add_u32 s44, s44, s45')
    a('v_lshlrev_b32 v2, 13, v5')
    a('v_lshl_add_u32 v2, v4, 2, v2')
    a('v_add_u32 v2, s44, v2')
    a('v_add_u32 v3, 0x1000, v2')
    a('s_mov_b32 s47, %d' % CS)
    a('s_mov_b32 s50, 0xffff0000')
    a('s_mul_i32 s45, s14, %d' % (64 * CS))
    a('s_lshl_b32 s46, s15, 7')
    a('v_mul_u32_u24 v8, %d, v4' % (2 * CS))
    a('s_cmp_eq_u32 s53, 0')
    a('s_cbranch_scc0 prep_x')
    a('v_subrev_u32 v1, 0x1000, v2')
    a('s_lshl_b32 s48, s14, 9')
    a('v_lshlrev_b32 v6, 4, v4')
    a('v_add_u32 v6, s48, v6')
    a('s_sub_u32 s45, s45, s46')
    a('s_add_u32 s45, s45, 4080')
    a('v_lshlrev_b32 v9, 4, v5')
    a('v_sub_u32 v8, v8, v9')
    a('v_add_u32 v8, s45, v8')
    a('s_waitcnt lgkmcnt(0)')
    stamp(a, 1, VS)
    srd(a, K, 6, 2 * MiB)
    KR, VR, SHR = 10, 22, 32
    for r in range(12):
        a(f'buffer_load_dword v{KR+r}, v{1+r//4}, s[{K}:{K+3}], 0 offen offset:{(r%4)*1024}')
    srd(a, SH, 10, 4096)
    a(f'buffer_load_dwordx4 {Q(SHR)}, v6, s[{SH}:{SH+3}], 0 offen')
    srd(a, V, 8, 2 * MiB)
    for r in range(9):
        rr = r + 3
        a(f'buffer_load_dword v{VR+r}, v{1+rr//4}, s[{V}:{V+3}], 0 offen offset:{(rr%4)*1024}')
    srd(a, O0, 12, CHB, WS_XR0)
    srd(a, O1, 12, CHB, WS_XR1)
    KF, WP, VF, KV = 40, 64, 72, 92
    stamp(a, 2, VS)
    a('s_waitcnt vmcnt(10)')
    stamp(a, 3, VS)
    for r in range(12):
        a(f'v_lshlrev_b32 v{KF+2*r}, 16, v{KR+r}')
        a(f'v_and_b32 v{KF+2*r+1}, s50, v{KR+r}')
    a('s_waitcnt vmcnt(9)')
    for j in range(4):
        for c in range(2):
            src = SHR + 2 * c + j // 2
            if j % 2 == 0:
                a(f'v_lshlrev_b32 v{WP+2*j+c}, 16, v{src}')
            else:
                a(f'v_and_b32 v{WP+2*j+c}, s50, v{src}')
    for i in range(9):
        d = KV + 2 * i
        a(f'v_pk_mul_f32 {P(d)}, {P(KF+2*i)}, {P(WP+6)}')
    for j in (2, 1, 0):
        for i in range(9):
            d = KV + 2 * i
            a(f'v_pk_fma_f32 {P(d)}, {P(KF+2*(i+3-j))}, {P(WP+2*j)}, {P(d)}')
    a('s_waitcnt vmcnt(0)')
    for r in range(9):
        a(f'v_lshlrev_b32 v{VF+2*r}, 16, v{VR+r}')
        a(f'v_and_b32 v{VF+2*r+1}, s50, v{VR+r}')
    for i in range(9):
        d = KV + 2 * i
        a(f'v_pk_mul_f32 {P(d)}, {P(d)}, {P(VF+2*i)}')
    O = 112
    kv = lambda row, c: KV + 2 * (row + 1) + c
    for c in range(2):
        for w in range(4):
            a(f'v_cvt_pk_bf16_f32 v{O+4*c+w}, v{kv(7-2*w,c)}, v{kv(6-2*w,c)}')
        a(f'buffer_store_dwordx4 {Q(O+4*c)}, v8, s[{O0}:{O0+3}], {"s47" if c else "0"} offen')
    for c in range(2):
        for w in range(4):
            a(f'v_cvt_pk_bf16_f32 v{O+8+4*c+w}, v{kv(6-2*w,c)}, v{kv(5-2*w,c)}')
        a(f'buffer_store_dwordx4 {Q(O+8+4*c)}, v8, s[{O1}:{O1+3}], {"s47" if c else "0"} offen')
    stamp(a, 4, VS)
    stamp_end(a, 5, VS, 0, 36)
    a('s_endpgm')
    a('prep_x:')
    a.flush_hist()
    a('s_lshl_b32 s48, s2, 13')
    a('v_lshlrev_b32 v7, 10, v5')
    a('v_lshl_add_u32 v7, v4, 4, v7')
    a('v_add_u32 v7, s48, v7')
    a('s_add_u32 s45, s45, s46')
    a('v_lshl_add_u32 v8, v5, 4, v8')
    a('v_add_u32 v8, s45, v8')
    a('s_lshl_b32 s46, s2, 5')
    a('v_lshlrev_b32 v9, 2, v5')
    a('v_add_u32 v9, s46, v9')
    a('s_mov_b32 s48, 0x2000')
    a('s_mov_b32 s51, 0x05040100')
    a('s_mov_b32 s52, 0x07060302')
    a('s_load_dwordx2 s[54:55], s[0:1], 32')
    a('s_load_dwordx2 s[56:57], s[0:1], 72')
    a('s_waitcnt lgkmcnt(0)')
    stamp(a, 1, VS)
    srd(a, X, 4, 2 * MiB)
    XR, XS = 10, 20
    a(f'buffer_load_dwordx4 {Q(XS)}, v7, s[{X}:{X+3}], 0 offen')
    a(f'buffer_load_dwordx4 {Q(XS+4)}, v7, s[{X}:{X+3}], 0 offen offset:512')
    for r in range(8):
        a(f'buffer_load_dword v{XR+r}, v{2 if r < 4 else 3}, s[{X}:{X+3}], 0 offen offset:{(r%4)*1024}')
    srd(a, O0, 12, CHB, WS_XT)
    srd(a, ST, 12, 65536, WS_ST)
    if PF_FILT:
        srd(a, K, 54, 2 * MiB)
        srd(a, V, 56, 1792 * 1024)
        a('s_lshl_b32 s58, s14, 5')
        a('s_add_u32 s58, s58, s15')
        a('s_lshl_b32 s58, s58, 13')
        a('s_mul_i32 s59, s2, 7168')
        a('v_and_b32 v30, 63, v0')
        a('v_lshlrev_b32 v30, 7, v30')
        a('v_readfirstlane_b32 s60, v0')
        a('s_cmp_eq_u32 s60, 256')
        a(f's_cselect_b32 s{K+2}, s{K+2}, 0')
        a('s_cmp_eq_u32 s60, 320')
        a(f's_cselect_b32 s{V+2}, s{V+2}, 0')
        a(f'buffer_load_dword v31, v30, s[{K}:{K+3}], s58 offen')
        a(f'buffer_load_dword v32, v30, s[{V}:{V+3}], s59 offen')
    stamp(a, 2, VS)
    a('s_waitcnt vmcnt(%d)' % (10 if PF_FILT else 8))
    stamp(a, 3, VS)
    E = 60
    for r in range(8):
        a(f'v_lshlrev_b32 v{E+2*r}, 16, v{XS+r}')
        a(f'v_and_b32 v{E+2*r+1}, s50, v{XS+r}')
    S = 80
    a(f'v_pk_add_f32 {P(S)}, {P(E)}, {P(E+2)}')
    a(f'v_pk_add_f32 {P(S+2)}, {P(E+4)}, {P(E+6)}')
    a(f'v_pk_add_f32 {P(S+4)}, {P(E+8)}, {P(E+10)}')
    a(f'v_pk_add_f32 {P(S+6)}, {P(E+12)}, {P(E+14)}')
    a(f'v_pk_add_f32 {P(S)}, {P(S)}, {P(S+2)}')
    a(f'v_pk_add_f32 {P(S+4)}, {P(S+4)}, {P(S+6)}')
    a(f'v_pk_add_f32 {P(S)}, {P(S)}, {P(S+4)}')
    a(f'v_add_f32 v{S}, v{S}, v{S+1}')
    red32(a, S, S + 1)
    a(f'v_mul_f32 v{S}, 0xbb000000, v{S}')
    a(f'v_mov_b32 v{S+1}, v{S}')
    a('s_waitcnt vmcnt(%d)' % (2 if PF_FILT else 0))
    O2 = 100
    for c in range(2):
        for w in range(4):
            a(f'v_perm_b32 v{O2+4*c+w}, v{XR+2*w+1}, v{XR+2*w}, s{51+c}')
        a(f'buffer_store_dwordx4 {Q(O2+4*c)}, v8, s[{O0}:{O0+3}], {"s47" if c else "0"} offen')
    for r in range(8):
        a(f'v_pk_add_f32 {P(E+2*r)}, {P(E+2*r)}, {P(S)}')
    a(f'v_pk_mul_f32 {P(S+2)}, {P(E)}, {P(E)}')
    a(f'v_pk_mul_f32 {P(S+4)}, {P(E+2)}, {P(E+2)}')
    for r in range(2, 8):
        d = S + 2 + 2 * (r & 1)
        a(f'v_pk_fma_f32 {P(d)}, {P(E+2*r)}, {P(E+2*r)}, {P(d)}')
    a(f'v_pk_add_f32 {P(S+2)}, {P(S+2)}, {P(S+4)}')
    a(f'v_add_f32 v{S+2}, v{S+2}, v{S+3}')
    red32(a, S + 2, S + 3)
    a(f'v_mul_f32 v{S+2}, 0x3b000000, v{S+2}')
    rne(a, S, S)
    ln_sigma(a, S + 2, S + 4)
    a(f'v_mul_f32 v{S+5}, v{S}, v{S+4}')
    a('v_mov_b32 v33, 0')
    a('v_lshrrev_b32 v34, 1, v9')
    a('s_mov_b32 s61, 0x8000')
    a('s_mov_b32 exec_lo, 1')
    a('s_mov_b32 exec_hi, 1')
    a(f'buffer_store_short v33, v34, s[{ST}:{ST+3}], s61 offen')
    a(f'buffer_store_dword v{S+4}, v9, s[{ST}:{ST+3}], 0 offen')
    a(f'buffer_store_dword v{S+5}, v9, s[{ST}:{ST+3}], s48 offen')
    stamp(a, 4, VS)
    stamp_end(a, 5, VS, 0, 36)
    a('prep_end:')
    a('s_endpgm')
    return name, 128, 102, None

CV_XC = 0
CV_E = 2 * 4 * 4640
CV_RED = CV_E + 2 * 8448
CV_LDS = CV_RED + 16384
FM_W1 = 0
FM_WD = 16384
NFMT = 224

def gen_conv(a):
    name = 'conv_kernel'
    begin(a, name)
    VS = 230
    H, XRS, XT, HT, ST = 20, 24, 28, 32, 36
    a('s_cmp_ge_u32 s2, 256')
    a('s_cbranch_scc1 fmt_begin')
    stamp_begin(a, VS)
    a('s_load_dwordx4 s[4:7], s[0:1], 32')
    a('s_load_dwordx2 s[14:15], s[0:1], 96')
    a('v_lshrrev_b32 v1, 6, v0')
    a('v_and_b32 v2, 63, v0')
    a('v_readfirstlane_b32 s60, v1')
    a('s_and_b32 s16, s2, 7')
    a('s_lshr_b32 s17, s2, 3')
    a('s_lshl_b32 s16, s16, 5')
    a('s_add_u32 s16, s16, s17')
    a('s_lshr_b32 s61, s60, 1')
    a('s_and_b32 s62, s60, 1')
    a('s_lshl_b32 s63, s16, 1')
    a('s_add_u32 s63, s63, s61')
    a('s_lshl_b32 s64, s63, 12')
    a('s_lshl_b32 s65, s16, 2')
    a('v_lshlrev_b32 v5, 3, v2')
    a('v_lshlrev_b32 v6, 4, v2')
    a('s_mul_i32 s66, s61, 8448')
    a('s_add_u32 s66, s66, %d' % CV_E)
    a('s_mul_i32 s70, s61, 18560')
    a('s_mul_i32 s71, s62, 4640')
    a('s_add_u32 s71, s71, s70')
    a('s_xor_b32 s72, s62, 1')
    a('s_mul_i32 s72, s72, %d' % CHB)
    a('s_mul_i32 s73, s63, %d' % CS)
    a('s_add_u32 s72, s72, s73')
    a('s_lshl_b32 s69, s62, 11')
    a('s_lshl_b32 s75, s62, 12')
    a('v_lshrrev_b32 v7, 2, v2')
    a('v_and_b32 v8, 3, v2')
    a('v_lshlrev_b32 v7, 3, v7')
    a('v_lshl_add_u32 v7, v8, 2, v7')
    a('v_add_u32 v7, 0xffffff80, v7')
    a('s_mov_b32 m0, s71')
    a('s_waitcnt lgkmcnt(0)')
    stamp(a, 1, VS)
    srd(a, XRS, 14, 4096, offreg=72)
    for i in range(4):
        a(f'buffer_load_dwordx4 v6, s[{XRS}:{XRS+3}], 4 offen offset:{1024*i} lds')
    a('s_add_u32 m0, m0, 9280')
    srd(a, H, 4, 4096, offreg=64)
    for i in range(4):
        a(f'buffer_load_dwordx4 v6, s[{XRS}:{XRS+3}], 0 offen offset:{1024*i} lds')
    a('s_add_u32 s68, s66, s75')
    a('s_add_u32 m0, s68, 256')
    a('s_load_dword s67, s[6:7], s65')
    for i in range(4):
        a(f'buffer_load_dwordx4 v5, s[{H}:{H+3}], s69 offen offset:{512*i} lds')
        a('s_add_u32 m0, m0, 512' if i < 3 else 's_mov_b32 m0, s66')
    a(f'buffer_load_dword v7, s[{H}:{H+3}], 0 offen lds')
    srd(a, XT, 14, 4096, WS_XT, offreg=73)
    srd(a, ST, 14, 16384, WS_ST)
    a('s_add_u32 s76, s75, 8192')
    XV, RS, MR = 16, 24, 40
    for t in range(4):
        a(f'buffer_load_dwordx2 {P(XV+2*t)}, v5, s[{XT}:{XT+3}], s69 offen offset:{512*t}')
        a(f'buffer_load_dwordx4 {Q(RS+4*t)}, v6, s[{ST}:{ST+3}], s75 offen offset:{1024*t}')
        a(f'buffer_load_dwordx4 {Q(MR+4*t)}, v6, s[{ST}:{ST+3}], s76 offen offset:{1024*t}')
    srd(a, HT, 14, 2 * MiB, WS_HT)
    a('v_and_b32 v12, 31, v2')
    a('v_lshlrev_b32 v12, 3, v12')
    a('s_and_b32 s74, s63, 3')
    a('s_lshl_b32 s74, s74, 6')
    a('v_xor_b32 v12, s74, v12')
    a('v_lshrrev_b32 v13, 5, v2')
    a('v_lshl_add_u32 v12, v13, 17, v12')
    a('s_lshl_b32 s74, s62, 20')
    a('s_lshl_b32 s79, s63, 8')
    a('s_add_u32 s74, s74, s79')
    if PF_W1:
        srd(a, 40, 14, 16 * W1F_NT, WS_W1F)
        a('s_bfe_u32 s77, s2, 0x20001')
        a('s_mul_i32 s77, s77, %d' % (4 * W1F_NT))
        a('s_mul_i32 s78, s17, %d' % (29 * 1024))
        a('s_add_u32 s77, s77, s78')
        a('v_min_u32 v226, 231, v0')
        a('v_lshlrev_b32 v226, 7, v226')
        a('buffer_load_dword v227, v226, s[40:43], s77 offen')
    a('v_mov_b32 v60, 0')
    a('v_mov_b32 v61, 0')
    a('v_add_u32 v62, s71, v5')
    a('ds_write_b64 v62, v[60:61] offset:4096')
    a('ds_write_b64 v62, v[60:61] offset:%d' % (4096 + 9280))
    XA, HA = 224, 225
    a('v_and_b32 v3, 15, v2')
    a('v_lshrrev_b32 v4, 4, v2')
    a('v_lshrrev_b32 v9, 2, v3')
    a('v_mul_u32_u24 v10, 4640, v8')
    a('v_lshlrev_b32 v9, 3, v9')
    a('v_sub_u32 v9, v4, v9')
    a('v_add_u32 v9, 24, v9')
    a(f'v_lshl_add_u32 v{XA}, v9, 4, v10')
    a('s_lshl_b32 s88, s62, 8')
    a('s_add_u32 s88, s88, s70')
    a(f'v_add_u32 v{XA}, s88, v{XA}')
    a(f'v_lshl_add_u32 v{HA}, v4, 1, v3')
    a(f'v_lshlrev_b32 v{HA}, 4, v{HA}')
    a('s_lshl_b32 s89, s62, 9')
    a('s_add_u32 s89, s89, s66')
    a('s_add_u32 s89, s89, 16')
    a(f'v_add_u32 v{HA}, s89, v{HA}')
    a('s_sub_u32 s89, s70, s69')
    a('s_add_u32 s89, s89, %d' % (3 * 4640 + 4088 - 1536))
    a('v_sub_u32 v11, s89, v5')
    a('s_lshl_b32 s90, s60, 12')
    a('s_add_u32 s91, s90, %d' % CV_RED)
    a('s_xor_b32 s90, s90, 0x1000')
    a('s_add_u32 s90, s90, %d' % CV_RED)
    a('v_add_u32 v62, s91, v6')
    a('v_add_u32 v63, s90, v6')
    a('s_mov_b32 s92, 0xffff0000')
    stamp(a, 2, VS)
    a('s_waitcnt vmcnt(%d) lgkmcnt(0)' % (13 if PF_W1 else 12))
    a('s_barrier')
    stamp(a, 3, VS)
    FH = [64, 128]; FX = [96, 160]; ACC = 192
    def rdH(s, ri, aa): return f'ds_read_b128 {Q(FH[s]+4*aa)}, v{HA} offset:{128*(8*aa+ri)}'
    def rdX(s, ri, bb): return f'ds_read_b128 {Q(FX[s]+4*bb)}, v{XA} offset:{64*(56-8*bb+ri)}'
    inited = [False] * 8
    def mf(s, aa, bb):
        nb = aa + bb
        c = Q(ACC + 4 * nb)
        src = c if inited[nb] else '0'
        inited[nb] = True
        return f'v_mfma_f32_16x16x32_bf16 {c}, {Q(FX[s]+4*bb)}, {Q(FH[s]+4*aa)}, {src}'
    pairs = sorted([(aa, bb) for aa in range(8) for bb in range(8) if aa + bb <= 7], key=lambda p: (max(p), p))
    queue = []
    def issue(txt, tag):
        a(txt); queue.append(tag)
    def need(tags):
        idx = max(queue.index(t) for t in tags)
        n = len(queue) - 1 - idx
        return n
    lastwait = [99, 0]
    done = [0]
    def wait_for(tags):
        idx = max(queue.index(t) for t in tags) + 1
        if idx > done[0]:
            n = len(queue) - idx
            a(f's_waitcnt lgkmcnt({min(n, 15)})')
            done[0] = len(queue) - min(n, 15)
    todo = []
    for ri in range(4):
        for x in range(8):
            todo.append((rdH(ri & 1, ri, x), ('H', ri, x)))
            todo.append((rdX(ri & 1, ri, x), ('X', ri, x)))
    for _ in range(12):
        issue(*todo.pop(0))
    for ri in range(4):
        s = ri & 1
        for n, (aa, bb) in enumerate(pairs):
            wait_for([('H', ri, aa), ('X', ri, bb)])
            a(mf(s, aa, bb))
            if todo and todo[0][1][1] <= ri + 1 and (n % 2 == 0 or todo[0][1][1] == ri):
                issue(*todo.pop(0))
    stamp(a, 4, VS)
    KVR = 56
    a('s_lshl_b32 s90, s61, 4')
    a('s_lshr_b32 s67, s67, s90')
    a('s_lshl_b32 s67, s67, 16')
    a('s_cmp_eq_u32 s62, 0')
    a('s_cbranch_scc0 conv_h1')
    for t in range(4):
        a(f'ds_write_b128 v62, {Q(ACC+16+4*t)} offset:{1024*t}')
    a('s_branch conv_join')
    a('conv_h1:')
    a('s_nop 4')
    for t in range(4):
        a(f'ds_write_b128 v62, {Q(ACC+4*t)} offset:{1024*t}')
    a('s_waitcnt lgkmcnt(0)')
    for r in range(16):
        a(f'v_mov_b32 v{ACC+r}, v{ACC+16+r}')
    a('conv_join:')
    for t in range(4):
        a(f'ds_read_b64 {P(96+2*t)}, v11 offset:{512*(3-t)}')
    a('s_waitcnt vmcnt(0)')
    XF = 112
    for t in range(4):
        a(f'v_lshlrev_b32 v{XF+4*t}, 16, v{XV+2*t}')
        a(f'v_and_b32 v{XF+4*t+1}, s92, v{XV+2*t}')
        a(f'v_lshlrev_b32 v{XF+4*t+2}, 16, v{XV+2*t+1}')
        a(f'v_and_b32 v{XF+4*t+3}, s92, v{XV+2*t+1}')
    a('s_waitcnt lgkmcnt(0)')
    a('s_barrier')
    stamp(a, 5, VS)
    PR = 64
    for t in range(4):
        a(f'ds_read_b128 {Q(PR+4*t)}, v63 offset:{1024*t}')
    for r in range(16):
        a(f'v_fma_f32 v{RS+r}, v{XF+r}, v{RS+r}, v{MR+r}')
    for t in range(4):
        a(f'v_and_b32 v{MR+4*t}, s92, v{97+2*t}')
        a(f'v_lshlrev_b32 v{MR+4*t+1}, 16, v{97+2*t}')
        a(f'v_and_b32 v{MR+4*t+2}, s92, v{96+2*t}')
        a(f'v_lshlrev_b32 v{MR+4*t+3}, 16, v{96+2*t}')
    for r in range(16):
        a(f'v_fmac_f32 v{ACC+r}, s67, v{MR+r}')
    for t in range(4):
        a(f's_waitcnt lgkmcnt({3-t})')
        for r in range(4):
            a(f'v_add_f32 v{ACC+4*t+r}, v{ACC+4*t+r}, v{PR+4*t+r}')
        for r in range(4):
            a(f'v_fmac_f32 v{XF+4*t+r}, v{RS+4*t+r}, v{ACC+4*t+r}')
        a(f'v_cvt_pk_bf16_f32 v{88+2*t}, v{XF+4*t}, v{XF+4*t+1}')
        a(f'v_cvt_pk_bf16_f32 v{89+2*t}, v{XF+4*t+2}, v{XF+4*t+3}')
        a(f'buffer_store_dwordx2 {P(88+2*t)}, v12, s[{HT}:{HT+3}], s74 offen')
        if t < 3: a('s_add_u32 s74, s74, 0x40000')
    stamp(a, 6, VS)
    stamp_end(a, 7, VS, 1, 228)
    a('s_endpgm')

    WG, WU, WD, W1F, WDF = 20, 24, 28, 32, 36
    a('fmt_begin:')
    a.flush_hist()
    a('s_cmp_ge_u32 s2, %d' % (256 + NFMT))
    a('s_cbranch_scc1 conv_end')
    stamp_begin(a, VS)
    a('s_load_dwordx4 s[8:11], s[0:1], 56')
    a('s_load_dwordx2 s[12:13], s[0:1], 72')
    a('s_load_dwordx2 s[14:15], s[0:1], 96')
    a('v_lshrrev_b32 v1, 6, v0')
    a('v_and_b32 v2, 63, v0')
    a('v_readfirstlane_b32 s60, v1')
    a('s_sub_u32 s77, s2, 256')
    a('s_mul_hi_u32 s78, s77, %d' % (2**32 // 28 + 1))
    a('s_mul_i32 s79, s78, 28')
    a('s_sub_u32 s79, s77, s79')
    a('v_and_b32 v7, 7, v2')
    a('v_lshrrev_b32 v13, 3, v2')
    a('v_mul_u32_u24 v13, 3584, v13')
    a('v_lshl_add_u32 v13, v7, 4, v13')
    a('s_lshl_b32 s80, s78, 6')
    a('s_lshl_b32 s81, s60, 4')
    a('s_add_u32 s80, s80, s81')
    a('s_mul_i32 s80, s80, 3584')
    a('s_lshl_b32 s81, s79, 7')
    a('s_add_u32 s80, s80, s81')
    a('s_add_u32 s81, s80, %d' % (8 * 3584))
    a('s_lshl_b32 s82, s60, 11')
    a('v_lshrrev_b32 v14, 5, v2')
    a('v_lshlrev_b32 v14, 10, v14')
    a('v_and_b32 v15, 31, v2')
    a('v_lshl_add_u32 v14, v15, 4, v14')
    a('s_lshr_b32 s84, s77, 1')
    a('s_and_b32 s85, s77, 1')
    a('s_lshl_b32 s86, s84, 14')
    a('s_lshl_b32 s87, s85, 9')
    a('s_add_u32 s86, s86, s87')
    a('s_lshl_b32 s87, s60, 12')
    a('s_add_u32 s86, s86, s87')
    a('s_add_u32 s87, s86, 2048')
    a('s_add_u32 m0, s82, %d' % FM_W1)
    a('s_waitcnt lgkmcnt(0)')
    srd(a, WG, 8, 512 * 3584)
    a(f'buffer_load_dwordx4 v13, s[{WG}:{WG+3}], s80 offen lds')
    a('s_add_u32 m0, m0, 1024')
    srd(a, WU, 10, 512 * 3584)
    a(f'buffer_load_dwordx4 v13, s[{WG}:{WG+3}], s81 offen lds')
    a('s_add_u32 m0, m0, %d' % (8192 - 1024))
    a(f'buffer_load_dwordx4 v13, s[{WU}:{WU+3}], s80 offen lds')
    a('s_add_u32 m0, m0, 1024')
    srd(a, WD, 12, 1792 * 1024)
    a(f'buffer_load_dwordx4 v13, s[{WU}:{WU+3}], s81 offen lds')
    a('s_add_u32 m0, s82, %d' % FM_WD)
    a(f'buffer_load_dwordx4 v14, s[{WD}:{WD+3}], s86 offen lds')
    a('s_add_u32 m0, m0, 1024')
    a(f'buffer_load_dwordx4 v14, s[{WD}:{WD+3}], s87 offen lds')
    srd(a, W1F, 14, 16 * W1F_NT, WS_W1F)
    srd(a, WDF, 14, 1792 * 1024, WS_WDF)
    a('v_and_b32 v3, 15, v2')
    a('v_lshrrev_b32 v4, 4, v2')
    a('v_lshlrev_b32 v6, 4, v2')
    a('v_lshrrev_b32 v20, 2, v3')
    a('v_and_b32 v21, 3, v3')
    a('v_lshrrev_b32 v22, 1, v4')
    a('v_and_b32 v23, 1, v4')
    a('v_lshl_add_u32 v24, v22, 3, v20')
    a('v_lshlrev_b32 v24, 7, v24')
    a('v_lshl_add_u32 v24, v23, 13, v24')
    a('v_lshl_add_u32 v24, v21, 3, v24')
    a('s_lshl_b32 s90, s60, 5')
    a('v_add_u32 v24, s90, v24')
    a('v_lshl_add_u32 v25, v22, 2, v20')
    a('v_lshlrev_b32 v25, 9, v25')
    a('v_lshl_add_u32 v25, v23, 5, v25')
    a('v_lshl_add_u32 v25, v21, 3, v25')
    a('s_lshl_b32 s90, s60, 7')
    a('v_add_u32 v25, s90, v25')
    a('s_lshl_b32 s90, s79, 2')
    a('s_add_u32 s90, s90, s60')
    a('s_mul_hi_u32 s91, s90, %d' % (2**32 // 7 + 1))
    a('s_mul_i32 s93, s91, 7')
    a('s_sub_u32 s93, s90, s93')
    a('s_mul_i32 s91, s91, %d' % W1F_NT)
    a('s_lshl_b32 s40, s93, 10')
    a('s_add_u32 s91, s91, s40')
    a('s_mul_i32 s43, s78, %d' % (4 * 7168))
    a('s_add_u32 s43, s43, s91')
    a('s_movk_i32 s42, 7168')
    a('s_lshr_b32 s95, s78, 2')
    a('s_lshl_b32 s95, s95, 9')
    a('s_and_b32 s44, s78, 3')
    a('s_lshl_b32 s44, s44, 2')
    a('s_add_u32 s95, s95, s44')
    a('s_add_u32 s95, s95, s91')
    a('s_add_u32 s95, s95, %d' % (32 * 7168))
    a('s_lshl_b32 s94, s85, 2')
    a('s_add_u32 s94, s94, s60')
    a('s_mul_i32 s94, s94, 112')
    a('s_add_u32 s94, s94, s84')
    a('s_lshl_b32 s94, s94, 11')
    a('v_mov_b32 v30, 0')
    a('v_mov_b32 v31, 0')
    a('s_mov_b32 s45, 0x3f803f80')
    stamp(a, 1, VS)
    a('s_waitcnt vmcnt(0)')
    a('s_barrier')
    stamp(a, 2, VS)
    FF, FD = 32, 48
    for ks in range(4):
        a(f'ds_read_b64_tr_b16 {P(FF+4*ks)}, v24 offset:{FM_W1+2048*ks}')
        a(f'ds_read_b64_tr_b16 {P(FF+4*ks+2)}, v24 offset:{FM_W1+2048*ks+512}')
    for x in range(2):
        a(f'ds_read_b64_tr_b16 {P(FD+4*x)}, v25 offset:{FM_WD+64*x}')
        a(f'ds_read_b64_tr_b16 {P(FD+4*x+2)}, v25 offset:{FM_WD+64*x+4096}')
    for ks in range(4):
        a(f's_waitcnt lgkmcnt({10-2*ks})')
        a(f'buffer_store_dwordx4 {Q(FF+4*ks)}, v6, s[{W1F}:{W1F+3}], s43 offen')
        a('s_add_u32 s43, s43, s42')
        for w in range(4):
            a(f'v_dot2c_f32_bf16 v{30+(w&1)}, s45, v{FF+4*ks+w}')
    a('s_waitcnt lgkmcnt(0)')
    a(f'buffer_store_dwordx4 {Q(FD)}, v6, s[{WDF}:{WDF+3}], s94 offen')
    a(f'buffer_store_dwordx4 {Q(FD+4)}, v6, s[{WDF}:{WDF+3}], s94 offen offset:1024')
    a('s_nop 2')
    a('v_add_f32 v30, v30, v31')
    a('v_mov_b32 v31, v30')
    a('v_permlane32_swap_b32 v30, v31')
    a('v_add_f32 v30, v30, v31')
    rne(a, 31, 30)
    a('v_sub_f32 v30, v30, v31')
    a('v_cvt_pk_bf16_f32 v30, v31, v30')
    a('s_mov_b32 exec_hi, 0')
    a(f'buffer_store_dword v30, v6, s[{W1F}:{W1F+3}], s95 offen')
    stamp(a, 3, VS)
    stamp_end(a, 4, VS, 1, 228)
    a('conv_end:')
    a('s_endpgm')
    return name, 232, 102, None

G1_SLOT = 22528
G1_NS = 7
G1_RING = G1_SLOT * G1_NS
FF_FLG = G1_RING
FF_LDS = FF_FLG + 512
FF_WD = 3 * G1_SLOT
FF_WD2 = 5 * G1_SLOT
FF_H = FF_WD + 40960
FF_RED = 0
BARS = {0: 3, 2: 5, 4: 7, 6: 9, 8: 11, 10: 13, 12: 15, 14: 18}
RK = 18
LK = 10
SC = ' sc1'
NOSTAT = 0
BAR14 = 1
BARGAP = 3
XALIGN = 0
XPAD = 0
PACE = 0
XPRIO = 0
NOBAR = 0
NODMA = 0

def epi_tile(g, T, C1, IR2):
    u = g + 8
    L = []
    for e in range(0, 8, 2): L.append(f'v_pk_mul_f32 {P(T+e)}, {P(g+e)}, {P(C1)}')
    for e in range(8): L.append(f'v_exp_f32 v{T+e}, v{T+e}')
    for e in range(0, 8, 2): L.append(f'v_pk_mul_f32 {P(g+e)}, {P(g+e)}, {P(u+e)}')
    for e in range(0, 8, 2): L.append(f'v_pk_fma_f32 {P(T+e)}, {P(T+e)}, {P(IR2)}, {P(IR2)}')
    for e in range(8): L.append(f'v_rcp_f32 v{T+e}, v{T+e}')
    for e in range(0, 8, 2): L.append(f'v_pk_mul_f32 {P(g+e)}, {P(g+e)}, {P(T+e)}')
    for w in range(4): L.append(f'v_cvt_pk_bf16_f32 v{T+8+w}, v{g+2*w}, v{g+2*w+1}')
    return L

def gen_ffn(a):
    name = 'ffn_kernel'
    begin(a, name)
    W1F, HT, WS, OUT = 8, 12, 16, 40
    a('s_cmp_ge_u32 s2, 256')
    a('s_cbranch_scc1 ff_end')
    a('s_load_dwordx2 s[4:5], s[0:1], 96')
    a('s_load_dwordx2 s[6:7], s[0:1], 80')
    a('v_lshrrev_b32 v1, 6, v0')
    a('v_and_b32 v2, 63, v0')
    a('v_readfirstlane_b32 s46, v1')
    a('s_and_b32 s21, s2, 1')
    a('s_lshl_b32 s21, s21, 3')
    a('s_bfe_u32 s27, s2, 0x30003')
    a('s_add_u32 s21, s21, s27')
    a('s_bfe_u32 s22, s2, 0x20001')
    a('s_lshl_b32 s22, s22, 2')
    a('s_lshr_b32 s23, s2, 6')
    a('s_add_u32 s22, s22, s23')
    a('s_and_b32 s20, s46, 3')
    a('v_lshlrev_b32 v3, 4, v2')
    a('s_cmp_ge_u32 s46, 4')
    a('s_cbranch_scc1 ff_ld')
    VS = 250
    stamp_begin(a, VS)
    a('v_lshlrev_b32 v9, 1, v0')
    a('v_add_u32 v9, %d, v9' % FF_FLG)
    a('v_mov_b32 v8, -1')
    a('ds_write_b16 v9, v8')
    a('v_lshrrev_b32 v5, 4, v2')
    a('v_and_b32 v6, 15, v2')
    a('v_lshrrev_b32 v12, 2, v6')
    a('v_and_b32 v13, 3, v6')
    a('s_waitcnt lgkmcnt(0)')
    a('s_barrier')
    a('v_lshrrev_b32 v14, 1, v5')
    a('v_and_b32 v15, 1, v5')
    a('v_lshl_add_u32 v11, v14, 3, v12')
    a('v_lshlrev_b32 v11, 8, v11')
    a('v_xor_b32 v12, s20, v12')
    a('v_lshl_add_u32 v11, v12, 6, v11')
    a('v_lshl_add_u32 v11, v15, 5, v11')
    a('v_lshl_add_u32 v11, v13, 3, v11')
    a('v_add_u32 v11, 14336, v11')
    a('v_mov_b32 v10, v3')
    a('v_lshlrev_b32 v8, 2, v13')
    a('v_add_u32 v8, %d, v8' % FF_FLG)
    a('s_lshl_b32 s37, s21, 2')
    a('s_add_u32 s37, s37, s20')
    a('s_mul_i32 s37, s37, 112')
    a('s_mul_i32 s38, s22, 7')
    a('s_add_u32 s37, s37, s38')
    a('s_lshl_b32 s37, s37, 10')
    a('s_add_u32 s37, s37, %d' % WS_ACT)
    a('s_lshl_b32 s38, s21, 1')
    a('s_lshr_b32 s39, s20, 1')
    a('s_add_u32 s38, s38, s39')
    a('s_lshl_b32 s38, s38, 7')
    a('s_lshl_b32 s39, s22, 3')
    a('s_add_u32 s38, s38, s39')
    a('s_and_b32 s39, s20, 1')
    a('s_lshl_b32 s39, s39, 2')
    a('s_add_u32 s38, s38, s39')
    a('s_add_u32 s38, s38, %d' % WS_GF)
    WF = [32, 60]; HF = [88, 92, 216, 220]; ACC = 96
    S1, S2, PV = 16, 18, 24
    for r in range(112):
        a(f'v_mov_b32 v{ACC+r}, 0')
    for r in range(4):
        a(f'v_mov_b32 v{S1+r}, 0')
    a('s_mov_b32 s34, 0xffff0000')
    a('s_mov_b32 s35, %d' % G1_SLOT)
    a('s_mov_b32 s33, 0')
    a('s_mov_b32 s32, %d' % sum(1 << k for k in BARS))
    a('s_mov_b32 s30, %d' % (-(G1_RING - G1_SLOT) & 0xffffffff))
    a('s_mov_b32 s31, %d' % G1_SLOT)
    srd(a, WS, 4, WS_END)
    def rdW(s, f): return f'ds_read_b128 {Q(WF[s]+4*f)}, v10 offset:{7168*s+1024*f}'
    def rdH(h, s): return [f'ds_read_b64_tr_b16 {P(h)}, v11 offset:{4096*s}', f'ds_read_b64_tr_b16 {P(h+2)}, v11 offset:{4096*s+1024}']
    def stats(h):
        U = []; A = []
        for w in range(4):
            t = 208 + 2 * w
            U.append([f'v_lshlrev_b32 v{t}, 16, v{h+w}', f'v_and_b32 v{t+1}, s34, v{h+w}'])
            A.append([f'v_add_f32 v{S1}, v{S1}, v{t}', f'v_fmac_f32 v{S2}, v{t}, v{t}', f'v_add_f32 v{S1+1}, v{S1+1}, v{t+1}', f'v_fmac_f32 v{S2+1}, v{t+1}, v{t+1}'])
        return U[0] + U[1] + A[0] + U[2] + A[1] + U[3] + A[2] + A[3]
    def mfma(s, f, h=None):
        h = HF[s] if h is None else h
        return f'v_mfma_f32_32x32x16_bf16 v[{ACC+16*f}:{ACC+16*f+15}], {Q(WF[s]+4*f)}, {Q(h)}, v[{ACC+16*f}:{ACC+16*f+15}]'
    stamp(a, 1, VS)
    if XPRIO: a(f's_setprio {XPRIO}')
    a('s_mov_b32 s44, 0')
    a('ff_x0:')
    a(f'ds_read_b32 v{PV}, v8')
    a('s_add_u32 s44, s44, 1')
    a('s_cmp_gt_u32 s44, 0x100000')
    a('s_cbranch_scc1 ff_x1')
    a('s_waitcnt lgkmcnt(0)')
    a(f'v_cmp_ne_u32 vcc, 0, v{PV}')
    a('s_cbranch_vccnz ff_x0')
    a('ff_x1:')
    stamp(a, 2, VS)
    for x in rdH(HF[0], 0): a(x)
    for f in range(7): a(rdW(0, f))
    a(f'ds_read_b32 v{PV}, v8 offset:16')
    for x in rdH(HF[1], 1): a(x)
    for f in range(7): a(rdW(1, f))
    a('v_add_u32 v10, %d, v10' % G1_SLOT)
    a('v_add_u32 v11, %d, v11' % G1_SLOT)
    a('ff_loop:')
    for ks in range(4):
        s = ks & 1; h = HF[ks]; hn = HF[(ks + 2) % 4]; st2 = ks // 2
        S = stats(h) if not NOSTAT else []
        ex = [[] for _ in range(7)]
        rh = rdH(hn, s)
        if s == 0:
            ex[0] = [f'v_cmp_ne_u32 vcc, 0, v{PV}', f's_cbranch_vccnz ff_xspin{st2}\nff_xgo{st2}:']
            ex[1] = [rh[0]]; ex[2] = [rh[1]]
            ex[3] = ['s_add_u32 s35, s35, %d' % G1_SLOT]; ex[4] = ['s_cmp_eq_u32 s35, %d' % G1_RING]; ex[5] = ['s_cselect_b32 s36, s30, s31']
            if ks == 0: ex[BARGAP] = ['s_barrier'] + ex[BARGAP]
        else:
            ex[0] = [f'ds_read_b32 v{PV}, v8 offset:{32+16*st2}']
            ex[1] = [rh[0]]; ex[2] = [rh[1], 's_cselect_b32 s35, 0, s35']
            ex[3] = ['v_add_u32 v11, s36, v11']
            if ks == 3:
                ex[4] = ['s_add_u32 s33, s33, 2', 'v_add_u32 v8, 32, v8']; ex[5] = ['s_cmp_lt_u32 s33, 16']
            ex[6] = ['v_add_u32 v10, s36, v10']
        tot = [1 + len(e) for e in ex]; tot[6] += 1 + (3 if ks == 3 else 0)
        if ks == 0: tot[BARGAP] += 2
        cnts = [0] * 7
        for _ in range(len(S)):
            i = min(range(7), key=lambda j: (tot[j] + cnts[j], j)); cnts[i] += 1
        k = 0
        a('s_waitcnt lgkmcnt(9)')
        for f in range(7):
            a(mfma(s, f, h))
            for x in (ex[f] + [rdW(s, f)] if f == 0 else [rdW(s, f)] + ex[f]): a(x)
            for x in S[k:k+cnts[f]]: a(x)
            k += cnts[f]
    a('s_cbranch_scc1 ff_loop')
    stamp(a, 3, VS)
    if STAMP: a(f'v_writelane_b32 v{VS}, s44, 13')
    a(f'v_add_f32 v{S1}, v{S1}, v{S1+1}')
    a(f'v_add_f32 v{S2}, v{S2}, v{S2+1}')
    a(f'v_mov_b32 v{S1+1}, v{S1}')
    a(f'v_mov_b32 v{S2+1}, v{S2}')
    a(f'v_permlane32_swap_b32 v{S1}, v{S1+1}')
    a(f'v_permlane32_swap_b32 v{S2}, v{S2+1}')
    a(f'v_add_f32 v{S1}, v{S1}, v{S1+1}')
    a(f'v_add_f32 v{S2}, v{S2}, v{S2+1}')
    a(f'v_mul_f32 v{S1}, 0xbb000000, v{S1}')
    a(f'v_mul_f32 v{S2}, 0x3b000000, v{S2}')
    a('s_waitcnt lgkmcnt(0)')
    for w in range(4):
        a(f'v_cvt_pk_bf16_f32 v{HF[0]+w}, v{S1}, v{S1}')
    a(f'v_fma_f32 v{S2}, -v{S1}, v{S1}, v{S2}')
    a(f'v_max_f32 v{S2}, 0, v{S2}')
    C1, IR2 = 24, 26
    b = Asm()
    ln_sigma(b, S2, C1)
    b(f'v_mul_f32 v{IR2}, v{S2}, v{S2}')
    b(f'v_mul_f32 v{C1}, 0xbfb8aa3b, v{C1}')
    b(f'v_mov_b32 v{IR2+1}, v{IR2}')
    b(f'v_mov_b32 v{C1+1}, v{C1}')
    fin = [l.strip() for l in b.lines if not l.strip().startswith('s_nop')]
    ep = [epi_tile(ACC + 16 * f, 64 + 16 * (f & 1), C1, IR2) for f in range(7)]
    a(mfma(0, 0))
    for x in fin[:5]: a(x)
    a(mfma(0, 1))
    for x in fin[5:10]: a(x)
    a(mfma(0, 2))
    for x in fin[10:]: a(x)
    e0 = ep[0]
    for f in range(3, 7):
        a(mfma(0, f))
        for x in e0[4*(f-3):4*(f-3)+4]: a(x)
    ep[0] = e0[16:]
    for f in range(7):
        T = 64 + 16 * (f & 1)
        for x in ep[f]: a(x)
        a(f'buffer_store_dwordx4 {Q(T+8)}, v3, s[{WS}:{WS+3}], s37 offen offset:{1024*(f&3)}{SC}')
        if f == 3: a('s_add_u32 s37, s37, 4096')
    stamp(a, 4, VS)
    a('v_mov_b32 v4, 1')
    a('v_mov_b32 v5, 0')
    a('s_waitcnt vmcnt(0)')
    a('s_mov_b64 exec, 1')
    a(f'buffer_store_dword v4, v5, s[{WS}:{WS+3}], s38 offen sc1')
    stamp(a, 5, VS)
    stamp_end(a, 6, VS, 2, 248)
    a('s_endpgm')
    for st2 in range(2):
        a(f'ff_xspin{st2}:')
        a(f'ds_read_b32 v{PV}, v8 offset:{16+16*st2}')
        a('s_add_u32 s44, s44, 1')
        a('s_cmp_gt_u32 s44, 0x100000')
        a('s_waitcnt lgkmcnt(0)')
        a(f's_cbranch_scc1 ff_xgo{st2}')
        a(f'v_cmp_ne_u32 vcc, 0, v{PV}')
        a(f's_cbranch_vccnz ff_xspin{st2}')
        a(f's_branch ff_xgo{st2}')
    a('ff_ld:')
    a.flush_hist()
    VS = 1
    stamp_begin(a, VS)
    a('s_mul_i32 s28, s22, %d' % W1F_NT)
    a('s_mul_i32 s24, s20, 3584')
    a('v_add_u32 v4, s24, v3')
    a('s_lshl_b32 s25, s21, 17')
    a('s_lshl_b32 s26, s20, 11')
    a('v_add_u32 v7, s26, v3')
    a('s_add_u32 s26, s26, 14336')
    a('s_mov_b32 s30, 0')
    a('s_mov_b32 s31, 0')
    a('s_lshl_b32 s29, s20, 2')
    a('s_add_u32 s29, s29, %d' % FF_FLG)
    a('s_mov_b32 s47, 0x7f000000')
    a('s_mov_b32 m0, s26')
    a('s_waitcnt lgkmcnt(0)')
    srd(a, HT, 4, 131072, WS_HT, offreg=25)
    srd(a, W1F, 4, 33 * 7168, WS_W1F, offreg=28)
    a_real = a
    class Filt:
        def __call__(self, t):
            if NODMA and t.startswith('buffer_load_dwordx4') and t.endswith('lds'):
                if NODMA == 2: a_real(t.replace('buffer_load_dwordx4 ', 'buffer_load_dwordx4 v[112:115], ').replace(' lds', ''))
                return
            a_real(t)
    def pace():
        if PACE: a(f's_waitcnt vmcnt({PACE})')
    def dma(j, a=Filt()):
        slot = (j % G1_NS) * G1_SLOT
        if j < 16:
            if j: a('s_add_u32 m0, s26, %d' % slot)
            pace()
            a(f'buffer_load_dwordx4 v7, s[{HT}:{HT+3}], s31 offen lds')
            pace()
            a(f'buffer_load_dwordx4 v7, s[{HT}:{HT+3}], s31 offen offset:1024 lds')
        a('s_add_u32 m0, s24, %d' % slot)
        a('s_add_u32 s31, s31, 8192')
        pace()
        a(f'buffer_load_dwordx4 v4, s[{W1F}:{W1F+3}], s30 offen lds')
        pace()
        a(f'buffer_load_dwordx4 v4, s[{W1F}:{W1F+3}], s30 offen offset:1024 lds')
        pace()
        a(f'buffer_load_dwordx4 v4, s[{W1F}:{W1F+3}], s30 offen offset:2048 lds')
        a('s_mov_b32 exec_hi, 0')
        pace()
        a(f'buffer_load_dwordx4 v4, s[{W1F}:{W1F+3}], s30 offen offset:3072 lds')
        if j == 0: a('s_barrier')
        a('s_add_u32 m0, s29, %d' % (16 * j))
        a('s_mov_b32 exec_lo, 1')
        a('s_add_u32 s30, s30, 14336')
        a(f'buffer_load_dword v4, s[{W1F}:{W1F+3}], s47 offen lds')
        a('s_mov_b64 exec, -1')
        if j >= 6 and not PACE: a('s_waitcnt vmcnt(49)')
    stamp(a, 1, VS)
    pos2s = {p: st for st, p in BARS.items()}
    allowed = G1_NS - 1
    for j in range(17):
        assert j <= allowed, (j, allowed)
        dma(j)
        if j == 1:
            a('s_and_b32 s48, s2, 7')
            a('s_lshl_b32 s48, s48, 2')
            a('s_bfe_u32 s49, s2, 0x20003')
            a('s_add_u32 s48, s48, s49')
            a('s_lshr_b32 s49, s2, 5')
            a('s_mul_i32 s50, s48, 224')
            a('s_mul_i32 s52, s20, 28')
            a('s_add_u32 s50, s50, s52')
            a('s_lshl_b32 s50, s50, 10')
            a('s_add_u32 s50, s50, %d' % WS_ACT)
            a('s_mul_i32 s51, s49, 112')
            a('s_add_u32 s51, s51, s52')
            a('s_lshl_b32 s51, s51, 11')
            a('s_add_u32 s51, s51, %d' % WS_WDF)
            if ROT2:
                a('s_mul_i32 s53, s49, 7')
                a('s_lshr_b32 s53, s53, 1')
                a('s_lshl_b32 s53, s53, 10')
            else:
                a('s_mov_b32 s53, 0')
            a('s_lshl_b32 s54, s53, 1')
            a('s_lshr_b32 s56, s20, 1')
            a('s_and_b32 s57, s20, 1')
            a('s_lshl_b32 s58, s56, 10')
            a('v_add_u32 v8, s58, v3')
            a('v_xor_b32 v9, 0x400, v8')
            a('s_mul_i32 s58, s57, 0x1c000')
            a('v_add_u32 v10, s58, v3')
            a('v_xor_b32 v11, 0x1c000, v10')
            srd(a, WS, 4, WS_END)
            srd(a, OUT, 6, 2 * MiB)
        if j in pos2s:
            a('s_barrier')
            allowed = max(allowed, pos2s[j] - 1 + G1_NS)
    stamp(a, 2, VS)
    wd_next = 's_add_u32 s54, s54, 2048\ns_cmp_eq_u32 s54, 57344\ns_cselect_b32 s54, 0, s54\ns_add_u32 s55, s51, s54'
    order = []
    ACC = 16
    WDR = 112
    a('s_add_u32 s55, s51, s54')
    wreg = {}
    for k in range(RK):
        wreg[k] = WDR + 8 * k
        a(f'buffer_load_dwordx4 {Q(wreg[k])}, v8, s[{WS}:{WS+3}], s55 offen')
        a(f'buffer_load_dwordx4 {Q(wreg[k]+4)}, v9, s[{WS}:{WS+3}], s55 offen')
        a(wd_next)
        if k % 4 == 3 or PACE: a('s_waitcnt vmcnt(%d)' % (PACE - 1 if PACE else 50))
        if k == BAR14: a('s_barrier')
    a('s_mul_i32 s58, s20, 10240')
    a('s_add_u32 s58, s58, %d' % FF_WD)
    a('s_mov_b32 m0, s58')
    for k in range(LK):
        a(f'buffer_load_dwordx4 v8, s[{WS}:{WS+3}], s55 offen lds')
        a('s_add_u32 m0, m0, 1024')
        a(f'buffer_load_dwordx4 v9, s[{WS}:{WS+3}], s55 offen lds')
        a('s_add_u32 m0, m0, %d' % (1024 if k != 4 else FF_WD2 - FF_WD - 9216))
        a(wd_next)
        if k % 4 == 3 or PACE: a('s_waitcnt vmcnt(%d)' % (PACE - 1 if PACE else 50))
    a('v_add_u32 v12, s58, v3')
    a('v_lshrrev_b32 v5, 3, v2')
    a('v_and_b32 v6, 7, v2')
    a('s_and_b32 s59, s48, 1')
    a('s_lshl_b32 s59, s59, 3')
    a('v_or_b32 v6, s59, v6')
    a('v_and_b32 v7, 3, v5')
    a('v_lshlrev_b32 v7, 2, v7')
    a('v_xor_b32 v6, v6, v7')
    a('v_lshlrev_b32 v5, 8, v5')
    a('v_lshl_add_u32 v5, v6, 4, v5')
    a('s_lshl_b32 s59, s49, 14')
    a('s_lshl_b32 s60, s20, 12')
    a('s_add_u32 s59, s59, s60')
    a('s_lshr_b32 s60, s48, 1')
    a('s_lshl_b32 s60, s60, 17')
    a('s_add_u32 s59, s59, s60')
    a('s_add_u32 s59, s59, %d' % WS_HT)
    a('s_add_u32 s60, s59, 0x800')
    a('s_lshl_b32 s61, s57, 11')
    a('s_mul_i32 s64, s56, %d' % (FF_WD2 - FF_WD))
    a('s_add_u32 s61, s61, s64')
    a('s_add_u32 m0, s61, %d' % FF_H)
    a(f'buffer_load_dwordx4 v5, s[{WS}:{WS+3}], s59 offen lds')
    a('s_add_u32 m0, m0, 1024')
    a(f'buffer_load_dwordx4 v5, s[{WS}:{WS+3}], s60 offen lds')
    a('v_and_b32 v4, 15, v2')
    a('v_lshrrev_b32 v5, 4, v2')
    a('v_lshrrev_b32 v6, 2, v4')
    a('v_and_b32 v7, 3, v4')
    a('v_lshrrev_b32 v13, 1, v5')
    a('v_and_b32 v5, 1, v5')
    a('v_lshl_add_u32 v14, v13, 2, v6')
    a('v_lshlrev_b32 v14, 7, v14')
    a('v_lshl_add_u32 v14, v5, 5, v14')
    a('v_lshl_add_u32 v14, v7, 3, v14')
    a('s_lshl_b32 s60, s57, 6')
    a('s_add_u32 s59, s64, s60')
    a('s_add_u32 s59, s59, %d' % FF_H)
    a('v_add_u32 v14, s59, v14')
    a('v_and_b32 v15, 31, v2')
    a('v_lshlrev_b32 v15, 10, v15')
    a('v_lshl_add_u32 v15, v13, 4, v15')
    a('s_lshl_b32 s62, s48, 16')
    a('s_lshl_b32 s60, s57, 15')
    a('s_add_u32 s62, s62, s60')
    a('s_lshl_b32 s60, s49, 7')
    a('s_add_u32 s62, s62, s60')
    a('s_lshl_b32 s60, s56, 6')
    a('s_add_u32 s62, s62, s60')
    a('s_mov_b32 s63, 0xffff0000')
    a('s_lshl_b32 s59, s48, 7')
    a('s_lshl_b32 s60, s20, 5')
    a('s_add_u32 s59, s59, s60')
    a('s_add_u32 s59, s59, %d' % WS_GF)
    a('v_and_b32 v4, 7, v2')
    a('v_lshlrev_b32 v4, 2, v4')
    a('s_mov_b32 s60, 0')
    stamp(a, 3, VS)
    a('ff_poll:')
    a(f'buffer_load_dword v5, v4, s[{WS}:{WS+3}], s59 offen sc1')
    a('s_add_u32 s60, s60, 1')
    a('s_waitcnt vmcnt(0)')
    a('v_cmp_eq_u32 vcc, 0, v5')
    a('s_cbranch_vccz ff_ready')
    a('s_cmp_lt_u32 s60, 0x40000')
    a('s_sleep 2')
    a('s_cbranch_scc1 ff_poll')
    a('ff_ready:')
    stamp(a, 4, VS)
    for p in (1, 2, 3):
        a(f's_xor_b32 s33, s20, {p}')
        a('s_mul_i32 s33, s33, 12288')
        a(f'v_add_u32 v{3+p}, s33, v3')
    a('s_mul_i32 s33, s20, 12288')
    a('v_add_u32 v7, s33, v3')
    a('s_add_u32 s41, s50, s53') if False else None
    a('s_add_u32 s61, s50, s53')
    act_next = 's_add_u32 s53, s53, 1024\ns_cmp_eq_u32 s53, 28672\ns_cselect_b32 s53, 0, s53\ns_add_u32 s61, s50, s53'
    free = [80, 88, 96, 104]
    areg = {}
    order = []
    q = DsQ(a)
    nact = 0; nwl = RK
    DA = 6
    def issue(k_now):
        nonlocal nact, nwl
        while True:
            if nwl < 28 and nwl <= k_now + (3 if nwl < RK + LK else DA) and free and nwl <= nact:
                r = free.pop(0); wreg[nwl] = r
                if nwl < RK + LK:
                    lo = 2048 * ((nwl - RK) % 5) + (FF_WD2 - FF_WD) * ((nwl - RK) // 5)
                    q.op(f'ds_read_b128 {Q(r)}, v12 offset:{lo}', nwl)
                    q.op(f'ds_read_b128 {Q(r+4)}, v12 offset:{lo+1024}', nwl)
                else:
                    a(f'buffer_load_dwordx4 {Q(r)}, v8, s[{WS}:{WS+3}], s55 offen')
                    a(f'buffer_load_dwordx4 {Q(r+4)}, v9, s[{WS}:{WS+3}], s55 offen')
                    a(wd_next)
                    order.extend([nwl] * 2)
                nwl += 1
            elif nact < 28 and nact <= k_now + DA and free:
                r = free.pop(0); areg[nact] = r
                a(f'buffer_load_dwordx4 {Q(r)}, v10, s[{WS}:{WS+3}], s61 offen{SC}')
                a(f'buffer_load_dwordx4 {Q(r+4)}, v11, s[{WS}:{WS+3}], s61 offen{SC}')
                a(act_next)
                order.extend([nact] * 2)
                nact += 1
            else:
                break
    issue(0)
    RESR = None
    for k in range(28):
        last = max(i for i, o in enumerate(order) if o == k)
        a(f's_waitcnt vmcnt({len(order) - 1 - last})')
        if RK <= k < RK + LK: q.wait(k)
        for p in (3, 2, 1, 0):
            px, py = p >> 1, p & 1
            c = f'v[{ACC+16*p}:{ACC+16*p+15}]'
            a(f'v_mfma_f32_32x32x16_bf16 {c}, {Q(wreg[k]+4*px)}, {Q(areg[k]+4*py)}, {"0" if k == 0 else c}')
        free += [wreg[k], areg[k]]
        issue(k + 1)
        if k == 25:
            a('s_barrier')
            RESR = free.pop(0)
            for x in range(4):
                q.op(f'ds_read_b64_tr_b16 {P(RESR+2*x)}, v14 offset:{1024*x}', 'res')
    stamp(a, 5, VS)
    for p in (3, 2, 1):
        for j in range(4):
            q.op(f'ds_write_b128 v{3+p}, {Q(ACC+16*p+4*j)} offset:{FF_RED+(p-1)*4096+1024*j}', 'w')
    R = 224 if 224 != RESR and 232 != RESR else 192
    assert RESR not in (R, R + 8)
    q.wait('res')
    for x in range(4):
        a(f'v_lshlrev_b32 v{R+4*x}, 16, v{RESR+2*x}')
        a(f'v_and_b32 v{R+4*x+1}, s63, v{RESR+2*x}')
        a(f'v_lshlrev_b32 v{R+4*x+2}, 16, v{RESR+2*x+1}')
        a(f'v_and_b32 v{R+4*x+3}, s63, v{RESR+2*x+1}')
    for r in range(0, 16, 2):
        a(f'v_pk_add_f32 {P(R+r)}, {P(R+r)}, {P(ACC+r)}')
    a('s_waitcnt lgkmcnt(0)')
    a('s_barrier')
    stamp(a, 6, VS)
    for j in range(4):
        for p in range(3):
            a(f'ds_read_b128 {Q(32+16*p+4*j)}, v7 offset:{FF_RED+4096*p+1024*j}')
    for j in range(4):
        a(f's_waitcnt lgkmcnt({9-3*j})')
        for r in range(4*j, 4*j+4, 2):
            a(f'v_pk_add_f32 {P(R+r)}, {P(R+r)}, {P(32+r)}')
            a(f'v_pk_add_f32 {P(48+r)}, {P(48+r)}, {P(64+r)}')
        for r in range(4*j, 4*j+4, 2):
            a(f'v_pk_add_f32 {P(R+r)}, {P(R+r)}, {P(48+r)}')
        a(f'v_cvt_pk_bf16_f32 v{100+2*j}, v{R+4*j}, v{R+4*j+1}')
        a(f'v_cvt_pk_bf16_f32 v{101+2*j}, v{R+4*j+2}, v{R+4*j+3}')
        if j & 1:
            p = j >> 1
            a(f'v_permlane32_swap_b32 v{100+4*p}, v{102+4*p}')
            a(f'v_permlane32_swap_b32 v{101+4*p}, v{103+4*p}')
            a(f'buffer_store_dwordx4 {Q(100+4*p)}, v15, s[{OUT}:{OUT+3}], s62 offen offset:{32*p}')
    stamp(a, 7, VS)
    stamp_end(a, 8, VS, 2, 110)
    a('ff_end:')
    a('s_endpgm')
    return name, 256, 102, None

class DsQ:
    def __init__(self, a):
        self.a = a; self.q = []; self.done = 0
    def op(self, txt, tag=None):
        self.a(txt); self.q.append(tag)
    def wait(self, *tags):
        idx = max(len(self.q) - 1 - self.q[::-1].index(t) for t in tags) + 1
        if idx > self.done:
            n = min(len(self.q) - idx, 15)
            self.a(f's_waitcnt lgkmcnt({n})')
            self.done = len(self.q) - n

def main(out):
    a = Asm()
    ks = []
    launches = [('prep_kernel', 256, 512, 0), ('conv_kernel', 256 + NFMT, 256, CV_LDS), ('ffn_kernel', 256, 512, FF_LDS)]
    gens = [gen_prep, gen_conv, gen_ffn]
    if TLA >= 0:
        launches.append(('tl_kernel', 1, 64, 0)); gens.append(gen_tl)
    txt = HEADER
    for n, g, b, l in launches:
        txt += f'; @launch kernel={n} grid=({g},1,1) block=({b},1,1) lds={l}\n'
    txt += '.amdgcn_target "amdgcn-amd-amdhsa--gfx950"\n.text\n'
    for g in gens:
        ks.append(g(a))
    txt += a.text()
    txt += '.section .rodata,"a"\n'
    for n, v, s, acc in ks:
        txt += kernel_desc(n, v, s, acc)
    open(out, 'w').write(txt)

if __name__ == '__main__':
    for arg in sys.argv[2:]:
        if arg == 'stamp': STAMP = True
        elif '=' in arg:
            k, v = arg.split('='); globals()[k] = int(v, 0)
    main(sys.argv[1] if len(sys.argv) > 1 else 'sequential_preLN__ssm_conv_h3__swiglu_ffn__prompt.s')
```

```python
import sys
sys.path.insert(0, 'dev')
from asmlib import *

MiB = 1 << 20
CS = 4224
CHB = 512 * CS
WS_XR0 = 0
WS_XR1 = CHB
WS_XT = 2 * CHB
WS_ST = 3 * CHB
WS_GF = 3 * CHB + 32768
WS_HT = 3 * CHB + 65536
WS_W1F = WS_HT + 2 * MiB
W1F_NT = 232 * 1024
PF_FILT = 1
PF_CODE = 1
SC_HT = 0
SC_FMT = 1
PF_WD = 1
ROT1 = 0
ROT2 = 1
WS_WDF = WS_W1F + 16 * W1F_NT
WS_ACT = WS_WDF + 1792 * 1024
WS_END = WS_ACT + 7 * MiB
WS_DBG = 32 * MiB

HEADER = open('sequential_preLN__ssm_conv_h3__swiglu_ffn__prompt.s.ref').read().split('; Override launch')[0]

def srd(a, d, base, size, off=None, offreg=None):
    if off:
        a(f's_add_u32 s{d}, s{base}, {hex(off)}')
        a(f's_addc_u32 s{d+1}, s{base+1}, 0')
        if offreg is not None:
            a(f's_add_u32 s{d}, s{d}, s{offreg}')
            a(f's_addc_u32 s{d+1}, s{d+1}, 0')
    elif offreg is not None:
        a(f's_add_u32 s{d}, s{base}, s{offreg}')
        a(f's_addc_u32 s{d+1}, s{base+1}, 0')
    else:
        a(f's_mov_b32 s{d}, s{base}')
        a(f's_mov_b32 s{d+1}, s{base+1}')
    a(f's_mov_b32 s{d+2}, {hex(size)}')
    a(f's_mov_b32 s{d+3}, 0x20000')

STAMP = False
def stamp(a, i, vst):
    if not STAMP: return
    a('s_memtime s[98:99]')
    a('s_waitcnt lgkmcnt(0)')
    a(f'v_writelane_b32 v{vst}, s98, {i}')
def stamp_rt(a, i, vst):
    if not STAMP: return
    a('s_memrealtime s[98:99]')
    a('s_waitcnt lgkmcnt(0)')
    a(f'v_writelane_b32 v{vst}, s98, {i}')
def stamp_begin(a, vst):
    if not STAMP: return
    a(f'v_mov_b32 v{vst}, 0')
    stamp_rt(a, 15, vst)
    stamp(a, 0, vst)
def stamp_end(a, i, vst, kidx, tmp):
    if not STAMP: return
    a('s_mov_b64 exec, -1')
    a('s_waitcnt vmcnt(0)')
    stamp(a, i, vst)
    stamp_rt(a, 14, vst)
    a('s_load_dwordx2 s[96:97], s[0:1], 96')
    a('s_waitcnt lgkmcnt(0)')
    srd(a, 92, 96, 4 << 20, WS_DBG)
    a(f'v_lshrrev_b32 v{tmp}, 6, v0')
    a(f'v_lshlrev_b32 v{tmp}, 6, v{tmp}')
    a(f'v_and_b32 v{tmp+1}, 63, v0')
    a(f'v_lshl_add_u32 v{tmp}, v{tmp+1}, 2, v{tmp}')
    a('s_lshl_b32 s98, s2, 9')
    a(f's_add_u32 s98, s98, {kidx*262144}')
    a('s_mov_b32 exec_lo, 0xffff')
    a('s_mov_b32 exec_hi, 0')
    a(f'buffer_store_dword v{vst}, v{tmp}, s[92:95], s98 offen')

TLA = -1
TLB = -1
TLM = 4
_tl_idx = [0]
def tl_mark(a):
    if TLA < 0: return
    k = _tl_idx[0]; _tl_idx[0] += 1
    L = a.newlabel('tl')
    a('s_cmp_lg_u32 s2, 0')
    a(f's_cbranch_scc1 {L}')
    a('s_memrealtime s[98:99]')
    a('s_load_dwordx2 s[96:97], s[0:1], 96')
    a('s_waitcnt lgkmcnt(0)')
    srd(a, 92, 96, 4096, WS_DBG)
    a('v_mov_b32 v1, s98')
    a('v_mov_b32 v2, 0')
    a(f'buffer_store_dword v1, v2, s[92:95], 0 offen offset:{4*k}')
    a(f'{L}:')
def gen_tl(a):
    name = 'tl_kernel'
    a.raw(f'.globl {name}'); a.raw('.p2align 8'); a.raw(f'.type {name},@function'); a.raw(f'{name}:')
    a.flush_hist()
    a('s_cmp_lg_u32 s2, 0')
    a('s_cbranch_scc1 tl_end')
    a('s_memrealtime s[20:21]')
    a('s_load_dwordx2 s[4:5], s[0:1], 96')
    a('s_waitcnt lgkmcnt(0)')
    srd(a, 8, 4, 4096, WS_DBG)
    a('v_mov_b32 v2, 0')
    a('buffer_load_dwordx4 v[4:7], v2, s[8:11], 0 offen')
    a('s_waitcnt vmcnt(0)')
    a('v_mov_b32 v%d, s20' % (4 + _tl_idx[0]))
    a(f'v_sub_u32 v9, v{4+TLB}, v{4+TLA}')
    a('v_readfirstlane_b32 s22, v9')
    a('s_min_u32 s22, s22, 5000')
    a(f's_mul_i32 s22, s22, {TLM}')
    a('tl_spin:')
    a('s_memrealtime s[24:25]')
    a('s_waitcnt lgkmcnt(0)')
    a('s_sub_u32 s24, s24, s20')
    a('s_cmp_lt_u32 s24, s22')
    a('s_cbranch_scc1 tl_spin')
    a('tl_end:')
    a('s_endpgm')
    return name, 16, 32, None

def begin(a, name):
    a.raw(f'.globl {name}')
    a.raw('.p2align 8')
    a.raw(f'.type {name},@function')
    a.raw(f'{name}:')
    a.flush_hist()
    tl_mark(a)

def red32(a, v, t):
    a(f'v_add_f32_dpp v{v}, v{v}, v{v} quad_perm:[1,0,3,2] row_mask:0xf bank_mask:0xf')
    a(f'v_add_f32_dpp v{v}, v{v}, v{v} quad_perm:[2,3,0,1] row_mask:0xf bank_mask:0xf')
    a(f'v_add_f32_dpp v{v}, v{v}, v{v} row_half_mirror row_mask:0xf bank_mask:0xf')
    a(f'v_add_f32_dpp v{v}, v{v}, v{v} row_mirror row_mask:0xf bank_mask:0xf')
    a(f'v_mov_b32 v{t}, v{v}')
    a(f'v_permlane16_swap_b32 v{v}, v{t}')
    a(f'v_add_f32 v{v}, v{v}, v{t}')

def rne(a, d, s):
    a(f'v_cvt_pk_bf16_f32 v{d}, v{s}, v{s}')
    a(f'v_lshlrev_b32 v{d}, 16, v{d}')

def ln_sigma(a, var, rs):
    rne(a, var, var)
    a(f'v_add_f32 v{var}, 0x3727c5ac, v{var}')
    rne(a, var, var)
    a(f'v_sqrt_f32 v{var}, v{var}')
    rne(a, var, var)
    a(f'v_rcp_f32 v{rs}, v{var}')

def interleave(a, ms, fill, start=0):
    n = len(ms); k = 0
    for i, m in enumerate(ms):
        a(m)
        tgt = (len(fill) * (i + 1) + n - 1) // n
        while k < tgt:
            a(fill[k]); k += 1

P = lambda r: f'v[{r}:{r+1}]'
Q = lambda r: f'v[{r}:{r+3}]'

def gen_prep(a):
    name = 'prep_kernel'
    begin(a, name)
    VS = 39
    X, K, V, SH, O0, O1, ST = 16, 20, 24, 28, 32, 36, 40
    a('s_cmp_ge_u32 s2, 256')
    a('s_cbranch_scc1 prep_end')
    stamp_begin(a, VS)
    a('s_load_dwordx8 s[4:11], s[0:1], 0')
    a('s_load_dwordx2 s[12:13], s[0:1], 96')
    a('v_lshrrev_b32 v1, 8, v0')
    a('v_and_b32 v4, 31, v0')
    a('v_readfirstlane_b32 s53, v1')
    a('v_bfe_u32 v5, v0, 5, 3')
    a('s_and_b32 s14, s2, 7')
    a('s_lshr_b32 s15, s2, 3')
    a('s_lshl_b32 s44, s15, 16')
    a('s_lshl_b32 s45, s14, 7')
    a('s_add_u32 s44, s44, s45')
    a('v_lshlrev_b32 v2, 13, v5')
    a('v_lshl_add_u32 v2, v4, 2, v2')
    a('v_add_u32 v2, s44, v2')
    a('v_add_u32 v3, 0x1000, v2')
    a('s_mov_b32 s47, %d' % CS)
    a('s_mov_b32 s50, 0xffff0000')
    a('s_mul_i32 s45, s14, %d' % (64 * CS))
    a('s_lshl_b32 s46, s15, 7')
    a('v_mul_u32_u24 v8, %d, v4' % (2 * CS))
    a('s_cmp_eq_u32 s53, 0')
    a('s_cbranch_scc0 prep_x')
    a('v_subrev_u32 v1, 0x1000, v2')
    a('s_lshl_b32 s48, s14, 9')
    a('v_lshlrev_b32 v6, 4, v4')
    a('v_add_u32 v6, s48, v6')
    a('s_sub_u32 s45, s45, s46')
    a('s_add_u32 s45, s45, 4080')
    a('v_lshlrev_b32 v9, 4, v5')
    a('v_sub_u32 v8, v8, v9')
    a('v_add_u32 v8, s45, v8')
    a('s_waitcnt lgkmcnt(0)')
    stamp(a, 1, VS)
    srd(a, K, 6, 2 * MiB)
    KR, VR, SHR = 10, 22, 32
    for r in range(12):
        a(f'buffer_load_dword v{KR+r}, v{1+r//4}, s[{K}:{K+3}], 0 offen offset:{(r%4)*1024}')
    srd(a, SH, 10, 4096)
    a(f'buffer_load_dwordx4 {Q(SHR)}, v6, s[{SH}:{SH+3}], 0 offen')
    srd(a, V, 8, 2 * MiB)
    for r in range(9):
        rr = r + 3
        a(f'buffer_load_dword v{VR+r}, v{1+rr//4}, s[{V}:{V+3}], 0 offen offset:{(rr%4)*1024}')
    srd(a, O0, 12, CHB, WS_XR0)
    srd(a, O1, 12, CHB, WS_XR1)
    if PF_CODE:
        a('s_getpc_b64 s[54:55]')
        a('pf_here:')
        a('s_add_u32 s54, s54, conv_kernel-pf_here')
        a('s_addc_u32 s55, s55, 0')
        a('s_lshl_b32 s56, s15, 10')
        a('v_lshl_add_u32 v36, v5, 7, s56')
        a('v_min_u32 v36, code_end-conv_kernel-4, v36')
        a('v_mov_b32 v37, s55')
        a('v_add_co_u32 v36, vcc, s54, v36')
        a('v_addc_co_u32 v37, vcc, 0, v37, vcc')
        a('global_load_dword v38, v[36:37], off')
    KF, WP, VF, KV = 40, 64, 72, 92
    stamp(a, 2, VS)
    a('s_waitcnt vmcnt(%d)' % (10 + PF_CODE))
    stamp(a, 3, VS)
    for r in range(12):
        a(f'v_lshlrev_b32 v{KF+2*r}, 16, v{KR+r}')
        a(f'v_and_b32 v{KF+2*r+1}, s50, v{KR+r}')
    a('s_waitcnt vmcnt(%d)' % (9 + PF_CODE))
    for j in range(4):
        for c in range(2):
            src = SHR + 2 * c + j // 2
            if j % 2 == 0:
                a(f'v_lshlrev_b32 v{WP+2*j+c}, 16, v{src}')
            else:
                a(f'v_and_b32 v{WP+2*j+c}, s50, v{src}')
    for i in range(9):
        d = KV + 2 * i
        a(f'v_pk_mul_f32 {P(d)}, {P(KF+2*i)}, {P(WP+6)}')
    for j in (2, 1, 0):
        for i in range(9):
            d = KV + 2 * i
            a(f'v_pk_fma_f32 {P(d)}, {P(KF+2*(i+3-j))}, {P(WP+2*j)}, {P(d)}')
    a('s_waitcnt vmcnt(%d)' % PF_CODE)
    for r in range(9):
        a(f'v_lshlrev_b32 v{VF+2*r}, 16, v{VR+r}')
        a(f'v_and_b32 v{VF+2*r+1}, s50, v{VR+r}')
    for i in range(9):
        d = KV + 2 * i
        a(f'v_pk_mul_f32 {P(d)}, {P(d)}, {P(VF+2*i)}')
    O = 112
    kv = lambda row, c: KV + 2 * (row + 1) + c
    for c in range(2):
        for w in range(4):
            a(f'v_cvt_pk_bf16_f32 v{O+4*c+w}, v{kv(7-2*w,c)}, v{kv(6-2*w,c)}')
        a(f'buffer_store_dwordx4 {Q(O+4*c)}, v8, s[{O0}:{O0+3}], {"s47" if c else "0"} offen')
    for c in range(2):
        for w in range(4):
            a(f'v_cvt_pk_bf16_f32 v{O+8+4*c+w}, v{kv(6-2*w,c)}, v{kv(5-2*w,c)}')
        a(f'buffer_store_dwordx4 {Q(O+8+4*c)}, v8, s[{O1}:{O1+3}], {"s47" if c else "0"} offen')
    stamp(a, 4, VS)
    stamp_end(a, 5, VS, 0, 110)
    a('s_endpgm')
    a('prep_x:')
    a.flush_hist()
    a('s_lshl_b32 s48, s2, 13')
    a('v_lshlrev_b32 v7, 10, v5')
    a('v_lshl_add_u32 v7, v4, 4, v7')
    a('v_add_u32 v7, s48, v7')
    a('s_add_u32 s45, s45, s46')
    a('v_lshl_add_u32 v8, v5, 4, v8')
    a('v_add_u32 v8, s45, v8')
    a('s_lshl_b32 s46, s2, 5')
    a('v_lshlrev_b32 v9, 2, v5')
    a('v_add_u32 v9, s46, v9')
    a('s_mov_b32 s48, 0x2000')
    a('s_mov_b32 s51, 0x05040100')
    a('s_mov_b32 s52, 0x07060302')
    a('s_load_dwordx2 s[54:55], s[0:1], 32')
    a('s_load_dwordx2 s[56:57], s[0:1], 72')
    a('s_waitcnt lgkmcnt(0)')
    stamp(a, 1, VS)
    srd(a, X, 4, 2 * MiB)
    XR, XS = 10, 20
    a(f'buffer_load_dwordx4 {Q(XS)}, v7, s[{X}:{X+3}], 0 offen')
    a(f'buffer_load_dwordx4 {Q(XS+4)}, v7, s[{X}:{X+3}], 0 offen offset:512')
    for r in range(8):
        a(f'buffer_load_dword v{XR+r}, v{2 if r < 4 else 3}, s[{X}:{X+3}], 0 offen offset:{(r%4)*1024}')
    srd(a, O0, 12, CHB, WS_XT)
    srd(a, ST, 12, 65536, WS_ST)
    if PF_FILT:
        srd(a, K, 54, 2 * MiB)
        srd(a, V, 56, 1792 * 1024)
        a('s_lshl_b32 s58, s14, 5')
        a('s_add_u32 s58, s58, s15')
        a('s_lshl_b32 s58, s58, 13')
        a('s_mul_i32 s59, s2, 7168')
        a('v_and_b32 v30, 63, v0')
        a('v_lshlrev_b32 v30, 7, v30')
        a('v_readfirstlane_b32 s60, v0')
        a('s_cmp_eq_u32 s60, 256')
        a(f's_cselect_b32 s{K+2}, s{K+2}, 0')
        a('s_cmp_eq_u32 s60, 320')
        a(f's_cselect_b32 s{V+2}, s{V+2}, 0')
        a(f'buffer_load_dword v31, v30, s[{K}:{K+3}], s58 offen')
        a(f'buffer_load_dword v32, v30, s[{V}:{V+3}], s59 offen')
    stamp(a, 2, VS)
    a('s_waitcnt vmcnt(%d)' % (10 if PF_FILT else 8))
    stamp(a, 3, VS)
    E = 60
    for r in range(8):
        a(f'v_lshlrev_b32 v{E+2*r}, 16, v{XS+r}')
        a(f'v_and_b32 v{E+2*r+1}, s50, v{XS+r}')
    S = 80
    a(f'v_pk_add_f32 {P(S)}, {P(E)}, {P(E+2)}')
    a(f'v_pk_add_f32 {P(S+2)}, {P(E+4)}, {P(E+6)}')
    a(f'v_pk_add_f32 {P(S+4)}, {P(E+8)}, {P(E+10)}')
    a(f'v_pk_add_f32 {P(S+6)}, {P(E+12)}, {P(E+14)}')
    a(f'v_pk_add_f32 {P(S)}, {P(S)}, {P(S+2)}')
    a(f'v_pk_add_f32 {P(S+4)}, {P(S+4)}, {P(S+6)}')
    a(f'v_pk_add_f32 {P(S)}, {P(S)}, {P(S+4)}')
    a(f'v_add_f32 v{S}, v{S}, v{S+1}')
    red32(a, S, S + 1)
    a(f'v_mul_f32 v{S}, 0xbb000000, v{S}')
    a(f'v_mov_b32 v{S+1}, v{S}')
    a('s_waitcnt vmcnt(%d)' % (2 if PF_FILT else 0))
    O2 = 100
    for c in range(2):
        for w in range(4):
            a(f'v_perm_b32 v{O2+4*c+w}, v{XR+2*w+1}, v{XR+2*w}, s{51+c}')
        a(f'buffer_store_dwordx4 {Q(O2+4*c)}, v8, s[{O0}:{O0+3}], {"s47" if c else "0"} offen')
    for r in range(8):
        a(f'v_pk_add_f32 {P(E+2*r)}, {P(E+2*r)}, {P(S)}')
    a(f'v_pk_mul_f32 {P(S+2)}, {P(E)}, {P(E)}')
    a(f'v_pk_mul_f32 {P(S+4)}, {P(E+2)}, {P(E+2)}')
    for r in range(2, 8):
        d = S + 2 + 2 * (r & 1)
        a(f'v_pk_fma_f32 {P(d)}, {P(E+2*r)}, {P(E+2*r)}, {P(d)}')
    a(f'v_pk_add_f32 {P(S+2)}, {P(S+2)}, {P(S+4)}')
    a(f'v_add_f32 v{S+2}, v{S+2}, v{S+3}')
    red32(a, S + 2, S + 3)
    a(f'v_mul_f32 v{S+2}, 0x3b000000, v{S+2}')
    rne(a, S, S)
    ln_sigma(a, S + 2, S + 4)
    a(f'v_mul_f32 v{S+5}, v{S}, v{S+4}')
    a('v_mov_b32 v33, 0')
    a('v_lshrrev_b32 v34, 1, v9')
    a('s_mov_b32 s61, 0x8000')
    a('s_mov_b32 exec_lo, 1')
    a('s_mov_b32 exec_hi, 1')
    a(f'buffer_store_short v33, v34, s[{ST}:{ST+3}], s61 offen')
    a(f'buffer_store_dword v{S+4}, v9, s[{ST}:{ST+3}], 0 offen')
    a(f'buffer_store_dword v{S+5}, v9, s[{ST}:{ST+3}], s48 offen')
    stamp(a, 4, VS)
    stamp_end(a, 5, VS, 0, 110)
    a('prep_end:')
    a('s_endpgm')
    return name, 128, 102, None

CV_XC = 0
CV_E = 2 * 4 * 4640
CV_RED = CV_E + 2 * 8448
CV_AUX = CV_RED + 16384
CV_FM = CV_AUX + 24576
CV_FLG = CV_FM + 24576
CV_LDS = CV_FLG + 1280
NFMT = 224

def lds_spin(a, vf, vaddr, off, cnt, cond='ne'):
    L = a.newlabel('sp'); D = a.newlabel('spd')
    a(f'{L}:')
    a(f'ds_read_b32 v{vf}, v{vaddr} offset:{off}')
    a(f's_add_u32 s{cnt}, s{cnt}, 1')
    a(f's_cmp_gt_u32 s{cnt}, 0x100000')
    a(f's_cbranch_scc1 {D}')
    a('s_waitcnt lgkmcnt(0)')
    a(f'v_cmp_{cond}_u32 vcc, 0, v{vf}')
    a(f's_cbranch_vccnz {L}')
    a(f'{D}:')

def gen_conv(a):
    name = 'conv_kernel'
    begin(a, name)
    VS = 250
    H, XRS, HT = 20, 24, 32
    a('s_cmp_ge_u32 s2, 256')
    a('s_cbranch_scc1 conv_end')
    stamp_begin(a, VS)
    a('s_load_dwordx4 s[4:7], s[0:1], 32')
    a('s_load_dwordx2 s[14:15], s[0:1], 96')
    a('v_lshrrev_b32 v1, 6, v0')
    a('v_and_b32 v2, 63, v0')
    a('v_readfirstlane_b32 s60, v1')
    a('s_and_b32 s16, s2, 7')
    a('s_lshr_b32 s17, s2, 3')
    a('s_lshl_b32 s16, s16, 5')
    a('s_add_u32 s16, s16, s17')
    a('v_lshlrev_b32 v5, 3, v2')
    a('v_lshlrev_b32 v6, 4, v2')
    a('s_mov_b32 s93, 0x7f000000')
    a('s_mov_b32 s94, 0')
    a('s_cmp_ge_u32 s60, 4')
    a('s_cbranch_scc1 cv_help')
    a('s_lshr_b32 s61, s60, 1')
    a('s_and_b32 s62, s60, 1')
    a('s_lshl_b32 s63, s16, 1')
    a('s_add_u32 s63, s63, s61')
    a('s_lshl_b32 s64, s63, 12')
    a('s_lshl_b32 s65, s16, 2')
    a('s_mul_i32 s66, s61, 8448')
    a('s_add_u32 s66, s66, %d' % CV_E)
    a('s_mul_i32 s70, s61, 18560')
    a('s_mul_i32 s71, s62, 4640')
    a('s_add_u32 s71, s71, s70')
    a('s_xor_b32 s77, s62, 1')
    a('s_mul_i32 s72, s77, %d' % CHB)
    a('s_mul_i32 s73, s63, %d' % CS)
    a('s_add_u32 s72, s72, s73')
    a('s_lshl_b32 s69, s62, 11')
    a('s_lshl_b32 s75, s62, 12')
    a('v_lshrrev_b32 v7, 2, v2')
    a('v_and_b32 v8, 3, v2')
    a('v_lshlrev_b32 v7, 3, v7')
    a('v_lshl_add_u32 v7, v8, 2, v7')
    a('v_add_u32 v7, 0xffffff80, v7')
    a('s_add_u32 s68, s66, s75')
    a('s_add_u32 m0, s68, 256')
    a('s_waitcnt lgkmcnt(0)')
    stamp(a, 1, VS)
    srd(a, H, 4, 4096, offreg=64)
    for i in range(4):
        a(f'buffer_load_dwordx4 v5, s[{H}:{H+3}], s69 offen offset:{512*i} lds')
        a('s_add_u32 m0, m0, 512' if i < 3 else 's_mov_b32 m0, s66')
    srd(a, XRS, 14, 4096, offreg=72)
    a(f'buffer_load_dword v7, s[{H}:{H+3}], 0 offen lds')
    a('s_mov_b32 m0, s71')
    a('s_load_dword s67, s[6:7], s65')
    for i in range(4):
        a(f'buffer_load_dwordx4 v6, s[{XRS}:{XRS+3}], 4 offen offset:{1024*i} lds')
    a('s_add_u32 m0, m0, 9280')
    a('s_lshl_b32 s74, s60, 2')
    for i in range(4):
        a(f'buffer_load_dwordx4 v6, s[{XRS}:{XRS+3}], 0 offen offset:{1024*i} lds')
    a('s_barrier')
    a('s_add_u32 m0, s74, %d' % CV_FLG)
    a('s_mov_b64 exec, 1')
    a(f'buffer_load_dword v6, s[{XRS}:{XRS+3}], s93 offen lds')
    a('s_mov_b64 exec, -1')
    srd(a, HT, 14, 2 * MiB, WS_HT)
    for par, sh in ((0, 62), (1, 77)):
        a(f's_lshl_b32 s{40+par}, s{sh}, 9')
        a(f's_lshl_b32 s{50+par}, s{sh}, 18')
    a('s_lshl_b32 s79, s63, 8')
    a('s_add_u32 s50, s50, s79')
    a('s_add_u32 s51, s51, s79')
    a('s_add_u32 s51, s51, 0x80000')
    a('s_add_u32 s52, s50, 0x100000')
    a('s_add_u32 s53, s51, 0x100000')
    a('v_and_b32 v12, 31, v2')
    a('v_lshlrev_b32 v12, 3, v12')
    a('s_and_b32 s74, s63, 3')
    a('s_lshl_b32 s74, s74, 6')
    a('v_xor_b32 v12, s74, v12')
    a('v_lshrrev_b32 v13, 5, v2')
    a('v_lshl_add_u32 v12, v13, 17, v12')
    XA, HA = 224, 225
    a('v_and_b32 v3, 15, v2')
    a('v_lshrrev_b32 v4, 4, v2')
    a('v_lshrrev_b32 v9, 2, v3')
    a('v_mul_u32_u24 v10, 4640, v8')
    a('v_lshlrev_b32 v9, 3, v9')
    a('v_sub_u32 v9, v4, v9')
    a('v_add_u32 v9, 24, v9')
    a(f'v_lshl_add_u32 v{XA}, v9, 4, v10')
    a('s_lshl_b32 s88, s62, 8')
    a('s_add_u32 s88, s88, s70')
    a(f'v_add_u32 v{XA}, s88, v{XA}')
    a(f'v_lshl_add_u32 v{HA}, v4, 1, v3')
    a(f'v_lshlrev_b32 v{HA}, 4, v{HA}')
    a('s_lshl_b32 s89, s62, 9')
    a('s_add_u32 s89, s89, s66')
    a('s_add_u32 s89, s89, 16')
    a(f'v_add_u32 v{HA}, s89, v{HA}')
    a('s_lshl_b32 s88, s61, 12')
    a('s_add_u32 s88, s88, %d' % (CV_AUX + 16384))
    for par in range(2):
        a(f's_sub_u32 s89, s70, s{40+par}')
        a('s_add_u32 s89, s89, %d' % (3 * 4640 + 4088 - 3072))
        a(f'v_sub_u32 v{10+par}, s89, v5')
        a(f's_add_u32 s89, s88, s{40+par}')
        a(f'v_add_u32 v{13+par}, s89, v5')
        a(f's_lshl_b32 s89, s{40+par}, 1')
        a('s_add_u32 s89, s89, %d' % CV_AUX)
        a(f'v_add_u32 v{60+par}, s89, v6')
    a('s_lshl_b32 s90, s60, 12')
    a('s_add_u32 s91, s90, %d' % CV_RED)
    a('s_xor_b32 s90, s90, 0x1000')
    a('s_add_u32 s90, s90, %d' % CV_RED)
    a('v_add_u32 v62, s91, v6')
    a('v_add_u32 v63, s90, v6')
    a('s_mov_b32 s92, 0xffff0000')
    a('v_and_b32 v9, 1, v2')
    a('s_lshl_b32 s89, s61, 3')
    a('s_add_u32 s89, s89, %d' % CV_FLG)
    a('v_lshl_add_u32 v9, v9, 2, s89')
    a('v_lshlrev_b32 v15, 2, v8')
    a('v_add_u32 v15, %d, v15' % (CV_FLG + 16))
    a('s_lshl_b32 s89, s60, 8')
    a('s_add_u32 s89, s89, %d' % (CV_FLG + 256))
    a('v_lshl_add_u32 v3, v2, 2, s89')
    a('s_xor_b32 s89, s60, 1')
    a('s_lshl_b32 s89, s89, 8')
    a('s_add_u32 s89, s89, %d' % (CV_FLG + 256))
    a('v_lshl_add_u32 v4, v2, 2, s89')
    a('v_mov_b32 v7, 0')
    stamp(a, 2, VS)
    lds_spin(a, 1, 9, 0, 94)
    stamp(a, 3, VS)
    FH = [64, 128]; FX = [96, 160]; ACC = 192
    XV, RS, MR, XF = 16, 24, 40, 232
    kvp = [56, 58, 226, 228]
    def rdH(s, ri, aa): return f'ds_read_b128 {Q(FH[s]+4*aa)}, v{HA} offset:{128*(8*aa+ri)}'
    def rdX(s, ri, bb): return f'ds_read_b128 {Q(FX[s]+4*bb)}, v{XA} offset:{64*(56-8*bb+ri)}'
    inited = [False] * 8
    def mf(s, aa, bb):
        nb = aa + bb
        c = Q(ACC + 4 * nb)
        src = c if inited[nb] else '0'
        inited[nb] = True
        return f'v_mfma_f32_16x16x32_bf16 {c}, {Q(FX[s]+4*bb)}, {Q(FH[s]+4*aa)}, {src}'
    pairs = sorted([(aa, bb) for aa in range(8) for bb in range(8) if aa + bb <= 7], key=lambda p: (max(p), p))
    q = DsQ(a)
    todo = []
    for ri in range(4):
        for x in range(8):
            todo.append((rdH(ri & 1, ri, x), ('H', ri, x)))
            todo.append((rdX(ri & 1, ri, x), ('X', ri, x)))
    for _ in range(12):
        q.op(*todo.pop(0))
    a('s_lshl_b32 s90, s61, 4')
    a('s_lshr_b32 s67, s67, s90')
    a('s_lshl_b32 s67, s67, 16')
    aux = []
    for t in range(4):
        par = t & 1
        aux.append(f'ds_read_b64 {P(kvp[t])}, v{10+par} offset:{1024*(3-t)}')
        aux.append(f'ds_read_b64 {P(XV+2*t)}, v{13+par} offset:{1024*t}')
        aux.append(f'ds_read_b128 {Q(RS+4*t)}, v{60+par} offset:{2048*t}')
        aux.append(f'ds_read_b128 {Q(MR+4*t)}, v{60+par} offset:{2048*t+8192}')
    pre = []
    for t in range(4):
        pre += [f'v_lshlrev_b32 v{XF+4*t}, 16, v{XV+2*t}', f'v_and_b32 v{XF+4*t+1}, s92, v{XV+2*t}',
                f'v_lshlrev_b32 v{XF+4*t+2}, 16, v{XV+2*t+1}', f'v_and_b32 v{XF+4*t+3}, s92, v{XV+2*t+1}']
    pre += [f'v_fma_f32 v{RS+r}, v{XF+r}, v{RS+r}, v{MR+r}' for r in range(16)]
    for t in range(4):
        pre += [f'v_and_b32 v{MR+4*t}, s92, v{kvp[t]+1}', f'v_lshlrev_b32 v{MR+4*t+1}, 16, v{kvp[t]+1}',
                f'v_and_b32 v{MR+4*t+2}, s92, v{kvp[t]}', f'v_lshlrev_b32 v{MR+4*t+3}, 16, v{kvp[t]}']
    pre += [f'v_mul_f32 v{MR+r}, v{MR+r}, v{RS+r}' for r in range(16)]
    pre += [f'v_fmac_f32 v{XF+r}, s67, v{MR+r}' for r in range(16)]
    for ri in range(3):
        s = ri & 1
        for n, (aa, bb) in enumerate(pairs):
            q.wait(('H', ri, aa), ('X', ri, bb))
            a(mf(s, aa, bb))
            used = 0
            if todo and todo[0][1][1] <= ri + 1 and (n % 2 == 0 or todo[0][1][1] == ri):
                q.op(*todo.pop(0)); used = 1
            if ri == 0 and n == 31: q.op('ds_read_b32 v1, v15', 'fb')
            if ri == 1 and n == 1:
                q.wait('fb')
                a('v_cmp_ne_u32 vcc, 0, v1')
                a('s_cbranch_vccnz cv_fbspin')
                a('cv_fbgo:')
            if ri == 1 and n % 2 == 1 and n >= 3 and aux: q.op(aux.pop(0), 'aux')
            if ri == 2:
                if n == 0: q.wait('aux')
                for _ in range(2 - used):
                    if pre: a(pre.pop(0))
    assert not todo and not aux, (len(todo), len(aux))
    a('s_cmp_eq_u32 s62, 0')
    a('s_waitcnt lgkmcnt(0)')
    a('s_cbranch_scc0 conv_h1')
    PR = 64
    hist = list(a.hist)
    for half in range(2):
        if half:
            a('conv_h1:'); a.hist = list(hist)
        rest = list(pre)
        keep = [2 * t + ((t & 1) ^ half) for t in range(4)]
        send = [2 * t + ((t & 1) ^ half ^ 1) for t in range(4)]
        ps = sorted([p for p in pairs if sum(p) in send], key=lambda p: sum(p))
        pk = sorted([p for p in pairs if sum(p) in keep], key=lambda p: sum(p))
        seq = ps + pk
        lastidx = {nb: max(i for i, p in enumerate(seq) if sum(p) == nb) for nb in range(8)}
        wr = {lastidx[nb] + 3: t for t, nb in enumerate(send)}
        for i, (aa, bb) in enumerate(seq):
            a(mf(1, aa, bb))
            for _ in range(2):
                if rest: a(rest.pop(0))
            if i in wr:
                t = wr[i]
                a(f'ds_write_b128 v62, {Q(ACC+4*send[t])} offset:{1024*t}')
            if i == 21: a('ds_write_b32 v3, v7')
            if i == 25: a('ds_read_b32 v1, v4')
            if i == 30:
                a('s_waitcnt lgkmcnt(0)')
                a('v_cmp_ne_u32 vcc, 0, v1')
                a(f's_cbranch_vccnz cv_rspin{half}')
                a(f'cv_rgo{half}:')
                for t in range(2): a(f'ds_read_b128 {Q(PR+4*t)}, v63 offset:{1024*t}')
            if i == 31:
                for t in range(2, 4): a(f'ds_read_b128 {Q(PR+4*t)}, v63 offset:{1024*t}')
            if i >= 32:
                t = i - 32
                if t < 3:
                    for r in range(4):
                        a(f'v_fmac_f32 v{XF+4*t+r}, v{RS+4*t+r}, v{ACC+4*keep[t]+r}')
        assert not rest
        stamp(a, 4, VS)
        for t in range(4):
            a(f's_waitcnt lgkmcnt({3-t})')
            for r in range(4):
                a(f'v_fmac_f32 v{XF+4*t+r}, v{RS+4*t+r}, v{PR+4*t+r}')
            if t == 3:
                for r in range(4):
                    a(f'v_fmac_f32 v{XF+4*t+r}, v{RS+4*t+r}, v{ACC+4*keep[t]+r}')
            a(f'v_cvt_pk_bf16_f32 v{88+2*t}, v{XF+4*t}, v{XF+4*t+1}')
            a(f'v_cvt_pk_bf16_f32 v{89+2*t}, v{XF+4*t+2}, v{XF+4*t+3}')
            a(f'buffer_store_dwordx2 {P(88+2*t)}, v12, s[{HT}:{HT+3}], s{50+t} offen' + (' sc1' if SC_HT else ''))
        stamp(a, 5, VS)
        stamp_end(a, 6, VS, 1, 248)
        a('s_endpgm')
    a('cv_fbspin:')
    lds_spin(a, 1, 15, 0, 94)
    a('s_branch cv_fbgo')
    for half in range(2):
        a(f'cv_rspin{half}:')
        lds_spin(a, 1, 4, 0, 94)
        a(f's_branch cv_rgo{half}')

    WS, SRC = 20, 24
    SCF = ' sc1' if SC_FMT else ''
    a('cv_help:')
    a.flush_hist()
    a('s_load_dwordx4 s[8:11], s[0:1], 56')
    a('s_load_dwordx2 s[12:13], s[0:1], 72')
    a('s_and_b32 s61, s60, 3')
    a('v_mov_b32 v20, 0')
    a('v_mov_b32 v21, 0')
    a('v_mov_b32 v22, -1')
    a('s_mul_i32 s62, s61, 9280')
    a('v_add_u32 v23, s62, v5')
    a('ds_write_b64 v23, v[20:21] offset:4096')
    a('ds_write_b64 v23, v[20:21] offset:%d' % (4096 + 4640))
    a('s_lshl_b32 s62, s61, 8')
    a('s_add_u32 s62, s62, %d' % CV_FLG)
    a('v_lshl_add_u32 v23, v2, 2, s62')
    a('ds_write_b32 v23, v22')
    a('ds_write_b32 v23, v22 offset:256')
    a('s_lshl_b32 s62, s61, 12')
    a('s_add_u32 s63, s62, %d' % WS_ST)
    a('s_lshr_b32 s64, s61, 1')
    a('s_lshl_b32 s65, s16, 1')
    a('s_add_u32 s64, s64, s65')
    a('s_mul_i32 s64, s64, %d' % CS)
    a('s_and_b32 s65, s61, 1')
    a('s_lshl_b32 s65, s65, 11')
    a('s_add_u32 s64, s64, s65')
    a('s_add_u32 s64, s64, %d' % WS_XT)
    a('s_add_u32 m0, s62, %d' % CV_AUX)
    a('s_mul_hi_u32 s78, s2, %d' % (2**32 // 28 + 1))
    a('s_mul_i32 s79, s78, 28')
    a('s_sub_u32 s79, s2, s79')
    a('v_and_b32 v3, 15, v2')
    a('v_lshrrev_b32 v4, 4, v2')
    a('v_lshrrev_b32 v24, 2, v3')
    a('v_and_b32 v25, 3, v3')
    a('v_lshrrev_b32 v26, 1, v4')
    a('v_and_b32 v27, 1, v4')
    a('s_lshl_b32 s66, s61, 13')
    a('s_add_u32 s66, s66, %d' % CV_FM)
    a('s_waitcnt lgkmcnt(0)')
    srd(a, WS, 14, WS_END)
    a('s_barrier')
    stamp(a, 1, VS)
    for i in range(4):
        a(f'buffer_load_dwordx4 v6, s[{WS}:{WS+3}], s63 offen offset:{1024*i} lds')
    a('s_lshl_b32 s62, s61, 11')
    a('s_add_u32 m0, s62, %d' % (CV_AUX + 16384))
    a('s_lshl_b32 s62, s61, 2')
    for i in range(2):
        a(f'buffer_load_dwordx4 v6, s[{WS}:{WS+3}], s64 offen offset:{1024*i} lds')
    a('s_add_u32 m0, s62, %d' % (CV_FLG + 16))
    a('s_mov_b64 exec, 1')
    a(f'buffer_load_dword v6, s[{WS}:{WS+3}], s93 offen lds')
    a('s_mov_b64 exec, -1')
    a('s_mov_b32 m0, s66')
    a('s_cmp_ge_u32 s2, %d' % NFMT)
    a('s_cbranch_scc1 cv_hend')
    a('s_cmp_eq_u32 s61, 3')
    a('s_cbranch_scc1 cv_hend')
    a('s_cmp_eq_u32 s61, 2')
    a('s_cbranch_scc1 cv_wd')
    a('s_cmp_eq_u32 s61, 0')
    a(f's_cselect_b32 s{SRC}, s8, s10')
    a(f's_cselect_b32 s{SRC+1}, s9, s11')
    a(f's_mov_b32 s{SRC+2}, {hex(512*3584)}')
    a(f's_mov_b32 s{SRC+3}, 0x20000')
    a('v_and_b32 v7, 7, v2')
    a('v_lshrrev_b32 v13, 3, v2')
    a('v_mul_u32_u24 v13, 3584, v13')
    a('v_lshl_add_u32 v13, v7, 4, v13')
    a('s_mul_i32 s80, s78, %d' % (64 * 3584))
    a('s_lshl_b32 s81, s79, 7')
    a('s_add_u32 s80, s80, s81')
    for i in range(8):
        a(f'buffer_load_dwordx4 v13, s[{SRC}:{SRC+3}], s80 offen lds')
        if i < 7:
            a('s_add_u32 m0, m0, 1024')
            a('s_add_u32 s80, s80, %d' % (8 * 3584))
    a('v_lshl_add_u32 v28, v26, 3, v24')
    a('v_lshlrev_b32 v28, 7, v28')
    a('v_lshl_add_u32 v28, v27, 5, v28')
    a('v_lshl_add_u32 v28, v25, 3, v28')
    a('v_add_u32 v28, s66, v28')
    for j in range(4):
        a('s_lshl_b32 s82, s79, 2')
        a(f's_add_u32 s82, s82, {j}')
        a('s_mul_hi_u32 s83, s82, %d' % (2**32 // 7 + 1))
        a('s_mul_i32 s84, s83, 7')
        a('s_sub_u32 s84, s82, s84')
        a('s_mul_i32 s83, s83, %d' % W1F_NT)
        a('s_lshl_b32 s84, s84, 10')
        a(f's_add_u32 s{40+j}, s83, s84')
    a('s_lshl_b32 s82, s61, 4')
    a('v_lshl_add_u32 v29, v26, 5, v3')
    a('v_add_u32 v29, s82, v29')
    a('v_lshlrev_b32 v29, 4, v29')
    a('v_cmp_eq_u32 vcc, 1, v27')
    for u in range(2):
        a(f'v_mov_b32 v{30+u}, s{40+2*u}')
        a(f'v_mov_b32 v8, s{41+2*u}')
        a(f'v_cndmask_b32 v{30+u}, v{30+u}, v8, vcc')
        a(f'v_add_u32 v{30+u}, v{30+u}, v29')
    a('s_mul_i32 s44, s78, %d' % (4 * 7168))
    a('s_add_u32 s44, s44, %d' % WS_W1F)
    a('s_lshr_b32 s46, s78, 2')
    a('s_lshl_b32 s46, s46, 9')
    a('s_and_b32 s47, s78, 3')
    a('s_lshl_b32 s47, s47, 2')
    a('s_add_u32 s46, s46, s47')
    a('s_add_u32 s46, s46, %d' % (WS_W1F + 32 * 7168))
    for r in range(4): a(f'v_mov_b32 v{16+r}, 0')
    a('s_mov_b32 s45, 0x3f803f80')
    stamp(a, 2, VS)
    a('s_waitcnt vmcnt(0)')
    stamp(a, 3, VS)
    FF = 32
    q = DsQ(a)
    for ks in range(4):
        for u in range(2):
            r = FF + 8 * ks + 4 * u
            q.op(f'ds_read_b64_tr_b16 {P(r)}, v28 offset:{2048*ks+64*u}', (ks, u))
            q.op(f'ds_read_b64_tr_b16 {P(r+2)}, v28 offset:{2048*ks+64*u+512}', (ks, u))
    for ks in range(4):
        for u in range(2):
            r = FF + 8 * ks + 4 * u
            q.wait((ks, u))
            a(f'buffer_store_dwordx4 {Q(r)}, v{30+u}, s[{WS}:{WS+3}], s44 offen{SCF}')
            for w in range(4):
                a(f'v_dot2c_f32_bf16 v{16+2*u+(w&1)}, s45, v{r+w}')
        a('s_add_u32 s44, s44, 7168')
    a('s_nop 2')
    for u in range(2):
        c = 16 + 2 * u
        a(f'v_add_f32 v{c}, v{c}, v{c+1}')
        a(f'v_mov_b32 v{c+1}, v{c}')
        a(f'v_permlane32_swap_b32 v{c}, v{c+1}')
        a(f'v_add_f32 v{c}, v{c}, v{c+1}')
        rne(a, c + 1, c)
        a(f'v_sub_f32 v{c}, v{c}, v{c+1}')
        a(f'v_cvt_pk_bf16_f32 v{c}, v{c+1}, v{c}')
    a('s_mov_b32 exec_hi, 0')
    for u in range(2):
        a(f'buffer_store_dword v{16+2*u}, v{30+u}, s[{WS}:{WS+3}], s46 offen')
    a('s_branch cv_hend')
    a('cv_wd:')
    a.flush_hist()
    srd(a, SRC, 12, 1792 * 1024)
    a('v_lshrrev_b32 v14, 5, v2')
    a('v_lshlrev_b32 v14, 10, v14')
    a('v_and_b32 v15, 31, v2')
    a('v_lshl_add_u32 v14, v15, 4, v14')
    a('s_lshr_b32 s84, s2, 1')
    a('s_and_b32 s85, s2, 1')
    a('s_lshl_b32 s86, s84, 14')
    a('s_lshl_b32 s87, s85, 9')
    a('s_add_u32 s86, s86, s87')
    for i in range(8):
        a(f'buffer_load_dwordx4 v14, s[{SRC}:{SRC+3}], s86 offen lds')
        if i < 7:
            a('s_add_u32 m0, m0, 1024')
            a('s_add_u32 s86, s86, 2048')
    a('v_lshl_add_u32 v28, v26, 2, v24')
    a('v_lshlrev_b32 v28, 9, v28')
    a('v_lshl_add_u32 v28, v27, 5, v28')
    a('v_lshl_add_u32 v28, v25, 3, v28')
    a('v_add_u32 v28, s66, v28')
    a('s_mul_i32 s44, s85, 448')
    a('s_add_u32 s44, s44, s84')
    a('s_lshl_b32 s44, s44, 11')
    a('s_add_u32 s44, s44, %d' % WS_WDF)
    stamp(a, 2, VS)
    a('s_waitcnt vmcnt(0)')
    stamp(a, 3, VS)
    q = DsQ(a)
    for x in range(8):
        q.op(f'ds_read_b64_tr_b16 {P(FF+4*x)}, v28 offset:{64*x}', x)
        q.op(f'ds_read_b64_tr_b16 {P(FF+4*x+2)}, v28 offset:{64*x+4096}', x)
    for x in range(8):
        q.wait(x)
        a(f'buffer_store_dwordx4 {Q(FF+4*x)}, v6, s[{WS}:{WS+3}], s44 offen offset:{1024*(x&1)}{SCF}')
        if x & 1: a('s_add_u32 s44, s44, %d' % (112 * 2048))
    a('cv_hend:')
    stamp(a, 4, VS)
    stamp_end(a, 5, VS, 1, 248)
    a('conv_end:')
    a('s_endpgm')
    return name, 252, 102, None

G1_SLOT = 22528
G1_NS = 7
G1_RING = G1_SLOT * G1_NS
FF_FLG = G1_RING
FF_LDS = FF_FLG + 512
FF_WD = 3 * G1_SLOT
FF_WD2 = 5 * G1_SLOT
FF_H = FF_WD + 40960
FF_RED = 0
BARS = {0: 3, 2: 5, 4: 7, 6: 9, 8: 11, 10: 13, 12: 15, 14: 18}
RK = 18
LK = 10
SC = ' sc1'
NOSTAT = 0
BAR14 = 1
BARGAP = 3
XALIGN = 0
XPAD = 0
PACE = 0
XPRIO = 0
NOBAR = 0
NODMA = 0

def epi_tile(g, T, C1, IR2):
    u = g + 8
    L = []
    for e in range(0, 8, 2): L.append(f'v_pk_mul_f32 {P(T+e)}, {P(g+e)}, {P(C1)}')
    for e in range(8): L.append(f'v_exp_f32 v{T+e}, v{T+e}')
    for e in range(0, 8, 2): L.append(f'v_pk_mul_f32 {P(g+e)}, {P(g+e)}, {P(u+e)}')
    for e in range(0, 8, 2): L.append(f'v_pk_fma_f32 {P(T+e)}, {P(T+e)}, {P(IR2)}, {P(IR2)}')
    for e in range(8): L.append(f'v_rcp_f32 v{T+e}, v{T+e}')
    for e in range(0, 8, 2): L.append(f'v_pk_mul_f32 {P(g+e)}, {P(g+e)}, {P(T+e)}')
    for w in range(4): L.append(f'v_cvt_pk_bf16_f32 v{T+8+w}, v{g+2*w}, v{g+2*w+1}')
    return L

def gen_ffn(a):
    name = 'ffn_kernel'
    begin(a, name)
    W1F, HT, WS, OUT = 8, 12, 16, 40
    a('s_cmp_ge_u32 s2, 256')
    a('s_cbranch_scc1 ff_end')
    a('s_load_dwordx2 s[4:5], s[0:1], 96')
    a('s_load_dwordx2 s[6:7], s[0:1], 80')
    a('v_lshrrev_b32 v1, 6, v0')
    a('v_and_b32 v2, 63, v0')
    a('v_readfirstlane_b32 s46, v1')
    a('s_and_b32 s21, s2, 1')
    a('s_lshl_b32 s21, s21, 3')
    a('s_bfe_u32 s27, s2, 0x30003')
    a('s_add_u32 s21, s21, s27')
    a('s_bfe_u32 s22, s2, 0x20001')
    a('s_lshl_b32 s22, s22, 2')
    a('s_lshr_b32 s23, s2, 6')
    a('s_add_u32 s22, s22, s23')
    a('s_and_b32 s20, s46, 3')
    a('v_lshlrev_b32 v3, 4, v2')
    a('s_cmp_ge_u32 s46, 4')
    a('s_cbranch_scc1 ff_ld')
    VS = 250
    stamp_begin(a, VS)
    a('v_lshlrev_b32 v9, 1, v0')
    a('v_add_u32 v9, %d, v9' % FF_FLG)
    a('v_mov_b32 v8, -1')
    a('ds_write_b16 v9, v8')
    a('v_lshrrev_b32 v5, 4, v2')
    a('v_and_b32 v6, 15, v2')
    a('v_lshrrev_b32 v12, 2, v6')
    a('v_and_b32 v13, 3, v6')
    a('s_waitcnt lgkmcnt(0)')
    a('s_barrier')
    a('v_lshrrev_b32 v14, 1, v5')
    a('v_and_b32 v15, 1, v5')
    a('v_lshl_add_u32 v11, v14, 3, v12')
    a('v_lshlrev_b32 v11, 8, v11')
    a('v_xor_b32 v12, s20, v12')
    a('v_lshl_add_u32 v11, v12, 6, v11')
    a('v_lshl_add_u32 v11, v15, 5, v11')
    a('v_lshl_add_u32 v11, v13, 3, v11')
    a('v_add_u32 v11, 14336, v11')
    a('v_mov_b32 v10, v3')
    a('v_lshlrev_b32 v8, 2, v13')
    a('v_add_u32 v8, %d, v8' % FF_FLG)
    a('s_lshl_b32 s37, s21, 2')
    a('s_add_u32 s37, s37, s20')
    a('s_mul_i32 s37, s37, 112')
    a('s_mul_i32 s38, s22, 7')
    a('s_add_u32 s37, s37, s38')
    a('s_lshl_b32 s37, s37, 10')
    a('s_add_u32 s37, s37, %d' % WS_ACT)
    a('s_lshl_b32 s38, s21, 1')
    a('s_lshr_b32 s39, s20, 1')
    a('s_add_u32 s38, s38, s39')
    a('s_lshl_b32 s38, s38, 7')
    a('s_lshl_b32 s39, s22, 3')
    a('s_add_u32 s38, s38, s39')
    a('s_and_b32 s39, s20, 1')
    a('s_lshl_b32 s39, s39, 2')
    a('s_add_u32 s38, s38, s39')
    a('s_add_u32 s38, s38, %d' % WS_GF)
    WF = [32, 60]; HF = [88, 92, 216, 220]; ACC = 96
    S1, S2, PV = 16, 18, 24
    for r in range(112):
        a(f'v_mov_b32 v{ACC+r}, 0')
    for r in range(4):
        a(f'v_mov_b32 v{S1+r}, 0')
    a('s_mov_b32 s34, 0xffff0000')
    a('s_mov_b32 s35, %d' % G1_SLOT)
    a('s_mov_b32 s33, 0')
    a('s_mov_b32 s32, %d' % sum(1 << k for k in BARS))
    a('s_mov_b32 s30, %d' % (-(G1_RING - G1_SLOT) & 0xffffffff))
    a('s_mov_b32 s31, %d' % G1_SLOT)
    srd(a, WS, 4, WS_END)
    def rdW(s, f): return f'ds_read_b128 {Q(WF[s]+4*f)}, v10 offset:{7168*s+1024*f}'
    def rdH(h, s): return [f'ds_read_b64_tr_b16 {P(h)}, v11 offset:{4096*s}', f'ds_read_b64_tr_b16 {P(h+2)}, v11 offset:{4096*s+1024}']
    def stats(h):
        U = []; A = []
        for w in range(4):
            t = 208 + 2 * w
            U.append([f'v_lshlrev_b32 v{t}, 16, v{h+w}', f'v_and_b32 v{t+1}, s34, v{h+w}'])
            A.append([f'v_add_f32 v{S1}, v{S1}, v{t}', f'v_fmac_f32 v{S2}, v{t}, v{t}', f'v_add_f32 v{S1+1}, v{S1+1}, v{t+1}', f'v_fmac_f32 v{S2+1}, v{t+1}, v{t+1}'])
        return U[0] + U[1] + A[0] + U[2] + A[1] + U[3] + A[2] + A[3]
    def mfma(s, f, h=None):
        h = HF[s] if h is None else h
        return f'v_mfma_f32_32x32x16_bf16 v[{ACC+16*f}:{ACC+16*f+15}], {Q(WF[s]+4*f)}, {Q(h)}, v[{ACC+16*f}:{ACC+16*f+15}]'
    stamp(a, 1, VS)
    if XPRIO: a(f's_setprio {XPRIO}')
    a('s_mov_b32 s44, 0')
    a('ff_x0:')
    a(f'ds_read_b32 v{PV}, v8')
    a('s_add_u32 s44, s44, 1')
    a('s_cmp_gt_u32 s44, 0x100000')
    a('s_cbranch_scc1 ff_x1')
    a('s_waitcnt lgkmcnt(0)')
    a(f'v_cmp_ne_u32 vcc, 0, v{PV}')
    a('s_cbranch_vccnz ff_x0')
    a('ff_x1:')
    stamp(a, 2, VS)
    for x in rdH(HF[0], 0): a(x)
    for f in range(7): a(rdW(0, f))
    a(f'ds_read_b32 v{PV}, v8 offset:16')
    for x in rdH(HF[1], 1): a(x)
    for f in range(7): a(rdW(1, f))
    a('v_add_u32 v10, %d, v10' % G1_SLOT)
    a('v_add_u32 v11, %d, v11' % G1_SLOT)
    a('ff_loop:')
    for ks in range(4):
        s = ks & 1; h = HF[ks]; hn = HF[(ks + 2) % 4]; st2 = ks // 2
        S = stats(h) if not NOSTAT else []
        ex = [[] for _ in range(7)]
        rh = rdH(hn, s)
        if s == 0:
            ex[0] = [f'v_cmp_ne_u32 vcc, 0, v{PV}', f's_cbranch_vccnz ff_xspin{st2}\nff_xgo{st2}:']
            ex[1] = [rh[0]]; ex[2] = [rh[1]]
            ex[3] = ['s_add_u32 s35, s35, %d' % G1_SLOT]; ex[4] = ['s_cmp_eq_u32 s35, %d' % G1_RING]; ex[5] = ['s_cselect_b32 s36, s30, s31']
            if ks == 0: ex[BARGAP] = ['s_barrier'] + ex[BARGAP]
        else:
            ex[0] = [f'ds_read_b32 v{PV}, v8 offset:{32+16*st2}']
            ex[1] = [rh[0]]; ex[2] = [rh[1], 's_cselect_b32 s35, 0, s35']
            ex[3] = ['v_add_u32 v11, s36, v11']
            if ks == 3:
                ex[4] = ['s_add_u32 s33, s33, 2', 'v_add_u32 v8, 32, v8']; ex[5] = ['s_cmp_lt_u32 s33, 16']
            ex[6] = ['v_add_u32 v10, s36, v10']
        tot = [1 + len(e) for e in ex]; tot[6] += 1 + (3 if ks == 3 else 0)
        if ks == 0: tot[BARGAP] += 2
        cnts = [0] * 7
        for _ in range(len(S)):
            i = min(range(7), key=lambda j: (tot[j] + cnts[j], j)); cnts[i] += 1
        k = 0
        a('s_waitcnt lgkmcnt(9)')
        for f in range(7):
            a(mfma(s, f, h))
            for x in (ex[f] + [rdW(s, f)] if f == 0 else [rdW(s, f)] + ex[f]): a(x)
            for x in S[k:k+cnts[f]]: a(x)
            k += cnts[f]
    a('s_cbranch_scc1 ff_loop')
    stamp(a, 3, VS)
    if STAMP: a(f'v_writelane_b32 v{VS}, s44, 13')
    a(f'v_add_f32 v{S1}, v{S1}, v{S1+1}')
    a(f'v_add_f32 v{S2}, v{S2}, v{S2+1}')
    a(f'v_mov_b32 v{S1+1}, v{S1}')
    a(f'v_mov_b32 v{S2+1}, v{S2}')
    a(f'v_permlane32_swap_b32 v{S1}, v{S1+1}')
    a(f'v_permlane32_swap_b32 v{S2}, v{S2+1}')
    a(f'v_add_f32 v{S1}, v{S1}, v{S1+1}')
    a(f'v_add_f32 v{S2}, v{S2}, v{S2+1}')
    a(f'v_mul_f32 v{S1}, 0xbb000000, v{S1}')
    a(f'v_mul_f32 v{S2}, 0x3b000000, v{S2}')
    a('s_waitcnt lgkmcnt(0)')
    for w in range(4):
        a(f'v_cvt_pk_bf16_f32 v{HF[0]+w}, v{S1}, v{S1}')
    a(f'v_fma_f32 v{S2}, -v{S1}, v{S1}, v{S2}')
    a(f'v_max_f32 v{S2}, 0, v{S2}')
    C1, IR2 = 24, 26
    b = Asm()
    ln_sigma(b, S2, C1)
    b(f'v_mul_f32 v{IR2}, v{S2}, v{S2}')
    b(f'v_mul_f32 v{C1}, 0xbfb8aa3b, v{C1}')
    b(f'v_mov_b32 v{IR2+1}, v{IR2}')
    b(f'v_mov_b32 v{C1+1}, v{C1}')
    fin = [l.strip() for l in b.lines if not l.strip().startswith('s_nop')]
    ep = [epi_tile(ACC + 16 * f, 64 + 16 * (f & 1), C1, IR2) for f in range(7)]
    a(mfma(0, 0))
    for x in fin[:5]: a(x)
    a(mfma(0, 1))
    for x in fin[5:10]: a(x)
    a(mfma(0, 2))
    for x in fin[10:]: a(x)
    e0 = ep[0]
    for f in range(3, 7):
        a(mfma(0, f))
        for x in e0[4*(f-3):4*(f-3)+4]: a(x)
    ep[0] = e0[16:]
    for f in range(7):
        T = 64 + 16 * (f & 1)
        for x in ep[f]: a(x)
        a(f'buffer_store_dwordx4 {Q(T+8)}, v3, s[{WS}:{WS+3}], s37 offen offset:{1024*(f&3)}{SC}')
        if f == 3: a('s_add_u32 s37, s37, 4096')
    stamp(a, 4, VS)
    a('v_mov_b32 v4, 1')
    a('v_mov_b32 v5, 0')
    a('s_waitcnt vmcnt(0)')
    a('s_mov_b64 exec, 1')
    a(f'buffer_store_dword v4, v5, s[{WS}:{WS+3}], s38 offen sc1')
    stamp(a, 5, VS)
    stamp_end(a, 6, VS, 2, 248)
    a('s_endpgm')
    for st2 in range(2):
        a(f'ff_xspin{st2}:')
        a(f'ds_read_b32 v{PV}, v8 offset:{16+16*st2}')
        a('s_add_u32 s44, s44, 1')
        a('s_cmp_gt_u32 s44, 0x100000')
        a('s_waitcnt lgkmcnt(0)')
        a(f's_cbranch_scc1 ff_xgo{st2}')
        a(f'v_cmp_ne_u32 vcc, 0, v{PV}')
        a(f's_cbranch_vccnz ff_xspin{st2}')
        a(f's_branch ff_xgo{st2}')
    a('ff_ld:')
    a.flush_hist()
    VS = 1
    stamp_begin(a, VS)
    a('s_mul_i32 s28, s22, %d' % W1F_NT)
    a('s_mul_i32 s24, s20, 3584')
    a('v_add_u32 v4, s24, v3')
    a('s_lshl_b32 s25, s21, 17')
    a('s_lshl_b32 s26, s20, 11')
    a('v_add_u32 v7, s26, v3')
    a('s_add_u32 s26, s26, 14336')
    a('s_mov_b32 s30, 0')
    a('s_mov_b32 s31, 0')
    a('s_lshl_b32 s29, s20, 2')
    a('s_add_u32 s29, s29, %d' % FF_FLG)
    a('s_mov_b32 s47, 0x7f000000')
    a('s_mov_b32 m0, s26')
    a('s_waitcnt lgkmcnt(0)')
    srd(a, HT, 4, 131072, WS_HT, offreg=25)
    srd(a, W1F, 4, 33 * 7168, WS_W1F, offreg=28)
    a_real = a
    class Filt:
        def __call__(self, t):
            if NODMA and t.startswith('buffer_load_dwordx4') and t.endswith('lds'):
                if NODMA == 2: a_real(t.replace('buffer_load_dwordx4 ', 'buffer_load_dwordx4 v[112:115], ').replace(' lds', ''))
                return
            a_real(t)
    def pace():
        if PACE: a(f's_waitcnt vmcnt({PACE})')
    def dma(j, a=Filt()):
        slot = (j % G1_NS) * G1_SLOT
        if j < 16:
            if j: a('s_add_u32 m0, s26, %d' % slot)
            pace()
            a(f'buffer_load_dwordx4 v7, s[{HT}:{HT+3}], s31 offen lds')
            pace()
            a(f'buffer_load_dwordx4 v7, s[{HT}:{HT+3}], s31 offen offset:1024 lds')
        a('s_add_u32 m0, s24, %d' % slot)
        a('s_add_u32 s31, s31, 8192')
        pace()
        a(f'buffer_load_dwordx4 v4, s[{W1F}:{W1F+3}], s30 offen lds')
        pace()
        a(f'buffer_load_dwordx4 v4, s[{W1F}:{W1F+3}], s30 offen offset:1024 lds')
        pace()
        a(f'buffer_load_dwordx4 v4, s[{W1F}:{W1F+3}], s30 offen offset:2048 lds')
        a('s_mov_b32 exec_hi, 0')
        pace()
        a(f'buffer_load_dwordx4 v4, s[{W1F}:{W1F+3}], s30 offen offset:3072 lds')
        if j == 0: a('s_barrier')
        a('s_add_u32 m0, s29, %d' % (16 * j))
        a('s_mov_b32 exec_lo, 1')
        a('s_add_u32 s30, s30, 14336')
        a(f'buffer_load_dword v4, s[{W1F}:{W1F+3}], s47 offen lds')
        a('s_mov_b64 exec, -1')
        if j >= 6 and not PACE: a('s_waitcnt vmcnt(49)')
    stamp(a, 1, VS)
    pos2s = {p: st for st, p in BARS.items()}
    allowed = G1_NS - 1
    for j in range(17):
        assert j <= allowed, (j, allowed)
        dma(j)
        if j == 1:
            a('s_and_b32 s48, s2, 7')
            a('s_lshl_b32 s48, s48, 2')
            a('s_bfe_u32 s49, s2, 0x20003')
            a('s_add_u32 s48, s48, s49')
            a('s_lshr_b32 s49, s2, 5')
            a('s_mul_i32 s50, s48, 224')
            a('s_mul_i32 s52, s20, 28')
            a('s_add_u32 s50, s50, s52')
            a('s_lshl_b32 s50, s50, 10')
            a('s_add_u32 s50, s50, %d' % WS_ACT)
            a('s_mul_i32 s51, s49, 112')
            a('s_add_u32 s51, s51, s52')
            a('s_lshl_b32 s51, s51, 11')
            a('s_add_u32 s51, s51, %d' % WS_WDF)
            if ROT2:
                a('s_mul_i32 s53, s49, 7')
                a('s_lshr_b32 s53, s53, 1')
                a('s_lshl_b32 s53, s53, 10')
            else:
                a('s_mov_b32 s53, 0')
            a('s_lshl_b32 s54, s53, 1')
            a('s_lshr_b32 s56, s20, 1')
            a('s_and_b32 s57, s20, 1')
            a('s_lshl_b32 s58, s56, 10')
            a('v_add_u32 v8, s58, v3')
            a('v_xor_b32 v9, 0x400, v8')
            a('s_mul_i32 s58, s57, 0x1c000')
            a('v_add_u32 v10, s58, v3')
            a('v_xor_b32 v11, 0x1c000, v10')
            srd(a, WS, 4, WS_END)
            srd(a, OUT, 6, 2 * MiB)
        if j in pos2s:
            a('s_barrier')
            allowed = max(allowed, pos2s[j] - 1 + G1_NS)
    stamp(a, 2, VS)
    wd_next = 's_add_u32 s54, s54, 2048\ns_cmp_eq_u32 s54, 57344\ns_cselect_b32 s54, 0, s54\ns_add_u32 s55, s51, s54'
    order = []
    ACC = 16
    WDR = 112
    a('s_add_u32 s55, s51, s54')
    wreg = {}
    for k in range(RK):
        wreg[k] = WDR + 8 * k
        a(f'buffer_load_dwordx4 {Q(wreg[k])}, v8, s[{WS}:{WS+3}], s55 offen')
        a(f'buffer_load_dwordx4 {Q(wreg[k]+4)}, v9, s[{WS}:{WS+3}], s55 offen')
        a(wd_next)
        if k % 4 == 3 or PACE: a('s_waitcnt vmcnt(%d)' % (PACE - 1 if PACE else 50))
        if k == BAR14: a('s_barrier')
    a('s_mul_i32 s58, s20, 10240')
    a('s_add_u32 s58, s58, %d' % FF_WD)
    a('s_mov_b32 m0, s58')
    for k in range(LK):
        a(f'buffer_load_dwordx4 v8, s[{WS}:{WS+3}], s55 offen lds')
        a('s_add_u32 m0, m0, 1024')
        a(f'buffer_load_dwordx4 v9, s[{WS}:{WS+3}], s55 offen lds')
        a('s_add_u32 m0, m0, %d' % (1024 if k != 4 else FF_WD2 - FF_WD - 9216))
        a(wd_next)
        if k % 4 == 3 or PACE: a('s_waitcnt vmcnt(%d)' % (PACE - 1 if PACE else 50))
    a('v_add_u32 v12, s58, v3')
    a('v_lshrrev_b32 v5, 3, v2')
    a('v_and_b32 v6, 7, v2')
    a('s_and_b32 s59, s48, 1')
    a('s_lshl_b32 s59, s59, 3')
    a('v_or_b32 v6, s59, v6')
    a('v_and_b32 v7, 3, v5')
    a('v_lshlrev_b32 v7, 2, v7')
    a('v_xor_b32 v6, v6, v7')
    a('v_lshlrev_b32 v5, 8, v5')
    a('v_lshl_add_u32 v5, v6, 4, v5')
    a('s_lshl_b32 s59, s49, 14')
    a('s_lshl_b32 s60, s20, 12')
    a('s_add_u32 s59, s59, s60')
    a('s_lshr_b32 s60, s48, 1')
    a('s_lshl_b32 s60, s60, 17')
    a('s_add_u32 s59, s59, s60')
    a('s_add_u32 s59, s59, %d' % WS_HT)
    a('s_add_u32 s60, s59, 0x800')
    a('s_lshl_b32 s61, s57, 11')
    a('s_mul_i32 s64, s56, %d' % (FF_WD2 - FF_WD))
    a('s_add_u32 s61, s61, s64')
    a('s_add_u32 m0, s61, %d' % FF_H)
    a(f'buffer_load_dwordx4 v5, s[{WS}:{WS+3}], s59 offen lds')
    a('s_add_u32 m0, m0, 1024')
    a(f'buffer_load_dwordx4 v5, s[{WS}:{WS+3}], s60 offen lds')
    a('v_and_b32 v4, 15, v2')
    a('v_lshrrev_b32 v5, 4, v2')
    a('v_lshrrev_b32 v6, 2, v4')
    a('v_and_b32 v7, 3, v4')
    a('v_lshrrev_b32 v13, 1, v5')
    a('v_and_b32 v5, 1, v5')
    a('v_lshl_add_u32 v14, v13, 2, v6')
    a('v_lshlrev_b32 v14, 7, v14')
    a('v_lshl_add_u32 v14, v5, 5, v14')
    a('v_lshl_add_u32 v14, v7, 3, v14')
    a('s_lshl_b32 s60, s57, 6')
    a('s_add_u32 s59, s64, s60')
    a('s_add_u32 s59, s59, %d' % FF_H)
    a('v_add_u32 v14, s59, v14')
    a('v_and_b32 v15, 31, v2')
    a('v_lshlrev_b32 v15, 10, v15')
    a('v_lshl_add_u32 v15, v13, 4, v15')
    a('s_lshl_b32 s62, s48, 16')
    a('s_lshl_b32 s60, s57, 15')
    a('s_add_u32 s62, s62, s60')
    a('s_lshl_b32 s60, s49, 7')
    a('s_add_u32 s62, s62, s60')
    a('s_lshl_b32 s60, s56, 6')
    a('s_add_u32 s62, s62, s60')
    a('s_mov_b32 s63, 0xffff0000')
    a('s_lshl_b32 s59, s48, 7')
    a('s_lshl_b32 s60, s20, 5')
    a('s_add_u32 s59, s59, s60')
    a('s_add_u32 s59, s59, %d' % WS_GF)
    a('v_and_b32 v4, 7, v2')
    a('v_lshlrev_b32 v4, 2, v4')
    a('s_mov_b32 s60, 0')
    stamp(a, 3, VS)
    a('ff_poll:')
    a(f'buffer_load_dword v5, v4, s[{WS}:{WS+3}], s59 offen sc1')
    a('s_add_u32 s60, s60, 1')
    a('s_waitcnt vmcnt(0)')
    a('v_cmp_eq_u32 vcc, 0, v5')
    a('s_cbranch_vccz ff_ready')
    a('s_cmp_lt_u32 s60, 0x40000')
    a('s_sleep 2')
    a('s_cbranch_scc1 ff_poll')
    a('ff_ready:')
    stamp(a, 4, VS)
    for p in (1, 2, 3):
        a(f's_xor_b32 s33, s20, {p}')
        a('s_mul_i32 s33, s33, 12288')
        a(f'v_add_u32 v{3+p}, s33, v3')
    a('s_mul_i32 s33, s20, 12288')
    a('v_add_u32 v7, s33, v3')
    a('s_add_u32 s41, s50, s53') if False else None
    a('s_add_u32 s61, s50, s53')
    act_next = 's_add_u32 s53, s53, 1024\ns_cmp_eq_u32 s53, 28672\ns_cselect_b32 s53, 0, s53\ns_add_u32 s61, s50, s53'
    free = [80, 88, 96, 104]
    areg = {}
    order = []
    q = DsQ(a)
    nact = 0; nwl = RK
    DA = 6
    def issue(k_now):
        nonlocal nact, nwl
        while True:
            if nwl < 28 and nwl <= k_now + (3 if nwl < RK + LK else DA) and free and nwl <= nact:
                r = free.pop(0); wreg[nwl] = r
                if nwl < RK + LK:
                    lo = 2048 * ((nwl - RK) % 5) + (FF_WD2 - FF_WD) * ((nwl - RK) // 5)
                    q.op(f'ds_read_b128 {Q(r)}, v12 offset:{lo}', nwl)
                    q.op(f'ds_read_b128 {Q(r+4)}, v12 offset:{lo+1024}', nwl)
                else:
                    a(f'buffer_load_dwordx4 {Q(r)}, v8, s[{WS}:{WS+3}], s55 offen')
                    a(f'buffer_load_dwordx4 {Q(r+4)}, v9, s[{WS}:{WS+3}], s55 offen')
                    a(wd_next)
                    order.extend([nwl] * 2)
                nwl += 1
            elif nact < 28 and nact <= k_now + DA and free:
                r = free.pop(0); areg[nact] = r
                a(f'buffer_load_dwordx4 {Q(r)}, v10, s[{WS}:{WS+3}], s61 offen{SC}')
                a(f'buffer_load_dwordx4 {Q(r+4)}, v11, s[{WS}:{WS+3}], s61 offen{SC}')
                a(act_next)
                order.extend([nact] * 2)
                nact += 1
            else:
                break
    issue(0)
    RESR = None
    for k in range(28):
        last = max(i for i, o in enumerate(order) if o == k)
        a(f's_waitcnt vmcnt({len(order) - 1 - last})')
        if RK <= k < RK + LK: q.wait(k)
        for p in (3, 2, 1, 0):
            px, py = p >> 1, p & 1
            c = f'v[{ACC+16*p}:{ACC+16*p+15}]'
            a(f'v_mfma_f32_32x32x16_bf16 {c}, {Q(wreg[k]+4*px)}, {Q(areg[k]+4*py)}, {"0" if k == 0 else c}')
        free += [wreg[k], areg[k]]
        issue(k + 1)
        if k == 25:
            a('s_barrier')
            RESR = free.pop(0)
            for x in range(4):
                q.op(f'ds_read_b64_tr_b16 {P(RESR+2*x)}, v14 offset:{1024*x}', 'res')
    stamp(a, 5, VS)
    for p in (3, 2, 1):
        for j in range(4):
            q.op(f'ds_write_b128 v{3+p}, {Q(ACC+16*p+4*j)} offset:{FF_RED+(p-1)*4096+1024*j}', 'w')
    R = 224 if 224 != RESR and 232 != RESR else 192
    assert RESR not in (R, R + 8)
    q.wait('res')
    for x in range(4):
        a(f'v_lshlrev_b32 v{R+4*x}, 16, v{RESR+2*x}')
        a(f'v_and_b32 v{R+4*x+1}, s63, v{RESR+2*x}')
        a(f'v_lshlrev_b32 v{R+4*x+2}, 16, v{RESR+2*x+1}')
        a(f'v_and_b32 v{R+4*x+3}, s63, v{RESR+2*x+1}')
    for r in range(0, 16, 2):
        a(f'v_pk_add_f32 {P(R+r)}, {P(R+r)}, {P(ACC+r)}')
    a('s_waitcnt lgkmcnt(0)')
    a('s_barrier')
    stamp(a, 6, VS)
    for j in range(4):
        for p in range(3):
            a(f'ds_read_b128 {Q(32+16*p+4*j)}, v7 offset:{FF_RED+4096*p+1024*j}')
    for j in range(4):
        a(f's_waitcnt lgkmcnt({9-3*j})')
        for r in range(4*j, 4*j+4, 2):
            a(f'v_pk_add_f32 {P(R+r)}, {P(R+r)}, {P(32+r)}')
            a(f'v_pk_add_f32 {P(48+r)}, {P(48+r)}, {P(64+r)}')
        for r in range(4*j, 4*j+4, 2):
            a(f'v_pk_add_f32 {P(R+r)}, {P(R+r)}, {P(48+r)}')
        a(f'v_cvt_pk_bf16_f32 v{100+2*j}, v{R+4*j}, v{R+4*j+1}')
        a(f'v_cvt_pk_bf16_f32 v{101+2*j}, v{R+4*j+2}, v{R+4*j+3}')
        if j & 1:
            p = j >> 1
            a(f'v_permlane32_swap_b32 v{100+4*p}, v{102+4*p}')
            a(f'v_permlane32_swap_b32 v{101+4*p}, v{103+4*p}')
            a(f'buffer_store_dwordx4 {Q(100+4*p)}, v15, s[{OUT}:{OUT+3}], s62 offen offset:{32*p}')
    stamp(a, 7, VS)
    stamp_end(a, 8, VS, 2, 110)
    a('ff_end:')
    a('s_endpgm')
    return name, 256, 102, None

class DsQ:
    def __init__(self, a):
        self.a = a; self.q = []; self.done = 0
    def op(self, txt, tag=None):
        self.a(txt); self.q.append(tag)
    def wait(self, *tags):
        idx = max(len(self.q) - 1 - self.q[::-1].index(t) for t in tags) + 1
        if idx > self.done:
            n = min(len(self.q) - idx, 15)
            self.a(f's_waitcnt lgkmcnt({n})')
            self.done = len(self.q) - n

def main(out):
    a = Asm()
    ks = []
    launches = [('prep_kernel', 256, 512, 0), ('conv_kernel', 256, 512, CV_LDS), ('ffn_kernel', 256, 512, FF_LDS)]
    gens = [gen_prep, gen_conv, gen_ffn]
    if TLA >= 0:
        launches.append(('tl_kernel', 1, 64, 0)); gens.append(gen_tl)
    txt = HEADER
    for n, g, b, l in launches:
        txt += f'; @launch kernel={n} grid=({g},1,1) block=({b},1,1) lds={l}\n'
    txt += '.amdgcn_target "amdgcn-amd-amdhsa--gfx950"\n.text\n'
    for g in gens:
        ks.append(g(a))
    txt += a.text() + 'code_end:\n'
    txt += '.section .rodata,"a"\n'
    for n, v, s, acc in ks:
        txt += kernel_desc(n, v, s, acc)
    open(out, 'w').write(txt)

if __name__ == '__main__':
    for arg in sys.argv[2:]:
        if arg == 'stamp': STAMP = True
        elif '=' in arg:
            k, v = arg.split('='); globals()[k] = int(v, 0)
    main(sys.argv[1] if len(sys.argv) > 1 else 'sequential_preLN__ssm_conv_h3__swiglu_ffn__prompt.s')
```

```python
import sys
sys.path.insert(0, 'dev')
from asmlib import *

MiB = 1 << 20
CS = 4224
CHB = 512 * CS
import os
WSB = int(os.environ.get('WSB', '0')) * MiB
WS_XR0 = WSB
WS_XR1 = WSB + CHB
WS_XT = WSB + 2 * CHB
WS_ST = WSB + 3 * CHB
WS_GF = WSB + 3 * CHB + 32768
WS_HT = WSB + 3 * CHB + 65536
WS_W1F = WS_HT + 2 * MiB
W1F_NT = 232 * 1024
PF_FILT = 1
PF_CODE = 1
SC_HT = 0
SC_FMT = 1
PF_WD = 1
ROT1 = 0
ROT2 = 1
WS_WDF = WS_W1F + 16 * W1F_NT
WS_ACT = WS_WDF + 1792 * 1024
WS_END = WS_ACT + 7 * MiB
WS_DBG = 32 * MiB

HEADER = open('sequential_preLN__ssm_conv_h3__swiglu_ffn__prompt.s.ref').read().split('; Override launch')[0]

def srd(a, d, base, size, off=None, offreg=None):
    if off:
        a(f's_add_u32 s{d}, s{base}, {hex(off)}')
        a(f's_addc_u32 s{d+1}, s{base+1}, 0')
        if offreg is not None:
            a(f's_add_u32 s{d}, s{d}, s{offreg}')
            a(f's_addc_u32 s{d+1}, s{d+1}, 0')
    elif offreg is not None:
        a(f's_add_u32 s{d}, s{base}, s{offreg}')
        a(f's_addc_u32 s{d+1}, s{base+1}, 0')
    else:
        a(f's_mov_b32 s{d}, s{base}')
        a(f's_mov_b32 s{d+1}, s{base+1}')
    a(f's_mov_b32 s{d+2}, {hex(size)}')
    a(f's_mov_b32 s{d+3}, 0x20000')

STAMP = False
def stamp(a, i, vst):
    if not STAMP: return
    a('s_memtime s[98:99]')
    a('s_waitcnt lgkmcnt(0)')
    a(f'v_writelane_b32 v{vst}, s98, {i}')
def stamp_rt(a, i, vst):
    if not STAMP: return
    a('s_memrealtime s[98:99]')
    a('s_waitcnt lgkmcnt(0)')
    a(f'v_writelane_b32 v{vst}, s98, {i}')
def stamp_begin(a, vst):
    if not STAMP: return
    a(f'v_mov_b32 v{vst}, 0')
    stamp_rt(a, 15, vst)
    stamp(a, 0, vst)
def stamp_end(a, i, vst, kidx, tmp):
    if not STAMP: return
    a('s_mov_b64 exec, -1')
    a('s_waitcnt vmcnt(0)')
    stamp(a, i, vst)
    stamp_rt(a, 14, vst)
    a('s_load_dwordx2 s[96:97], s[0:1], 96')
    a('s_waitcnt lgkmcnt(0)')
    srd(a, 92, 96, 4 << 20, WS_DBG)
    a(f'v_lshrrev_b32 v{tmp}, 6, v0')
    a(f'v_lshlrev_b32 v{tmp}, 6, v{tmp}')
    a(f'v_and_b32 v{tmp+1}, 63, v0')
    a(f'v_lshl_add_u32 v{tmp}, v{tmp+1}, 2, v{tmp}')
    a('s_lshl_b32 s98, s2, 9')
    a(f's_add_u32 s98, s98, {kidx*262144}')
    a('s_mov_b32 exec_lo, 0xffff')
    a('s_mov_b32 exec_hi, 0')
    a(f'buffer_store_dword v{vst}, v{tmp}, s[92:95], s98 offen')

TLA = -1
TLB = -1
TLM = 4
_tl_idx = [0]
def tl_mark(a):
    if TLA < 0: return
    k = _tl_idx[0]; _tl_idx[0] += 1
    L = a.newlabel('tl')
    a('s_cmp_lg_u32 s2, 0')
    a(f's_cbranch_scc1 {L}')
    a('s_memrealtime s[98:99]')
    a('s_load_dwordx2 s[96:97], s[0:1], 96')
    a('s_waitcnt lgkmcnt(0)')
    srd(a, 92, 96, 4096, WS_DBG)
    a('v_mov_b32 v1, s98')
    a('v_mov_b32 v2, 0')
    a(f'buffer_store_dword v1, v2, s[92:95], 0 offen offset:{4*k}')
    a(f'{L}:')
def gen_tl(a):
    name = 'tl_kernel'
    a.raw(f'.globl {name}'); a.raw('.p2align 8'); a.raw(f'.type {name},@function'); a.raw(f'{name}:')
    a.flush_hist()
    a('s_cmp_lg_u32 s2, 0')
    a('s_cbranch_scc1 tl_end')
    a('s_memrealtime s[20:21]')
    a('s_load_dwordx2 s[4:5], s[0:1], 96')
    a('s_waitcnt lgkmcnt(0)')
    srd(a, 8, 4, 4096, WS_DBG)
    a('v_mov_b32 v2, 0')
    a('buffer_load_dwordx4 v[4:7], v2, s[8:11], 0 offen')
    a('s_waitcnt vmcnt(0)')
    a('v_mov_b32 v%d, s20' % (4 + _tl_idx[0]))
    a(f'v_sub_u32 v9, v{4+TLB}, v{4+TLA}')
    a('v_readfirstlane_b32 s22, v9')
    a('s_min_u32 s22, s22, 5000')
    a(f's_mul_i32 s22, s22, {TLM}')
    a('tl_spin:')
    a('s_memrealtime s[24:25]')
    a('s_waitcnt lgkmcnt(0)')
    a('s_sub_u32 s24, s24, s20')
    a('s_cmp_lt_u32 s24, s22')
    a('s_cbranch_scc1 tl_spin')
    a('tl_end:')
    a('s_endpgm')
    return name, 16, 32, None

def begin(a, name):
    a.raw(f'.globl {name}')
    a.raw('.p2align 8')
    a.raw(f'.type {name},@function')
    a.raw(f'{name}:')
    a.flush_hist()
    tl_mark(a)

def red32(a, v, t):
    a(f'v_add_f32_dpp v{v}, v{v}, v{v} quad_perm:[1,0,3,2] row_mask:0xf bank_mask:0xf')
    a(f'v_add_f32_dpp v{v}, v{v}, v{v} quad_perm:[2,3,0,1] row_mask:0xf bank_mask:0xf')
    a(f'v_add_f32_dpp v{v}, v{v}, v{v} row_half_mirror row_mask:0xf bank_mask:0xf')
    a(f'v_add_f32_dpp v{v}, v{v}, v{v} row_mirror row_mask:0xf bank_mask:0xf')
    a(f'v_mov_b32 v{t}, v{v}')
    a(f'v_permlane16_swap_b32 v{v}, v{t}')
    a(f'v_add_f32 v{v}, v{v}, v{t}')

def rne(a, d, s):
    a(f'v_cvt_pk_bf16_f32 v{d}, v{s}, v{s}')
    a(f'v_lshlrev_b32 v{d}, 16, v{d}')

def ln_sigma(a, var, rs):
    rne(a, var, var)
    a(f'v_add_f32 v{var}, 0x3727c5ac, v{var}')
    rne(a, var, var)
    a(f'v_sqrt_f32 v{var}, v{var}')
    rne(a, var, var)
    a(f'v_rcp_f32 v{rs}, v{var}')

def interleave(a, ms, fill, start=0):
    n = len(ms); k = 0
    for i, m in enumerate(ms):
        a(m)
        tgt = (len(fill) * (i + 1) + n - 1) // n
        while k < tgt:
            a(fill[k]); k += 1

P = lambda r: f'v[{r}:{r+1}]'
Q = lambda r: f'v[{r}:{r+3}]'

def gen_prep(a):
    name = 'prep_kernel'
    begin(a, name)
    VS = 39
    X, K, V, SH, O0, O1, ST = 16, 20, 24, 28, 32, 36, 40
    a('s_cmp_ge_u32 s2, 256')
    a('s_cbranch_scc1 prep_end')
    stamp_begin(a, VS)
    a('s_load_dwordx8 s[4:11], s[0:1], 0')
    a('s_load_dwordx2 s[12:13], s[0:1], 96')
    a('v_lshrrev_b32 v1, 8, v0')
    a('v_and_b32 v4, 31, v0')
    a('v_readfirstlane_b32 s53, v1')
    a('v_bfe_u32 v5, v0, 5, 3')
    a('s_and_b32 s14, s2, 7')
    a('s_lshr_b32 s15, s2, 3')
    a('s_lshl_b32 s44, s15, 16')
    a('s_lshl_b32 s45, s14, 7')
    a('s_add_u32 s44, s44, s45')
    a('v_lshlrev_b32 v2, 13, v5')
    a('v_lshl_add_u32 v2, v4, 2, v2')
    a('v_add_u32 v2, s44, v2')
    a('v_add_u32 v3, 0x1000, v2')
    a('s_mov_b32 s47, %d' % CS)
    a('s_mov_b32 s50, 0xffff0000')
    a('s_mul_i32 s45, s14, %d' % (64 * CS))
    a('s_lshl_b32 s46, s15, 7')
    a('v_mul_u32_u24 v8, %d, v4' % (2 * CS))
    a('s_cmp_eq_u32 s53, 0')
    a('s_cbranch_scc0 prep_x')
    a('v_subrev_u32 v1, 0x1000, v2')
    a('s_lshl_b32 s48, s14, 9')
    a('v_lshlrev_b32 v6, 4, v4')
    a('v_add_u32 v6, s48, v6')
    a('s_sub_u32 s45, s45, s46')
    a('s_add_u32 s45, s45, 4080')
    a('v_lshlrev_b32 v9, 4, v5')
    a('v_sub_u32 v8, v8, v9')
    a('v_add_u32 v8, s45, v8')
    a('s_waitcnt lgkmcnt(0)')
    stamp(a, 1, VS)
    srd(a, K, 6, 2 * MiB)
    KR, VR, SHR = 10, 22, 32
    for r in range(12):
        a(f'buffer_load_dword v{KR+r}, v{1+r//4}, s[{K}:{K+3}], 0 offen offset:{(r%4)*1024}')
    srd(a, SH, 10, 4096)
    a(f'buffer_load_dwordx4 {Q(SHR)}, v6, s[{SH}:{SH+3}], 0 offen')
    srd(a, V, 8, 2 * MiB)
    for r in range(9):
        rr = r + 3
        a(f'buffer_load_dword v{VR+r}, v{1+rr//4}, s[{V}:{V+3}], 0 offen offset:{(rr%4)*1024}')
    srd(a, O0, 12, CHB, WS_XR0)
    srd(a, O1, 12, CHB, WS_XR1)
    if PF_CODE:
        a('s_getpc_b64 s[54:55]')
        a('pf_here:')
        a('s_add_u32 s54, s54, conv_kernel-pf_here')
        a('s_addc_u32 s55, s55, 0')
        a('s_lshl_b32 s56, s15, 10')
        a('v_lshl_add_u32 v36, v5, 7, s56')
        a('v_min_u32 v36, code_end-conv_kernel-4, v36')
        a('v_mov_b32 v37, s55')
        a('v_add_co_u32 v36, vcc, s54, v36')
        a('v_addc_co_u32 v37, vcc, 0, v37, vcc')
        a('global_load_dword v38, v[36:37], off')
    KF, WP, VF, KV = 40, 64, 72, 92
    stamp(a, 2, VS)
    a('s_waitcnt vmcnt(%d)' % (10 + PF_CODE))
    stamp(a, 3, VS)
    for r in range(12):
        a(f'v_lshlrev_b32 v{KF+2*r}, 16, v{KR+r}')
        a(f'v_and_b32 v{KF+2*r+1}, s50, v{KR+r}')
    a('s_waitcnt vmcnt(%d)' % (9 + PF_CODE))
    for j in range(4):
        for c in range(2):
            src = SHR + 2 * c + j // 2
            if j % 2 == 0:
                a(f'v_lshlrev_b32 v{WP+2*j+c}, 16, v{src}')
            else:
                a(f'v_and_b32 v{WP+2*j+c}, s50, v{src}')
    for i in range(9):
        d = KV + 2 * i
        a(f'v_pk_mul_f32 {P(d)}, {P(KF+2*i)}, {P(WP+6)}')
    for j in (2, 1, 0):
        for i in range(9):
            d = KV + 2 * i
            a(f'v_pk_fma_f32 {P(d)}, {P(KF+2*(i+3-j))}, {P(WP+2*j)}, {P(d)}')
    a('s_waitcnt vmcnt(%d)' % PF_CODE)
    for r in range(9):
        a(f'v_lshlrev_b32 v{VF+2*r}, 16, v{VR+r}')
        a(f'v_and_b32 v{VF+2*r+1}, s50, v{VR+r}')
    for i in range(9):
        d = KV + 2 * i
        a(f'v_pk_mul_f32 {P(d)}, {P(d)}, {P(VF+2*i)}')
    O = 112
    kv = lambda row, c: KV + 2 * (row + 1) + c
    for c in range(2):
        for w in range(4):
            a(f'v_cvt_pk_bf16_f32 v{O+4*c+w}, v{kv(7-2*w,c)}, v{kv(6-2*w,c)}')
        a(f'buffer_store_dwordx4 {Q(O+4*c)}, v8, s[{O0}:{O0+3}], {"s47" if c else "0"} offen')
    for c in range(2):
        for w in range(4):
            a(f'v_cvt_pk_bf16_f32 v{O+8+4*c+w}, v{kv(6-2*w,c)}, v{kv(5-2*w,c)}')
        a(f'buffer_store_dwordx4 {Q(O+8+4*c)}, v8, s[{O1}:{O1+3}], {"s47" if c else "0"} offen')
    stamp(a, 4, VS)
    stamp_end(a, 5, VS, 0, 110)
    a('s_endpgm')
    a('prep_x:')
    a.flush_hist()
    a('s_lshl_b32 s48, s2, 13')
    a('v_lshlrev_b32 v7, 10, v5')
    a('v_lshl_add_u32 v7, v4, 4, v7')
    a('v_add_u32 v7, s48, v7')
    a('s_add_u32 s45, s45, s46')
    a('v_lshl_add_u32 v8, v5, 4, v8')
    a('v_add_u32 v8, s45, v8')
    a('s_lshl_b32 s46, s2, 5')
    a('v_lshlrev_b32 v9, 2, v5')
    a('v_add_u32 v9, s46, v9')
    a('s_mov_b32 s48, 0x2000')
    a('s_mov_b32 s51, 0x05040100')
    a('s_mov_b32 s52, 0x07060302')
    a('s_load_dwordx2 s[54:55], s[0:1], 32')
    a('s_load_dwordx2 s[56:57], s[0:1], 72')
    a('s_waitcnt lgkmcnt(0)')
    stamp(a, 1, VS)
    srd(a, X, 4, 2 * MiB)
    XR, XS = 10, 20
    a(f'buffer_load_dwordx4 {Q(XS)}, v7, s[{X}:{X+3}], 0 offen')
    a(f'buffer_load_dwordx4 {Q(XS+4)}, v7, s[{X}:{X+3}], 0 offen offset:512')
    for r in range(8):
        a(f'buffer_load_dword v{XR+r}, v{2 if r < 4 else 3}, s[{X}:{X+3}], 0 offen offset:{(r%4)*1024}')
    srd(a, O0, 12, CHB, WS_XT)
    srd(a, ST, 12, 65536, WS_ST)
    if PF_FILT:
        srd(a, K, 54, 2 * MiB)
        srd(a, V, 56, 1792 * 1024)
        a('s_lshl_b32 s58, s14, 5')
        a('s_add_u32 s58, s58, s15')
        a('s_lshl_b32 s58, s58, 13')
        a('s_mul_i32 s59, s2, 7168')
        a('v_and_b32 v30, 63, v0')
        a('v_lshlrev_b32 v30, 7, v30')
        a('v_readfirstlane_b32 s60, v0')
        a('s_cmp_eq_u32 s60, 256')
        a(f's_cselect_b32 s{K+2}, s{K+2}, 0')
        a('s_cmp_eq_u32 s60, 320')
        a(f's_cselect_b32 s{V+2}, s{V+2}, 0')
        a(f'buffer_load_dword v31, v30, s[{K}:{K+3}], s58 offen')
        a(f'buffer_load_dword v32, v30, s[{V}:{V+3}], s59 offen')
    stamp(a, 2, VS)
    a('s_waitcnt vmcnt(%d)' % (10 if PF_FILT else 8))
    stamp(a, 3, VS)
    E = 60
    for r in range(8):
        a(f'v_lshlrev_b32 v{E+2*r}, 16, v{XS+r}')
        a(f'v_and_b32 v{E+2*r+1}, s50, v{XS+r}')
    S = 80
    a(f'v_pk_add_f32 {P(S)}, {P(E)}, {P(E+2)}')
    a(f'v_pk_add_f32 {P(S+2)}, {P(E+4)}, {P(E+6)}')
    a(f'v_pk_add_f32 {P(S+4)}, {P(E+8)}, {P(E+10)}')
    a(f'v_pk_add_f32 {P(S+6)}, {P(E+12)}, {P(E+14)}')
    a(f'v_pk_add_f32 {P(S)}, {P(S)}, {P(S+2)}')
    a(f'v_pk_add_f32 {P(S+4)}, {P(S+4)}, {P(S+6)}')
    a(f'v_pk_add_f32 {P(S)}, {P(S)}, {P(S+4)}')
    a(f'v_add_f32 v{S}, v{S}, v{S+1}')
    red32(a, S, S + 1)
    a(f'v_mul_f32 v{S}, 0xbb000000, v{S}')
    a(f'v_mov_b32 v{S+1}, v{S}')
    a('s_waitcnt vmcnt(%d)' % (2 if PF_FILT else 0))
    O2 = 100
    for c in range(2):
        for w in range(4):
            a(f'v_perm_b32 v{O2+4*c+w}, v{XR+2*w+1}, v{XR+2*w}, s{51+c}')
        a(f'buffer_store_dwordx4 {Q(O2+4*c)}, v8, s[{O0}:{O0+3}], {"s47" if c else "0"} offen')
    for r in range(8):
        a(f'v_pk_add_f32 {P(E+2*r)}, {P(E+2*r)}, {P(S)}')
    a(f'v_pk_mul_f32 {P(S+2)}, {P(E)}, {P(E)}')
    a(f'v_pk_mul_f32 {P(S+4)}, {P(E+2)}, {P(E+2)}')
    for r in range(2, 8):
        d = S + 2 + 2 * (r & 1)
        a(f'v_pk_fma_f32 {P(d)}, {P(E+2*r)}, {P(E+2*r)}, {P(d)}')
    a(f'v_pk_add_f32 {P(S+2)}, {P(S+2)}, {P(S+4)}')
    a(f'v_add_f32 v{S+2}, v{S+2}, v{S+3}')
    red32(a, S + 2, S + 3)
    a(f'v_mul_f32 v{S+2}, 0x3b000000, v{S+2}')
    rne(a, S, S)
    ln_sigma(a, S + 2, S + 4)
    a(f'v_mul_f32 v{S+5}, v{S}, v{S+4}')
    a('v_mov_b32 v33, 0')
    a('v_lshrrev_b32 v34, 1, v9')
    a('s_mov_b32 s61, 0x8000')
    a('s_mov_b32 exec_lo, 1')
    a('s_mov_b32 exec_hi, 1')
    a(f'buffer_store_short v33, v34, s[{ST}:{ST+3}], s61 offen')
    a(f'buffer_store_dword v{S+4}, v9, s[{ST}:{ST+3}], 0 offen')
    a(f'buffer_store_dword v{S+5}, v9, s[{ST}:{ST+3}], s48 offen')
    stamp(a, 4, VS)
    stamp_end(a, 5, VS, 0, 110)
    a('prep_end:')
    a('s_endpgm')
    return name, 128, 102, None

CV_XC = 0
CV_E = 2 * 4 * 4640
CV_RED = CV_E + 2 * 8448
CV_AUX = CV_RED + 16384
CV_FM = CV_AUX + 24576
CV_FLG = CV_FM + 24576
CV_LDS = CV_FLG + 1280
NFMT = 224

def lds_spin(a, vf, vaddr, off, cnt, cond='ne'):
    L = a.newlabel('sp'); D = a.newlabel('spd')
    a(f'{L}:')
    a(f'ds_read_b32 v{vf}, v{vaddr} offset:{off}')
    a(f's_add_u32 s{cnt}, s{cnt}, 1')
    a(f's_cmp_gt_u32 s{cnt}, 0x100000')
    a(f's_cbranch_scc1 {D}')
    a('s_waitcnt lgkmcnt(0)')
    a(f'v_cmp_{cond}_u32 vcc, 0, v{vf}')
    a(f's_cbranch_vccnz {L}')
    a(f'{D}:')

def gen_conv(a):
    name = 'conv_kernel'
    begin(a, name)
    VS = 250
    H, XRS, HT = 20, 24, 32
    a('s_cmp_ge_u32 s2, 256')
    a('s_cbranch_scc1 conv_end')
    stamp_begin(a, VS)
    a('s_load_dwordx4 s[4:7], s[0:1], 32')
    a('s_load_dwordx2 s[14:15], s[0:1], 96')
    a('v_lshrrev_b32 v1, 6, v0')
    a('v_and_b32 v2, 63, v0')
    a('v_readfirstlane_b32 s60, v1')
    a('s_and_b32 s16, s2, 7')
    a('s_lshr_b32 s17, s2, 3')
    a('s_lshl_b32 s16, s16, 5')
    a('s_add_u32 s16, s16, s17')
    a('v_lshlrev_b32 v5, 3, v2')
    a('v_lshlrev_b32 v6, 4, v2')
    a('s_mov_b32 s93, 0x7f000000')
    a('s_mov_b32 s94, 0')
    a('s_cmp_ge_u32 s60, 4')
    a('s_cbranch_scc1 cv_help')
    a('s_lshr_b32 s61, s60, 1')
    a('s_and_b32 s62, s60, 1')
    a('s_lshl_b32 s63, s16, 1')
    a('s_add_u32 s63, s63, s61')
    a('s_lshl_b32 s64, s63, 12')
    a('s_lshl_b32 s65, s16, 2')
    a('s_mul_i32 s66, s61, 8448')
    a('s_add_u32 s66, s66, %d' % CV_E)
    a('s_mul_i32 s70, s61, 18560')
    a('s_mul_i32 s71, s62, 4640')
    a('s_add_u32 s71, s71, s70')
    a('s_xor_b32 s77, s62, 1')
    a('s_mul_i32 s72, s77, %d' % CHB)
    a('s_mul_i32 s73, s63, %d' % CS)
    a('s_add_u32 s72, s72, s73')
    a('s_lshl_b32 s69, s62, 11')
    a('s_lshl_b32 s75, s62, 12')
    a('v_lshrrev_b32 v7, 2, v2')
    a('v_and_b32 v8, 3, v2')
    a('v_lshlrev_b32 v7, 3, v7')
    a('v_lshl_add_u32 v7, v8, 2, v7')
    a('v_add_u32 v7, 0xffffff80, v7')
    a('s_add_u32 s68, s66, s75')
    a('s_add_u32 m0, s68, 256')
    a('s_waitcnt lgkmcnt(0)')
    stamp(a, 1, VS)
    srd(a, H, 4, 4096, offreg=64)
    for i in range(4):
        a(f'buffer_load_dwordx4 v5, s[{H}:{H+3}], s69 offen offset:{512*i} lds')
        a('s_add_u32 m0, m0, 512' if i < 3 else 's_mov_b32 m0, s66')
    srd(a, XRS, 14, 4096, WS_XR0, offreg=72)
    a(f'buffer_load_dword v7, s[{H}:{H+3}], 0 offen lds')
    a('s_mov_b32 m0, s71')
    a('s_load_dword s67, s[6:7], s65')
    for i in range(4):
        a(f'buffer_load_dwordx4 v6, s[{XRS}:{XRS+3}], 4 offen offset:{1024*i} lds')
    a('s_add_u32 m0, m0, 9280')
    a('s_lshl_b32 s74, s60, 2')
    for i in range(4):
        a(f'buffer_load_dwordx4 v6, s[{XRS}:{XRS+3}], 0 offen offset:{1024*i} lds')
    a('s_barrier')
    a('s_add_u32 m0, s74, %d' % CV_FLG)
    a('s_mov_b64 exec, 1')
    a(f'buffer_load_dword v6, s[{XRS}:{XRS+3}], s93 offen lds')
    a('s_mov_b64 exec, -1')
    srd(a, HT, 14, 2 * MiB, WS_HT)
    for par, sh in ((0, 62), (1, 77)):
        a(f's_lshl_b32 s{40+par}, s{sh}, 9')
        a(f's_lshl_b32 s{50+par}, s{sh}, 18')
    a('s_lshl_b32 s79, s63, 8')
    a('s_add_u32 s50, s50, s79')
    a('s_add_u32 s51, s51, s79')
    a('s_add_u32 s51, s51, 0x80000')
    a('s_add_u32 s52, s50, 0x100000')
    a('s_add_u32 s53, s51, 0x100000')
    a('v_and_b32 v12, 31, v2')
    a('v_lshlrev_b32 v12, 3, v12')
    a('s_and_b32 s74, s63, 3')
    a('s_lshl_b32 s74, s74, 6')
    a('v_xor_b32 v12, s74, v12')
    a('v_lshrrev_b32 v13, 5, v2')
    a('v_lshl_add_u32 v12, v13, 17, v12')
    XA, HA = 224, 225
    a('v_and_b32 v3, 15, v2')
    a('v_lshrrev_b32 v4, 4, v2')
    a('v_lshrrev_b32 v9, 2, v3')
    a('v_mul_u32_u24 v10, 4640, v8')
    a('v_lshlrev_b32 v9, 3, v9')
    a('v_sub_u32 v9, v4, v9')
    a('v_add_u32 v9, 24, v9')
    a(f'v_lshl_add_u32 v{XA}, v9, 4, v10')
    a('s_lshl_b32 s88, s62, 8')
    a('s_add_u32 s88, s88, s70')
    a(f'v_add_u32 v{XA}, s88, v{XA}')
    a(f'v_lshl_add_u32 v{HA}, v4, 1, v3')
    a(f'v_lshlrev_b32 v{HA}, 4, v{HA}')
    a('s_lshl_b32 s89, s62, 9')
    a('s_add_u32 s89, s89, s66')
    a('s_add_u32 s89, s89, 16')
    a(f'v_add_u32 v{HA}, s89, v{HA}')
    a('s_lshl_b32 s88, s61, 12')
    a('s_add_u32 s88, s88, %d' % (CV_AUX + 16384))
    for par in range(2):
        a(f's_sub_u32 s89, s70, s{40+par}')
        a('s_add_u32 s89, s89, %d' % (3 * 4640 + 4088 - 3072))
        a(f'v_sub_u32 v{10+par}, s89, v5')
        a(f's_add_u32 s89, s88, s{40+par}')
        a(f'v_add_u32 v{13+par}, s89, v5')
        a(f's_lshl_b32 s89, s{40+par}, 1')
        a('s_add_u32 s89, s89, %d' % CV_AUX)
        a(f'v_add_u32 v{60+par}, s89, v6')
    a('s_lshl_b32 s90, s60, 12')
    a('s_add_u32 s91, s90, %d' % CV_RED)
    a('s_xor_b32 s90, s90, 0x1000')
    a('s_add_u32 s90, s90, %d' % CV_RED)
    a('v_add_u32 v62, s91, v6')
    a('v_add_u32 v63, s90, v6')
    a('s_mov_b32 s92, 0xffff0000')
    a('v_and_b32 v9, 1, v2')
    a('s_lshl_b32 s89, s61, 3')
    a('s_add_u32 s89, s89, %d' % CV_FLG)
    a('v_lshl_add_u32 v9, v9, 2, s89')
    a('v_lshlrev_b32 v15, 2, v8')
    a('v_add_u32 v15, %d, v15' % (CV_FLG + 16))
    a('s_lshl_b32 s89, s60, 8')
    a('s_add_u32 s89, s89, %d' % (CV_FLG + 256))
    a('v_lshl_add_u32 v3, v2, 2, s89')
    a('s_xor_b32 s89, s60, 1')
    a('s_lshl_b32 s89, s89, 8')
    a('s_add_u32 s89, s89, %d' % (CV_FLG + 256))
    a('v_lshl_add_u32 v4, v2, 2, s89')
    a('v_mov_b32 v7, 0')
    stamp(a, 2, VS)
    lds_spin(a, 1, 9, 0, 94)
    stamp(a, 3, VS)
    FH = [64, 128]; FX = [96, 160]; ACC = 192
    XV, RS, MR, XF = 16, 24, 40, 232
    kvp = [56, 58, 226, 228]
    def rdH(s, ri, aa): return f'ds_read_b128 {Q(FH[s]+4*aa)}, v{HA} offset:{128*(8*aa+ri)}'
    def rdX(s, ri, bb): return f'ds_read_b128 {Q(FX[s]+4*bb)}, v{XA} offset:{64*(56-8*bb+ri)}'
    inited = [False] * 8
    def mf(s, aa, bb):
        nb = aa + bb
        c = Q(ACC + 4 * nb)
        src = c if inited[nb] else '0'
        inited[nb] = True
        return f'v_mfma_f32_16x16x32_bf16 {c}, {Q(FX[s]+4*bb)}, {Q(FH[s]+4*aa)}, {src}'
    pairs = sorted([(aa, bb) for aa in range(8) for bb in range(8) if aa + bb <= 7], key=lambda p: (max(p), p))
    q = DsQ(a)
    todo = []
    for ri in range(4):
        for x in range(8):
            todo.append((rdH(ri & 1, ri, x), ('H', ri, x)))
            todo.append((rdX(ri & 1, ri, x), ('X', ri, x)))
    for _ in range(12):
        q.op(*todo.pop(0))
    a('s_lshl_b32 s90, s61, 4')
    a('s_lshr_b32 s67, s67, s90')
    a('s_lshl_b32 s67, s67, 16')
    aux = []
    for t in range(4):
        par = t & 1
        aux.append(f'ds_read_b64 {P(kvp[t])}, v{10+par} offset:{1024*(3-t)}')
        aux.append(f'ds_read_b64 {P(XV+2*t)}, v{13+par} offset:{1024*t}')
        aux.append(f'ds_read_b128 {Q(RS+4*t)}, v{60+par} offset:{2048*t}')
        aux.append(f'ds_read_b128 {Q(MR+4*t)}, v{60+par} offset:{2048*t+8192}')
    pre = []
    for t in range(4):
        pre += [f'v_lshlrev_b32 v{XF+4*t}, 16, v{XV+2*t}', f'v_and_b32 v{XF+4*t+1}, s92, v{XV+2*t}',
                f'v_lshlrev_b32 v{XF+4*t+2}, 16, v{XV+2*t+1}', f'v_and_b32 v{XF+4*t+3}, s92, v{XV+2*t+1}']
    pre += [f'v_fma_f32 v{RS+r}, v{XF+r}, v{RS+r}, v{MR+r}' for r in range(16)]
    for t in range(4):
        pre += [f'v_and_b32 v{MR+4*t}, s92, v{kvp[t]+1}', f'v_lshlrev_b32 v{MR+4*t+1}, 16, v{kvp[t]+1}',
                f'v_and_b32 v{MR+4*t+2}, s92, v{kvp[t]}', f'v_lshlrev_b32 v{MR+4*t+3}, 16, v{kvp[t]}']
    pre += [f'v_mul_f32 v{MR+r}, v{MR+r}, v{RS+r}' for r in range(16)]
    pre += [f'v_fmac_f32 v{XF+r}, s67, v{MR+r}' for r in range(16)]
    for ri in range(3):
        s = ri & 1
        for n, (aa, bb) in enumerate(pairs):
            q.wait(('H', ri, aa), ('X', ri, bb))
            a(mf(s, aa, bb))
            used = 0
            if todo and todo[0][1][1] <= ri + 1 and (n % 2 == 0 or todo[0][1][1] == ri):
                q.op(*todo.pop(0)); used = 1
            if ri == 0 and n == 31: q.op('ds_read_b32 v1, v15', 'fb')
            if ri == 1 and n == 1:
                q.wait('fb')
                a('v_cmp_ne_u32 vcc, 0, v1')
                a('s_cbranch_vccnz cv_fbspin')
                a('cv_fbgo:')
            if ri == 1 and n % 2 == 1 and n >= 3 and aux: q.op(aux.pop(0), 'aux')
            if ri == 2:
                if n == 0: q.wait('aux')
                for _ in range(2 - used):
                    if pre: a(pre.pop(0))
    assert not todo and not aux, (len(todo), len(aux))
    a('s_cmp_eq_u32 s62, 0')
    a('s_waitcnt lgkmcnt(0)')
    a('s_cbranch_scc0 conv_h1')
    PR = 64
    hist = list(a.hist)
    for half in range(2):
        if half:
            a('conv_h1:'); a.hist = list(hist)
        rest = list(pre)
        keep = [2 * t + ((t & 1) ^ half) for t in range(4)]
        send = [2 * t + ((t & 1) ^ half ^ 1) for t in range(4)]
        ps = sorted([p for p in pairs if sum(p) in send], key=lambda p: sum(p))
        pk = sorted([p for p in pairs if sum(p) in keep], key=lambda p: sum(p))
        seq = ps + pk
        lastidx = {nb: max(i for i, p in enumerate(seq) if sum(p) == nb) for nb in range(8)}
        wr = {lastidx[nb] + 3: t for t, nb in enumerate(send)}
        for i, (aa, bb) in enumerate(seq):
            a(mf(1, aa, bb))
            for _ in range(2):
                if rest: a(rest.pop(0))
            if i in wr:
                t = wr[i]
                a(f'ds_write_b128 v62, {Q(ACC+4*send[t])} offset:{1024*t}')
            if i == 21: a('ds_write_b32 v3, v7')
            if i == 25: a('ds_read_b32 v1, v4')
            if i == 30:
                a('s_waitcnt lgkmcnt(0)')
                a('v_cmp_ne_u32 vcc, 0, v1')
                a(f's_cbranch_vccnz cv_rspin{half}')
                a(f'cv_rgo{half}:')
                for t in range(2): a(f'ds_read_b128 {Q(PR+4*t)}, v63 offset:{1024*t}')
            if i == 31:
                for t in range(2, 4): a(f'ds_read_b128 {Q(PR+4*t)}, v63 offset:{1024*t}')
            if i >= 32:
                t = i - 32
                if t < 3:
                    for r in range(4):
                        a(f'v_fmac_f32 v{XF+4*t+r}, v{RS+4*t+r}, v{ACC+4*keep[t]+r}')
        assert not rest
        stamp(a, 4, VS)
        for t in range(4):
            a(f's_waitcnt lgkmcnt({3-t})')
            for r in range(4):
                a(f'v_fmac_f32 v{XF+4*t+r}, v{RS+4*t+r}, v{PR+4*t+r}')
            if t == 3:
                for r in range(4):
                    a(f'v_fmac_f32 v{XF+4*t+r}, v{RS+4*t+r}, v{ACC+4*keep[t]+r}')
            a(f'v_cvt_pk_bf16_f32 v{88+2*t}, v{XF+4*t}, v{XF+4*t+1}')
            a(f'v_cvt_pk_bf16_f32 v{89+2*t}, v{XF+4*t+2}, v{XF+4*t+3}')
            a(f'buffer_store_dwordx2 {P(88+2*t)}, v12, s[{HT}:{HT+3}], s{50+t} offen' + (' sc1' if SC_HT else ''))
        stamp(a, 5, VS)
        stamp_end(a, 6, VS, 1, 248)
        a('s_endpgm')
    a('cv_fbspin:')
    lds_spin(a, 1, 15, 0, 94)
    a('s_branch cv_fbgo')
    for half in range(2):
        a(f'cv_rspin{half}:')
        lds_spin(a, 1, 4, 0, 94)
        a(f's_branch cv_rgo{half}')

    WS, SRC = 20, 24
    SCF = ' sc1' if SC_FMT else ''
    a('cv_help:')
    a.flush_hist()
    a('s_load_dwordx4 s[8:11], s[0:1], 56')
    a('s_load_dwordx2 s[12:13], s[0:1], 72')
    a('s_and_b32 s61, s60, 3')
    a('v_mov_b32 v20, 0')
    a('v_mov_b32 v21, 0')
    a('v_mov_b32 v22, -1')
    a('s_mul_i32 s62, s61, 9280')
    a('v_add_u32 v23, s62, v5')
    a('ds_write_b64 v23, v[20:21] offset:4096')
    a('ds_write_b64 v23, v[20:21] offset:%d' % (4096 + 4640))
    a('s_lshl_b32 s62, s61, 8')
    a('s_add_u32 s62, s62, %d' % CV_FLG)
    a('v_lshl_add_u32 v23, v2, 2, s62')
    a('ds_write_b32 v23, v22')
    a('ds_write_b32 v23, v22 offset:256')
    a('s_lshl_b32 s62, s61, 12')
    a('s_add_u32 s63, s62, %d' % WS_ST)
    a('s_lshr_b32 s64, s61, 1')
    a('s_lshl_b32 s65, s16, 1')
    a('s_add_u32 s64, s64, s65')
    a('s_mul_i32 s64, s64, %d' % CS)
    a('s_and_b32 s65, s61, 1')
    a('s_lshl_b32 s65, s65, 11')
    a('s_add_u32 s64, s64, s65')
    a('s_add_u32 s64, s64, %d' % WS_XT)
    a('s_add_u32 m0, s62, %d' % CV_AUX)
    a('s_mul_hi_u32 s78, s2, %d' % (2**32 // 28 + 1))
    a('s_mul_i32 s79, s78, 28')
    a('s_sub_u32 s79, s2, s79')
    a('v_and_b32 v3, 15, v2')
    a('v_lshrrev_b32 v4, 4, v2')
    a('v_lshrrev_b32 v24, 2, v3')
    a('v_and_b32 v25, 3, v3')
    a('v_lshrrev_b32 v26, 1, v4')
    a('v_and_b32 v27, 1, v4')
    a('s_lshl_b32 s66, s61, 13')
    a('s_add_u32 s66, s66, %d' % CV_FM)
    a('s_waitcnt lgkmcnt(0)')
    srd(a, WS, 14, WS_END)
    a('s_barrier')
    stamp(a, 1, VS)
    for i in range(4):
        a(f'buffer_load_dwordx4 v6, s[{WS}:{WS+3}], s63 offen offset:{1024*i} lds')
    a('s_lshl_b32 s62, s61, 11')
    a('s_add_u32 m0, s62, %d' % (CV_AUX + 16384))
    a('s_lshl_b32 s62, s61, 2')
    for i in range(2):
        a(f'buffer_load_dwordx4 v6, s[{WS}:{WS+3}], s64 offen offset:{1024*i} lds')
    a('s_add_u32 m0, s62, %d' % (CV_FLG + 16))
    a('s_mov_b64 exec, 1')
    a(f'buffer_load_dword v6, s[{WS}:{WS+3}], s93 offen lds')
    a('s_mov_b64 exec, -1')
    a('s_mov_b32 m0, s66')
    a('s_cmp_ge_u32 s2, %d' % NFMT)
    a('s_cbranch_scc1 cv_hend')
    a('s_cmp_eq_u32 s61, 3')
    a('s_cbranch_scc1 cv_hend')
    a('s_cmp_eq_u32 s61, 2')
    a('s_cbranch_scc1 cv_wd')
    a('s_cmp_eq_u32 s61, 0')
    a(f's_cselect_b32 s{SRC}, s8, s10')
    a(f's_cselect_b32 s{SRC+1}, s9, s11')
    a(f's_mov_b32 s{SRC+2}, {hex(512*3584)}')
    a(f's_mov_b32 s{SRC+3}, 0x20000')
    a('v_and_b32 v7, 7, v2')
    a('v_lshrrev_b32 v13, 3, v2')
    a('v_mul_u32_u24 v13, 3584, v13')
    a('v_lshl_add_u32 v13, v7, 4, v13')
    a('s_mul_i32 s80, s78, %d' % (64 * 3584))
    a('s_lshl_b32 s81, s79, 7')
    a('s_add_u32 s80, s80, s81')
    for i in range(8):
        a(f'buffer_load_dwordx4 v13, s[{SRC}:{SRC+3}], s80 offen lds')
        if i < 7:
            a('s_add_u32 m0, m0, 1024')
            a('s_add_u32 s80, s80, %d' % (8 * 3584))
    a('v_lshl_add_u32 v28, v26, 3, v24')
    a('v_lshlrev_b32 v28, 7, v28')
    a('v_lshl_add_u32 v28, v27, 5, v28')
    a('v_lshl_add_u32 v28, v25, 3, v28')
    a('v_add_u32 v28, s66, v28')
    for j in range(4):
        a('s_lshl_b32 s82, s79, 2')
        a(f's_add_u32 s82, s82, {j}')
        a('s_mul_hi_u32 s83, s82, %d' % (2**32 // 7 + 1))
        a('s_mul_i32 s84, s83, 7')
        a('s_sub_u32 s84, s82, s84')
        a('s_mul_i32 s83, s83, %d' % W1F_NT)
        a('s_lshl_b32 s84, s84, 10')
        a(f's_add_u32 s{40+j}, s83, s84')
    a('s_lshl_b32 s82, s61, 4')
    a('v_lshl_add_u32 v29, v26, 5, v3')
    a('v_add_u32 v29, s82, v29')
    a('v_lshlrev_b32 v29, 4, v29')
    a('v_cmp_eq_u32 vcc, 1, v27')
    for u in range(2):
        a(f'v_mov_b32 v{30+u}, s{40+2*u}')
        a(f'v_mov_b32 v8, s{41+2*u}')
        a(f'v_cndmask_b32 v{30+u}, v{30+u}, v8, vcc')
        a(f'v_add_u32 v{30+u}, v{30+u}, v29')
    a('s_mul_i32 s44, s78, %d' % (4 * 7168))
    a('s_add_u32 s44, s44, %d' % WS_W1F)
    a('s_lshr_b32 s46, s78, 2')
    a('s_lshl_b32 s46, s46, 9')
    a('s_and_b32 s47, s78, 3')
    a('s_lshl_b32 s47, s47, 2')
    a('s_add_u32 s46, s46, s47')
    a('s_add_u32 s46, s46, %d' % (WS_W1F + 32 * 7168))
    for r in range(4): a(f'v_mov_b32 v{16+r}, 0')
    a('s_mov_b32 s45, 0x3f803f80')
    stamp(a, 2, VS)
    a('s_waitcnt vmcnt(0)')
    stamp(a, 3, VS)
    FF = 32
    q = DsQ(a)
    for ks in range(4):
        for u in range(2):
            r = FF + 8 * ks + 4 * u
            q.op(f'ds_read_b64_tr_b16 {P(r)}, v28 offset:{2048*ks+64*u}', (ks, u))
            q.op(f'ds_read_b64_tr_b16 {P(r+2)}, v28 offset:{2048*ks+64*u+512}', (ks, u))
    for ks in range(4):
        for u in range(2):
            r = FF + 8 * ks + 4 * u
            q.wait((ks, u))
            a(f'buffer_store_dwordx4 {Q(r)}, v{30+u}, s[{WS}:{WS+3}], s44 offen{SCF}')
            for w in range(4):
                a(f'v_dot2c_f32_bf16 v{16+2*u+(w&1)}, s45, v{r+w}')
        a('s_add_u32 s44, s44, 7168')
    a('s_nop 2')
    for u in range(2):
        c = 16 + 2 * u
        a(f'v_add_f32 v{c}, v{c}, v{c+1}')
        a(f'v_mov_b32 v{c+1}, v{c}')
        a(f'v_permlane32_swap_b32 v{c}, v{c+1}')
        a(f'v_add_f32 v{c}, v{c}, v{c+1}')
        rne(a, c + 1, c)
        a(f'v_sub_f32 v{c}, v{c}, v{c+1}')
        a(f'v_cvt_pk_bf16_f32 v{c}, v{c+1}, v{c}')
    a('s_mov_b32 exec_hi, 0')
    for u in range(2):
        a(f'buffer_store_dword v{16+2*u}, v{30+u}, s[{WS}:{WS+3}], s46 offen')
    a('s_branch cv_hend')
    a('cv_wd:')
    a.flush_hist()
    srd(a, SRC, 12, 1792 * 1024)
    a('v_lshrrev_b32 v14, 5, v2')
    a('v_lshlrev_b32 v14, 10, v14')
    a('v_and_b32 v15, 31, v2')
    a('v_lshl_add_u32 v14, v15, 4, v14')
    a('s_lshr_b32 s84, s2, 1')
    a('s_and_b32 s85, s2, 1')
    a('s_lshl_b32 s86, s84, 14')
    a('s_lshl_b32 s87, s85, 9')
    a('s_add_u32 s86, s86, s87')
    for i in range(8):
        a(f'buffer_load_dwordx4 v14, s[{SRC}:{SRC+3}], s86 offen lds')
        if i < 7:
            a('s_add_u32 m0, m0, 1024')
            a('s_add_u32 s86, s86, 2048')
    a('v_lshl_add_u32 v28, v26, 2, v24')
    a('v_lshlrev_b32 v28, 9, v28')
    a('v_lshl_add_u32 v28, v27, 5, v28')
    a('v_lshl_add_u32 v28, v25, 3, v28')
    a('v_add_u32 v28, s66, v28')
    a('s_mul_i32 s44, s85, 448')
    a('s_add_u32 s44, s44, s84')
    a('s_lshl_b32 s44, s44, 11')
    a('s_add_u32 s44, s44, %d' % WS_WDF)
    stamp(a, 2, VS)
    a('s_waitcnt vmcnt(0)')
    stamp(a, 3, VS)
    q = DsQ(a)
    for x in range(8):
        q.op(f'ds_read_b64_tr_b16 {P(FF+4*x)}, v28 offset:{64*x}', x)
        q.op(f'ds_read_b64_tr_b16 {P(FF+4*x+2)}, v28 offset:{64*x+4096}', x)
    for x in range(8):
        q.wait(x)
        a(f'buffer_store_dwordx4 {Q(FF+4*x)}, v6, s[{WS}:{WS+3}], s44 offen offset:{1024*(x&1)}{SCF}')
        if x & 1: a('s_add_u32 s44, s44, %d' % (112 * 2048))
    a('cv_hend:')
    stamp(a, 4, VS)
    stamp_end(a, 5, VS, 1, 248)
    a('conv_end:')
    a('s_endpgm')
    return name, 252, 102, None

G1_SLOT = 22528
G1_NS = 7
G1_RING = G1_SLOT * G1_NS
FF_FLG = G1_RING
FF_LDS = FF_FLG + 512
FF_WD = 3 * G1_SLOT
FF_WD2 = 5 * G1_SLOT
FF_H = FF_WD + 40960
FF_RED = 0
BARS = {0: 3, 2: 5, 4: 7, 6: 9, 8: 11, 10: 13, 12: 15, 14: 18}
RK = 18
LK = 10
SC = ' sc1'
NOSTAT = 0
BAR14 = 1
BARGAP = 3
XALIGN = 0
XPAD = 0
PACE = 0
XPRIO = 0
NOBAR = 0
NODMA = 0

def epi_tile(g, T, C1, IR2):
    u = g + 8
    L = []
    for e in range(0, 8, 2): L.append(f'v_pk_mul_f32 {P(T+e)}, {P(g+e)}, {P(C1)}')
    for e in range(8): L.append(f'v_exp_f32 v{T+e}, v{T+e}')
    for e in range(0, 8, 2): L.append(f'v_pk_mul_f32 {P(g+e)}, {P(g+e)}, {P(u+e)}')
    for e in range(0, 8, 2): L.append(f'v_pk_fma_f32 {P(T+e)}, {P(T+e)}, {P(IR2)}, {P(IR2)}')
    for e in range(8): L.append(f'v_rcp_f32 v{T+e}, v{T+e}')
    for e in range(0, 8, 2): L.append(f'v_pk_mul_f32 {P(g+e)}, {P(g+e)}, {P(T+e)}')
    for w in range(4): L.append(f'v_cvt_pk_bf16_f32 v{T+8+w}, v{g+2*w}, v{g+2*w+1}')
    return L

def gen_ffn(a):
    name = 'ffn_kernel'
    begin(a, name)
    W1F, HT, WS, OUT = 8, 12, 16, 40
    a('s_cmp_ge_u32 s2, 256')
    a('s_cbranch_scc1 ff_end')
    a('s_load_dwordx2 s[4:5], s[0:1], 96')
    a('s_load_dwordx2 s[6:7], s[0:1], 80')
    a('v_lshrrev_b32 v1, 6, v0')
    a('v_and_b32 v2, 63, v0')
    a('v_readfirstlane_b32 s46, v1')
    a('s_and_b32 s21, s2, 1')
    a('s_lshl_b32 s21, s21, 3')
    a('s_bfe_u32 s27, s2, 0x30003')
    a('s_add_u32 s21, s21, s27')
    a('s_bfe_u32 s22, s2, 0x20001')
    a('s_lshl_b32 s22, s22, 2')
    a('s_lshr_b32 s23, s2, 6')
    a('s_add_u32 s22, s22, s23')
    a('s_and_b32 s20, s46, 3')
    a('v_lshlrev_b32 v3, 4, v2')
    a('s_cmp_ge_u32 s46, 4')
    a('s_cbranch_scc1 ff_ld')
    VS = 250
    stamp_begin(a, VS)
    a('v_lshlrev_b32 v9, 1, v0')
    a('v_add_u32 v9, %d, v9' % FF_FLG)
    a('v_mov_b32 v8, -1')
    a('ds_write_b16 v9, v8')
    a('v_lshrrev_b32 v5, 4, v2')
    a('v_and_b32 v6, 15, v2')
    a('v_lshrrev_b32 v12, 2, v6')
    a('v_and_b32 v13, 3, v6')
    a('s_waitcnt lgkmcnt(0)')
    a('s_barrier')
    a('v_lshrrev_b32 v14, 1, v5')
    a('v_and_b32 v15, 1, v5')
    a('v_lshl_add_u32 v11, v14, 3, v12')
    a('v_lshlrev_b32 v11, 8, v11')
    a('v_xor_b32 v12, s20, v12')
    a('v_lshl_add_u32 v11, v12, 6, v11')
    a('v_lshl_add_u32 v11, v15, 5, v11')
    a('v_lshl_add_u32 v11, v13, 3, v11')
    a('v_add_u32 v11, 14336, v11')
    a('v_mov_b32 v10, v3')
    a('v_lshlrev_b32 v8, 2, v13')
    a('v_add_u32 v8, %d, v8' % FF_FLG)
    a('s_lshl_b32 s37, s21, 2')
    a('s_add_u32 s37, s37, s20')
    a('s_mul_i32 s37, s37, 112')
    a('s_mul_i32 s38, s22, 7')
    a('s_add_u32 s37, s37, s38')
    a('s_lshl_b32 s37, s37, 10')
    a('s_add_u32 s37, s37, %d' % WS_ACT)
    a('s_lshl_b32 s38, s21, 1')
    a('s_lshr_b32 s39, s20, 1')
    a('s_add_u32 s38, s38, s39')
    a('s_lshl_b32 s38, s38, 7')
    a('s_lshl_b32 s39, s22, 3')
    a('s_add_u32 s38, s38, s39')
    a('s_and_b32 s39, s20, 1')
    a('s_lshl_b32 s39, s39, 2')
    a('s_add_u32 s38, s38, s39')
    a('s_add_u32 s38, s38, %d' % WS_GF)
    WF = [32, 60]; HF = [88, 92, 216, 220]; ACC = 96
    S1, S2, PV = 16, 18, 24
    for r in range(112):
        a(f'v_mov_b32 v{ACC+r}, 0')
    for r in range(4):
        a(f'v_mov_b32 v{S1+r}, 0')
    a('s_mov_b32 s34, 0xffff0000')
    a('s_mov_b32 s35, %d' % G1_SLOT)
    a('s_mov_b32 s33, 0')
    a('s_mov_b32 s32, %d' % sum(1 << k for k in BARS))
    a('s_mov_b32 s30, %d' % (-(G1_RING - G1_SLOT) & 0xffffffff))
    a('s_mov_b32 s31, %d' % G1_SLOT)
    srd(a, WS, 4, WS_END)
    def rdW(s, f): return f'ds_read_b128 {Q(WF[s]+4*f)}, v10 offset:{7168*s+1024*f}'
    def rdH(h, s): return [f'ds_read_b64_tr_b16 {P(h)}, v11 offset:{4096*s}', f'ds_read_b64_tr_b16 {P(h+2)}, v11 offset:{4096*s+1024}']
    def stats(h):
        U = []; A = []
        for w in range(4):
            t = 208 + 2 * w
            U.append([f'v_lshlrev_b32 v{t}, 16, v{h+w}', f'v_and_b32 v{t+1}, s34, v{h+w}'])
            A.append([f'v_add_f32 v{S1}, v{S1}, v{t}', f'v_fmac_f32 v{S2}, v{t}, v{t}', f'v_add_f32 v{S1+1}, v{S1+1}, v{t+1}', f'v_fmac_f32 v{S2+1}, v{t+1}, v{t+1}'])
        return U[0] + U[1] + A[0] + U[2] + A[1] + U[3] + A[2] + A[3]
    def mfma(s, f, h=None):
        h = HF[s] if h is None else h
        return f'v_mfma_f32_32x32x16_bf16 v[{ACC+16*f}:{ACC+16*f+15}], {Q(WF[s]+4*f)}, {Q(h)}, v[{ACC+16*f}:{ACC+16*f+15}]'
    stamp(a, 1, VS)
    if XPRIO: a(f's_setprio {XPRIO}')
    a('s_mov_b32 s44, 0')
    a('ff_x0:')
    a(f'ds_read_b32 v{PV}, v8')
    a('s_add_u32 s44, s44, 1')
    a('s_cmp_gt_u32 s44, 0x100000')
    a('s_cbranch_scc1 ff_x1')
    a('s_waitcnt lgkmcnt(0)')
    a(f'v_cmp_ne_u32 vcc, 0, v{PV}')
    a('s_cbranch_vccnz ff_x0')
    a('ff_x1:')
    stamp(a, 2, VS)
    for x in rdH(HF[0], 0): a(x)
    for f in range(7): a(rdW(0, f))
    a(f'ds_read_b32 v{PV}, v8 offset:16')
    for x in rdH(HF[1], 1): a(x)
    for f in range(7): a(rdW(1, f))
    a('v_add_u32 v10, %d, v10' % G1_SLOT)
    a('v_add_u32 v11, %d, v11' % G1_SLOT)
    a('ff_loop:')
    for ks in range(4):
        s = ks & 1; h = HF[ks]; hn = HF[(ks + 2) % 4]; st2 = ks // 2
        S = stats(h) if not NOSTAT else []
        ex = [[] for _ in range(7)]
        rh = rdH(hn, s)
        if s == 0:
            ex[0] = [f'v_cmp_ne_u32 vcc, 0, v{PV}', f's_cbranch_vccnz ff_xspin{st2}\nff_xgo{st2}:']
            ex[1] = [rh[0]]; ex[2] = [rh[1]]
            ex[3] = ['s_add_u32 s35, s35, %d' % G1_SLOT]; ex[4] = ['s_cmp_eq_u32 s35, %d' % G1_RING]; ex[5] = ['s_cselect_b32 s36, s30, s31']
            if ks == 0: ex[BARGAP] = ['s_barrier'] + ex[BARGAP]
        else:
            ex[0] = [f'ds_read_b32 v{PV}, v8 offset:{32+16*st2}']
            ex[1] = [rh[0]]; ex[2] = [rh[1], 's_cselect_b32 s35, 0, s35']
            ex[3] = ['v_add_u32 v11, s36, v11']
            if ks == 3:
                ex[4] = ['s_add_u32 s33, s33, 2', 'v_add_u32 v8, 32, v8']; ex[5] = ['s_cmp_lt_u32 s33, 16']
            ex[6] = ['v_add_u32 v10, s36, v10']
        tot = [1 + len(e) for e in ex]; tot[6] += 1 + (3 if ks == 3 else 0)
        if ks == 0: tot[BARGAP] += 2
        cnts = [0] * 7
        for _ in range(len(S)):
            i = min(range(7), key=lambda j: (tot[j] + cnts[j], j)); cnts[i] += 1
        k = 0
        a('s_waitcnt lgkmcnt(9)')
        for f in range(7):
            a(mfma(s, f, h))
            for x in (ex[f] + [rdW(s, f)] if f == 0 else [rdW(s, f)] + ex[f]): a(x)
            for x in S[k:k+cnts[f]]: a(x)
            k += cnts[f]
    a('s_cbranch_scc1 ff_loop')
    stamp(a, 3, VS)
    if STAMP: a(f'v_writelane_b32 v{VS}, s44, 13')
    a(f'v_add_f32 v{S1}, v{S1}, v{S1+1}')
    a(f'v_add_f32 v{S2}, v{S2}, v{S2+1}')
    a(f'v_mov_b32 v{S1+1}, v{S1}')
    a(f'v_mov_b32 v{S2+1}, v{S2}')
    a(f'v_permlane32_swap_b32 v{S1}, v{S1+1}')
    a(f'v_permlane32_swap_b32 v{S2}, v{S2+1}')
    a(f'v_add_f32 v{S1}, v{S1}, v{S1+1}')
    a(f'v_add_f32 v{S2}, v{S2}, v{S2+1}')
    a(f'v_mul_f32 v{S1}, 0xbb000000, v{S1}')
    a(f'v_mul_f32 v{S2}, 0x3b000000, v{S2}')
    a('s_waitcnt lgkmcnt(0)')
    for w in range(4):
        a(f'v_cvt_pk_bf16_f32 v{HF[0]+w}, v{S1}, v{S1}')
    a(f'v_fma_f32 v{S2}, -v{S1}, v{S1}, v{S2}')
    a(f'v_max_f32 v{S2}, 0, v{S2}')
    C1, IR2 = 24, 26
    b = Asm()
    ln_sigma(b, S2, C1)
    b(f'v_mul_f32 v{IR2}, v{S2}, v{S2}')
    b(f'v_mul_f32 v{C1}, 0xbfb8aa3b, v{C1}')
    b(f'v_mov_b32 v{IR2+1}, v{IR2}')
    b(f'v_mov_b32 v{C1+1}, v{C1}')
    fin = [l.strip() for l in b.lines if not l.strip().startswith('s_nop')]
    ep = [epi_tile(ACC + 16 * f, 64 + 16 * (f & 1), C1, IR2) for f in range(7)]
    a(mfma(0, 0))
    for x in fin[:5]: a(x)
    a(mfma(0, 1))
    for x in fin[5:10]: a(x)
    a(mfma(0, 2))
    for x in fin[10:]: a(x)
    e0 = ep[0]
    for f in range(3, 7):
        a(mfma(0, f))
        for x in e0[4*(f-3):4*(f-3)+4]: a(x)
    ep[0] = e0[16:]
    for f in range(7):
        T = 64 + 16 * (f & 1)
        for x in ep[f]: a(x)
        a(f'buffer_store_dwordx4 {Q(T+8)}, v3, s[{WS}:{WS+3}], s37 offen offset:{1024*(f&3)}{SC}')
        if f == 3: a('s_add_u32 s37, s37, 4096')
    stamp(a, 4, VS)
    a('v_mov_b32 v4, 1')
    a('v_mov_b32 v5, 0')
    a('s_waitcnt vmcnt(0)')
    a('s_mov_b64 exec, 1')
    a(f'buffer_store_dword v4, v5, s[{WS}:{WS+3}], s38 offen sc1')
    stamp(a, 5, VS)
    stamp_end(a, 6, VS, 2, 248)
    a('s_endpgm')
    for st2 in range(2):
        a(f'ff_xspin{st2}:')
        a(f'ds_read_b32 v{PV}, v8 offset:{16+16*st2}')
        a('s_add_u32 s44, s44, 1')
        a('s_cmp_gt_u32 s44, 0x100000')
        a('s_waitcnt lgkmcnt(0)')
        a(f's_cbranch_scc1 ff_xgo{st2}')
        a(f'v_cmp_ne_u32 vcc, 0, v{PV}')
        a(f's_cbranch_vccnz ff_xspin{st2}')
        a(f's_branch ff_xgo{st2}')
    a('ff_ld:')
    a.flush_hist()
    VS = 1
    stamp_begin(a, VS)
    a('s_mul_i32 s28, s22, %d' % W1F_NT)
    a('s_mul_i32 s24, s20, 3584')
    a('v_add_u32 v4, s24, v3')
    a('s_lshl_b32 s25, s21, 17')
    a('s_lshl_b32 s26, s20, 11')
    a('v_add_u32 v7, s26, v3')
    a('s_add_u32 s26, s26, 14336')
    a('s_mov_b32 s30, 0')
    a('s_mov_b32 s31, 0')
    a('s_lshl_b32 s29, s20, 2')
    a('s_add_u32 s29, s29, %d' % FF_FLG)
    a('s_mov_b32 s47, 0x7f000000')
    a('s_mov_b32 m0, s26')
    a('s_waitcnt lgkmcnt(0)')
    srd(a, HT, 4, 131072, WS_HT, offreg=25)
    srd(a, W1F, 4, 33 * 7168, WS_W1F, offreg=28)
    a_real = a
    class Filt:
        def __call__(self, t):
            if NODMA and t.startswith('buffer_load_dwordx4') and t.endswith('lds'):
                if NODMA == 2: a_real(t.replace('buffer_load_dwordx4 ', 'buffer_load_dwordx4 v[112:115], ').replace(' lds', ''))
                return
            a_real(t)
    def pace():
        if PACE: a(f's_waitcnt vmcnt({PACE})')
    def dma(j, a=Filt()):
        slot = (j % G1_NS) * G1_SLOT
        if j < 16:
            if j: a('s_add_u32 m0, s26, %d' % slot)
            pace()
            a(f'buffer_load_dwordx4 v7, s[{HT}:{HT+3}], s31 offen lds')
            pace()
            a(f'buffer_load_dwordx4 v7, s[{HT}:{HT+3}], s31 offen offset:1024 lds')
        a('s_add_u32 m0, s24, %d' % slot)
        a('s_add_u32 s31, s31, 8192')
        pace()
        a(f'buffer_load_dwordx4 v4, s[{W1F}:{W1F+3}], s30 offen lds')
        pace()
        a(f'buffer_load_dwordx4 v4, s[{W1F}:{W1F+3}], s30 offen offset:1024 lds')
        pace()
        a(f'buffer_load_dwordx4 v4, s[{W1F}:{W1F+3}], s30 offen offset:2048 lds')
        a('s_mov_b32 exec_hi, 0')
        pace()
        a(f'buffer_load_dwordx4 v4, s[{W1F}:{W1F+3}], s30 offen offset:3072 lds')
        if j == 0: a('s_barrier')
        a('s_add_u32 m0, s29, %d' % (16 * j))
        a('s_mov_b32 exec_lo, 1')
        a('s_add_u32 s30, s30, 14336')
        a(f'buffer_load_dword v4, s[{W1F}:{W1F+3}], s47 offen lds')
        a('s_mov_b64 exec, -1')
        if j >= 6 and not PACE: a('s_waitcnt vmcnt(49)')
    stamp(a, 1, VS)
    pos2s = {p: st for st, p in BARS.items()}
    allowed = G1_NS - 1
    for j in range(17):
        assert j <= allowed, (j, allowed)
        dma(j)
        if j == 1:
            a('s_and_b32 s48, s2, 7')
            a('s_lshl_b32 s48, s48, 2')
            a('s_bfe_u32 s49, s2, 0x20003')
            a('s_add_u32 s48, s48, s49')
            a('s_lshr_b32 s49, s2, 5')
            a('s_mul_i32 s50, s48, 224')
            a('s_mul_i32 s52, s20, 28')
            a('s_add_u32 s50, s50, s52')
            a('s_lshl_b32 s50, s50, 10')
            a('s_add_u32 s50, s50, %d' % WS_ACT)
            a('s_mul_i32 s51, s49, 112')
            a('s_add_u32 s51, s51, s52')
            a('s_lshl_b32 s51, s51, 11')
            a('s_add_u32 s51, s51, %d' % WS_WDF)
            if ROT2:
                a('s_mul_i32 s53, s49, 7')
                a('s_lshr_b32 s53, s53, 1')
                a('s_lshl_b32 s53, s53, 10')
            else:
                a('s_mov_b32 s53, 0')
            a('s_lshl_b32 s54, s53, 1')
            a('s_lshr_b32 s56, s20, 1')
            a('s_and_b32 s57, s20, 1')
            a('s_lshl_b32 s58, s56, 10')
            a('v_add_u32 v8, s58, v3')
            a('v_xor_b32 v9, 0x400, v8')
            a('s_mul_i32 s58, s57, 0x1c000')
            a('v_add_u32 v10, s58, v3')
            a('v_xor_b32 v11, 0x1c000, v10')
            srd(a, WS, 4, WS_END)
            srd(a, OUT, 6, 2 * MiB)
        if j in pos2s:
            a('s_barrier')
            allowed = max(allowed, pos2s[j] - 1 + G1_NS)
    stamp(a, 2, VS)
    wd_next = 's_add_u32 s54, s54, 2048\ns_cmp_eq_u32 s54, 57344\ns_cselect_b32 s54, 0, s54\ns_add_u32 s55, s51, s54'
    order = []
    ACC = 16
    WDR = 112
    a('s_add_u32 s55, s51, s54')
    wreg = {}
    for k in range(RK):
        wreg[k] = WDR + 8 * k
        a(f'buffer_load_dwordx4 {Q(wreg[k])}, v8, s[{WS}:{WS+3}], s55 offen')
        a(f'buffer_load_dwordx4 {Q(wreg[k]+4)}, v9, s[{WS}:{WS+3}], s55 offen')
        a(wd_next)
        if k % 4 == 3 or PACE: a('s_waitcnt vmcnt(%d)' % (PACE - 1 if PACE else 50))
        if k == BAR14: a('s_barrier')
    a('s_mul_i32 s58, s20, 10240')
    a('s_add_u32 s58, s58, %d' % FF_WD)
    a('s_mov_b32 m0, s58')
    for k in range(LK):
        a(f'buffer_load_dwordx4 v8, s[{WS}:{WS+3}], s55 offen lds')
        a('s_add_u32 m0, m0, 1024')
        a(f'buffer_load_dwordx4 v9, s[{WS}:{WS+3}], s55 offen lds')
        a('s_add_u32 m0, m0, %d' % (1024 if k != 4 else FF_WD2 - FF_WD - 9216))
        a(wd_next)
        if k % 4 == 3 or PACE: a('s_waitcnt vmcnt(%d)' % (PACE - 1 if PACE else 50))
    a('v_add_u32 v12, s58, v3')
    a('v_lshrrev_b32 v5, 3, v2')
    a('v_and_b32 v6, 7, v2')
    a('s_and_b32 s59, s48, 1')
    a('s_lshl_b32 s59, s59, 3')
    a('v_or_b32 v6, s59, v6')
    a('v_and_b32 v7, 3, v5')
    a('v_lshlrev_b32 v7, 2, v7')
    a('v_xor_b32 v6, v6, v7')
    a('v_lshlrev_b32 v5, 8, v5')
    a('v_lshl_add_u32 v5, v6, 4, v5')
    a('s_lshl_b32 s59, s49, 14')
    a('s_lshl_b32 s60, s20, 12')
    a('s_add_u32 s59, s59, s60')
    a('s_lshr_b32 s60, s48, 1')
    a('s_lshl_b32 s60, s60, 17')
    a('s_add_u32 s59, s59, s60')
    a('s_add_u32 s59, s59, %d' % WS_HT)
    a('s_add_u32 s60, s59, 0x800')
    a('s_lshl_b32 s61, s57, 11')
    a('s_mul_i32 s64, s56, %d' % (FF_WD2 - FF_WD))
    a('s_add_u32 s61, s61, s64')
    a('s_add_u32 m0, s61, %d' % FF_H)
    a(f'buffer_load_dwordx4 v5, s[{WS}:{WS+3}], s59 offen lds')
    a('s_add_u32 m0, m0, 1024')
    a(f'buffer_load_dwordx4 v5, s[{WS}:{WS+3}], s60 offen lds')
    a('v_and_b32 v4, 15, v2')
    a('v_lshrrev_b32 v5, 4, v2')
    a('v_lshrrev_b32 v6, 2, v4')
    a('v_and_b32 v7, 3, v4')
    a('v_lshrrev_b32 v13, 1, v5')
    a('v_and_b32 v5, 1, v5')
    a('v_lshl_add_u32 v14, v13, 2, v6')
    a('v_lshlrev_b32 v14, 7, v14')
    a('v_lshl_add_u32 v14, v5, 5, v14')
    a('v_lshl_add_u32 v14, v7, 3, v14')
    a('s_lshl_b32 s60, s57, 6')
    a('s_add_u32 s59, s64, s60')
    a('s_add_u32 s59, s59, %d' % FF_H)
    a('v_add_u32 v14, s59, v14')
    a('v_and_b32 v15, 31, v2')
    a('v_lshlrev_b32 v15, 10, v15')
    a('v_lshl_add_u32 v15, v13, 4, v15')
    a('s_lshl_b32 s62, s48, 16')
    a('s_lshl_b32 s60, s57, 15')
    a('s_add_u32 s62, s62, s60')
    a('s_lshl_b32 s60, s49, 7')
    a('s_add_u32 s62, s62, s60')
    a('s_lshl_b32 s60, s56, 6')
    a('s_add_u32 s62, s62, s60')
    a('s_mov_b32 s63, 0xffff0000')
    a('s_lshl_b32 s59, s48, 7')
    a('s_lshl_b32 s60, s20, 5')
    a('s_add_u32 s59, s59, s60')
    a('s_add_u32 s59, s59, %d' % WS_GF)
    a('v_and_b32 v4, 7, v2')
    a('v_lshlrev_b32 v4, 2, v4')
    a('s_mov_b32 s60, 0')
    stamp(a, 3, VS)
    a('ff_poll:')
    a(f'buffer_load_dword v5, v4, s[{WS}:{WS+3}], s59 offen sc1')
    a('s_add_u32 s60, s60, 1')
    a('s_waitcnt vmcnt(0)')
    a('v_cmp_eq_u32 vcc, 0, v5')
    a('s_cbranch_vccz ff_ready')
    a('s_cmp_lt_u32 s60, 0x40000')
    a('s_sleep 2')
    a('s_cbranch_scc1 ff_poll')
    a('ff_ready:')
    stamp(a, 4, VS)
    for p in (1, 2, 3):
        a(f's_xor_b32 s33, s20, {p}')
        a('s_mul_i32 s33, s33, 12288')
        a(f'v_add_u32 v{3+p}, s33, v3')
    a('s_mul_i32 s33, s20, 12288')
    a('v_add_u32 v7, s33, v3')
    a('s_add_u32 s41, s50, s53') if False else None
    a('s_add_u32 s61, s50, s53')
    act_next = 's_add_u32 s53, s53, 1024\ns_cmp_eq_u32 s53, 28672\ns_cselect_b32 s53, 0, s53\ns_add_u32 s61, s50, s53'
    free = [80, 88, 96, 104]
    areg = {}
    order = []
    q = DsQ(a)
    nact = 0; nwl = RK
    DA = 6
    def issue(k_now):
        nonlocal nact, nwl
        while True:
            if nwl < 28 and nwl <= k_now + (3 if nwl < RK + LK else DA) and free and nwl <= nact:
                r = free.pop(0); wreg[nwl] = r
                if nwl < RK + LK:
                    lo = 2048 * ((nwl - RK) % 5) + (FF_WD2 - FF_WD) * ((nwl - RK) // 5)
                    q.op(f'ds_read_b128 {Q(r)}, v12 offset:{lo}', nwl)
                    q.op(f'ds_read_b128 {Q(r+4)}, v12 offset:{lo+1024}', nwl)
                else:
                    a(f'buffer_load_dwordx4 {Q(r)}, v8, s[{WS}:{WS+3}], s55 offen')
                    a(f'buffer_load_dwordx4 {Q(r+4)}, v9, s[{WS}:{WS+3}], s55 offen')
                    a(wd_next)
                    order.extend([nwl] * 2)
                nwl += 1
            elif nact < 28 and nact <= k_now + DA and free:
                r = free.pop(0); areg[nact] = r
                a(f'buffer_load_dwordx4 {Q(r)}, v10, s[{WS}:{WS+3}], s61 offen{SC}')
                a(f'buffer_load_dwordx4 {Q(r+4)}, v11, s[{WS}:{WS+3}], s61 offen{SC}')
                a(act_next)
                order.extend([nact] * 2)
                nact += 1
            else:
                break
    issue(0)
    RESR = None
    for k in range(28):
        last = max(i for i, o in enumerate(order) if o == k)
        a(f's_waitcnt vmcnt({len(order) - 1 - last})')
        if RK <= k < RK + LK: q.wait(k)
        for p in (3, 2, 1, 0):
            px, py = p >> 1, p & 1
            c = f'v[{ACC+16*p}:{ACC+16*p+15}]'
            a(f'v_mfma_f32_32x32x16_bf16 {c}, {Q(wreg[k]+4*px)}, {Q(areg[k]+4*py)}, {"0" if k == 0 else c}')
        free += [wreg[k], areg[k]]
        issue(k + 1)
        if k == 25:
            a('s_barrier')
            RESR = free.pop(0)
            for x in range(4):
                q.op(f'ds_read_b64_tr_b16 {P(RESR+2*x)}, v14 offset:{1024*x}', 'res')
    stamp(a, 5, VS)
    for p in (3, 2, 1):
        for j in range(4):
            q.op(f'ds_write_b128 v{3+p}, {Q(ACC+16*p+4*j)} offset:{FF_RED+(p-1)*4096+1024*j}', 'w')
    R = 224 if 224 != RESR and 232 != RESR else 192
    assert RESR not in (R, R + 8)
    q.wait('res')
    for x in range(4):
        a(f'v_lshlrev_b32 v{R+4*x}, 16, v{RESR+2*x}')
        a(f'v_and_b32 v{R+4*x+1}, s63, v{RESR+2*x}')
        a(f'v_lshlrev_b32 v{R+4*x+2}, 16, v{RESR+2*x+1}')
        a(f'v_and_b32 v{R+4*x+3}, s63, v{RESR+2*x+1}')
    for r in range(0, 16, 2):
        a(f'v_pk_add_f32 {P(R+r)}, {P(R+r)}, {P(ACC+r)}')
    a('s_waitcnt lgkmcnt(0)')
    a('s_barrier')
    stamp(a, 6, VS)
    for j in range(4):
        for p in range(3):
            a(f'ds_read_b128 {Q(32+16*p+4*j)}, v7 offset:{FF_RED+4096*p+1024*j}')
    for j in range(4):
        a(f's_waitcnt lgkmcnt({9-3*j})')
        for r in range(4*j, 4*j+4, 2):
            a(f'v_pk_add_f32 {P(R+r)}, {P(R+r)}, {P(32+r)}')
            a(f'v_pk_add_f32 {P(48+r)}, {P(48+r)}, {P(64+r)}')
        for r in range(4*j, 4*j+4, 2):
            a(f'v_pk_add_f32 {P(R+r)}, {P(R+r)}, {P(48+r)}')
        a(f'v_cvt_pk_bf16_f32 v{100+2*j}, v{R+4*j}, v{R+4*j+1}')
        a(f'v_cvt_pk_bf16_f32 v{101+2*j}, v{R+4*j+2}, v{R+4*j+3}')
        if j & 1:
            p = j >> 1
            a(f'v_permlane32_swap_b32 v{100+4*p}, v{102+4*p}')
            a(f'v_permlane32_swap_b32 v{101+4*p}, v{103+4*p}')
            a(f'buffer_store_dwordx4 {Q(100+4*p)}, v15, s[{OUT}:{OUT+3}], s62 offen offset:{32*p}')
    stamp(a, 7, VS)
    stamp_end(a, 8, VS, 2, 110)
    a('ff_end:')
    a('s_endpgm')
    return name, 256, 102, None

class DsQ:
    def __init__(self, a):
        self.a = a; self.q = []; self.done = 0
    def op(self, txt, tag=None):
        self.a(txt); self.q.append(tag)
    def wait(self, *tags):
        idx = max(len(self.q) - 1 - self.q[::-1].index(t) for t in tags) + 1
        if idx > self.done:
            n = min(len(self.q) - idx, 15)
            self.a(f's_waitcnt lgkmcnt({n})')
            self.done = len(self.q) - n

def main(out):
    a = Asm()
    ks = []
    launches = [('prep_kernel', 256, 512, 0), ('conv_kernel', 256, 512, CV_LDS), ('ffn_kernel', 256, 512, FF_LDS)]
    gens = [gen_prep, gen_conv, gen_ffn]
    if TLA >= 0:
        launches.append(('tl_kernel', 1, 64, 0)); gens.append(gen_tl)
    txt = HEADER
    for n, g, b, l in launches:
        txt += f'; @launch kernel={n} grid=({g},1,1) block=({b},1,1) lds={l}\n'
    txt += '.amdgcn_target "amdgcn-amd-amdhsa--gfx950"\n.text\n'
    for g in gens:
        ks.append(g(a))
    txt += a.text() + 'code_end:\n'
    txt += '.section .rodata,"a"\n'
    for n, v, s, acc in ks:
        txt += kernel_desc(n, v, s, acc)
    open(out, 'w').write(txt)

if __name__ == '__main__':
    for arg in sys.argv[2:]:
        if arg == 'stamp': STAMP = True
        elif '=' in arg:
            k, v = arg.split('='); globals()[k] = int(v, 0)
    main(sys.argv[1] if len(sys.argv) > 1 else 'sequential_preLN__ssm_conv_h3__swiglu_ffn__prompt.s')
```

```python
import sys
sys.path.insert(0, 'dev')
from asmlib import *

MiB = 1 << 20
CS = 4224
CHB = 512 * CS
import os
WSB = int(os.environ.get('WSB', '0')) * MiB
WS_XR0 = WSB
WS_XR1 = WSB + CHB
WS_XT = WSB + 2 * CHB
WS_ST = WSB + 3 * CHB
WS_GF = WSB + 3 * CHB + 32768
WS_HT = WSB + 3 * CHB + 65536
WS_W1F = WS_HT + 2 * MiB
W1F_NT = 232 * 1024
PF_FILT = 1
PF_CODE = 1
SC_HT = 0
SC_FMT = 1
PF_WD = 1
ROT1 = 0
ROT2 = 1
WS_WDF = WS_W1F + 16 * W1F_NT
WS_ACT = WS_WDF + 1792 * 1024
WS_END = WS_ACT + 7 * MiB
WS_DBG = 32 * MiB

HEADER = open('sequential_preLN__ssm_conv_h3__swiglu_ffn__prompt.s.ref').read().split('; Override launch')[0]

def srd(a, d, base, size, off=None, offreg=None):
    if off:
        a(f's_add_u32 s{d}, s{base}, {hex(off)}')
        a(f's_addc_u32 s{d+1}, s{base+1}, 0')
        if offreg is not None:
            a(f's_add_u32 s{d}, s{d}, s{offreg}')
            a(f's_addc_u32 s{d+1}, s{d+1}, 0')
    elif offreg is not None:
        a(f's_add_u32 s{d}, s{base}, s{offreg}')
        a(f's_addc_u32 s{d+1}, s{base+1}, 0')
    else:
        a(f's_mov_b32 s{d}, s{base}')
        a(f's_mov_b32 s{d+1}, s{base+1}')
    a(f's_mov_b32 s{d+2}, {hex(size)}')
    a(f's_mov_b32 s{d+3}, 0x20000')

STAMP = False
def stamp(a, i, vst):
    if not STAMP: return
    a('s_memtime s[98:99]')
    a('s_waitcnt lgkmcnt(0)')
    a(f'v_writelane_b32 v{vst}, s98, {i}')
def stamp_rt(a, i, vst):
    if not STAMP: return
    a('s_memrealtime s[98:99]')
    a('s_waitcnt lgkmcnt(0)')
    a(f'v_writelane_b32 v{vst}, s98, {i}')
def stamp_begin(a, vst):
    if not STAMP: return
    a(f'v_mov_b32 v{vst}, 0')
    stamp_rt(a, 15, vst)
    stamp(a, 0, vst)
def stamp_end(a, i, vst, kidx, tmp):
    if not STAMP: return
    a('s_mov_b64 exec, -1')
    a('s_waitcnt vmcnt(0)')
    stamp(a, i, vst)
    stamp_rt(a, 14, vst)
    a('s_load_dwordx2 s[96:97], s[0:1], 96')
    a('s_waitcnt lgkmcnt(0)')
    srd(a, 92, 96, 4 << 20, WS_DBG)
    a(f'v_lshrrev_b32 v{tmp}, 6, v0')
    a(f'v_lshlrev_b32 v{tmp}, 6, v{tmp}')
    a(f'v_and_b32 v{tmp+1}, 63, v0')
    a(f'v_lshl_add_u32 v{tmp}, v{tmp+1}, 2, v{tmp}')
    a('s_lshl_b32 s98, s2, 9')
    a(f's_add_u32 s98, s98, {kidx*262144}')
    a('s_mov_b32 exec_lo, 0xffff')
    a('s_mov_b32 exec_hi, 0')
    a(f'buffer_store_dword v{vst}, v{tmp}, s[92:95], s98 offen')

TLA = -1
TLB = -1
TLM = 4
_tl_idx = [0]
def tl_mark(a):
    if TLA < 0: return
    k = _tl_idx[0]; _tl_idx[0] += 1
    L = a.newlabel('tl')
    a('s_cmp_lg_u32 s2, 0')
    a(f's_cbranch_scc1 {L}')
    a('s_memrealtime s[98:99]')
    a('s_load_dwordx2 s[96:97], s[0:1], 96')
    a('s_waitcnt lgkmcnt(0)')
    srd(a, 92, 96, 4096, WS_DBG)
    a('v_mov_b32 v1, s98')
    a('v_mov_b32 v2, 0')
    a(f'buffer_store_dword v1, v2, s[92:95], 0 offen offset:{4*k}')
    a(f'{L}:')
def gen_tl(a):
    name = 'tl_kernel'
    a.raw(f'.globl {name}'); a.raw('.p2align 8'); a.raw(f'.type {name},@function'); a.raw(f'{name}:')
    a.flush_hist()
    a('s_cmp_lg_u32 s2, 0')
    a('s_cbranch_scc1 tl_end')
    a('s_memrealtime s[20:21]')
    a('s_load_dwordx2 s[4:5], s[0:1], 96')
    a('s_waitcnt lgkmcnt(0)')
    srd(a, 8, 4, 4096, WS_DBG)
    a('v_mov_b32 v2, 0')
    a('buffer_load_dwordx4 v[4:7], v2, s[8:11], 0 offen')
    a('s_waitcnt vmcnt(0)')
    a('v_mov_b32 v%d, s20' % (4 + _tl_idx[0]))
    a(f'v_sub_u32 v9, v{4+TLB}, v{4+TLA}')
    a('v_readfirstlane_b32 s22, v9')
    a('s_min_u32 s22, s22, 5000')
    a(f's_mul_i32 s22, s22, {TLM}')
    a('tl_spin:')
    a('s_memrealtime s[24:25]')
    a('s_waitcnt lgkmcnt(0)')
    a('s_sub_u32 s24, s24, s20')
    a('s_cmp_lt_u32 s24, s22')
    a('s_cbranch_scc1 tl_spin')
    a('tl_end:')
    a('s_endpgm')
    return name, 16, 32, None

def begin(a, name):
    a.raw(f'.globl {name}')
    a.raw('.p2align 8')
    a.raw(f'.type {name},@function')
    a.raw(f'{name}:')
    a.flush_hist()
    tl_mark(a)

def red32(a, v, t):
    a(f'v_add_f32_dpp v{v}, v{v}, v{v} quad_perm:[1,0,3,2] row_mask:0xf bank_mask:0xf')
    a(f'v_add_f32_dpp v{v}, v{v}, v{v} quad_perm:[2,3,0,1] row_mask:0xf bank_mask:0xf')
    a(f'v_add_f32_dpp v{v}, v{v}, v{v} row_half_mirror row_mask:0xf bank_mask:0xf')
    a(f'v_add_f32_dpp v{v}, v{v}, v{v} row_mirror row_mask:0xf bank_mask:0xf')
    a(f'v_mov_b32 v{t}, v{v}')
    a(f'v_permlane16_swap_b32 v{v}, v{t}')
    a(f'v_add_f32 v{v}, v{v}, v{t}')

def rne(a, d, s):
    a(f'v_cvt_pk_bf16_f32 v{d}, v{s}, v{s}')
    a(f'v_lshlrev_b32 v{d}, 16, v{d}')

def ln_sigma(a, var, rs):
    rne(a, var, var)
    a(f'v_add_f32 v{var}, 0x3727c5ac, v{var}')
    rne(a, var, var)
    a(f'v_sqrt_f32 v{var}, v{var}')
    rne(a, var, var)
    a(f'v_rcp_f32 v{rs}, v{var}')

def interleave(a, ms, fill, start=0):
    n = len(ms); k = 0
    for i, m in enumerate(ms):
        a(m)
        tgt = (len(fill) * (i + 1) + n - 1) // n
        while k < tgt:
            a(fill[k]); k += 1

P = lambda r: f'v[{r}:{r+1}]'
Q = lambda r: f'v[{r}:{r+3}]'

def gen_prep(a):
    name = 'prep_kernel'
    begin(a, name)
    VS = 39
    X, K, V, SH, O0, O1, ST = 16, 20, 24, 28, 32, 36, 40
    a('s_cmp_ge_u32 s2, 256')
    a('s_cbranch_scc1 prep_end')
    stamp_begin(a, VS)
    a('s_load_dwordx8 s[4:11], s[0:1], 0')
    a('s_load_dwordx2 s[12:13], s[0:1], 96')
    a('v_lshrrev_b32 v1, 8, v0')
    a('v_and_b32 v4, 31, v0')
    a('v_readfirstlane_b32 s53, v1')
    a('v_bfe_u32 v5, v0, 5, 3')
    a('s_and_b32 s14, s2, 7')
    a('s_lshr_b32 s15, s2, 3')
    a('s_lshl_b32 s44, s15, 16')
    a('s_lshl_b32 s45, s14, 7')
    a('s_add_u32 s44, s44, s45')
    a('v_lshlrev_b32 v2, 13, v5')
    a('v_lshl_add_u32 v2, v4, 2, v2')
    a('v_add_u32 v2, s44, v2')
    a('v_add_u32 v3, 0x1000, v2')
    a('s_mov_b32 s47, %d' % CS)
    a('s_mov_b32 s50, 0xffff0000')
    a('s_mul_i32 s45, s14, %d' % (64 * CS))
    a('s_lshl_b32 s46, s15, 7')
    a('v_mul_u32_u24 v8, %d, v4' % (2 * CS))
    a('s_cmp_eq_u32 s53, 0')
    a('s_cbranch_scc0 prep_x')
    a('v_subrev_u32 v1, 0x1000, v2')
    a('s_lshl_b32 s48, s14, 9')
    a('v_lshlrev_b32 v6, 4, v4')
    a('v_add_u32 v6, s48, v6')
    a('s_sub_u32 s45, s45, s46')
    a('s_add_u32 s45, s45, 4080')
    a('v_lshlrev_b32 v9, 4, v5')
    a('v_sub_u32 v8, v8, v9')
    a('v_add_u32 v8, s45, v8')
    a('s_waitcnt lgkmcnt(0)')
    stamp(a, 1, VS)
    srd(a, K, 6, 2 * MiB)
    KR, VR, SHR = 10, 22, 32
    for r in range(12):
        a(f'buffer_load_dword v{KR+r}, v{1+r//4}, s[{K}:{K+3}], 0 offen offset:{(r%4)*1024}')
    srd(a, SH, 10, 4096)
    a(f'buffer_load_dwordx4 {Q(SHR)}, v6, s[{SH}:{SH+3}], 0 offen')
    srd(a, V, 8, 2 * MiB)
    for r in range(9):
        rr = r + 3
        a(f'buffer_load_dword v{VR+r}, v{1+rr//4}, s[{V}:{V+3}], 0 offen offset:{(rr%4)*1024}')
    srd(a, O0, 12, CHB, WS_XR0)
    srd(a, O1, 12, CHB, WS_XR1)
    if PF_CODE:
        a('s_getpc_b64 s[54:55]')
        a('pf_here:')
        a('s_add_u32 s54, s54, conv_kernel-pf_here')
        a('s_addc_u32 s55, s55, 0')
        a('s_lshl_b32 s56, s15, 10')
        a('v_lshl_add_u32 v36, v5, 7, s56')
        a('v_min_u32 v36, code_end-conv_kernel-4, v36')
        a('v_mov_b32 v37, s55')
        a('v_add_co_u32 v36, vcc, s54, v36')
        a('v_addc_co_u32 v37, vcc, 0, v37, vcc')
        a('global_load_dword v38, v[36:37], off')
    KF, WP, VF, KV = 40, 64, 72, 92
    stamp(a, 2, VS)
    a('s_waitcnt vmcnt(%d)' % (10 + PF_CODE))
    stamp(a, 3, VS)
    for r in range(12):
        a(f'v_lshlrev_b32 v{KF+2*r}, 16, v{KR+r}')
        a(f'v_and_b32 v{KF+2*r+1}, s50, v{KR+r}')
    a('s_waitcnt vmcnt(%d)' % (9 + PF_CODE))
    for j in range(4):
        for c in range(2):
            src = SHR + 2 * c + j // 2
            if j % 2 == 0:
                a(f'v_lshlrev_b32 v{WP+2*j+c}, 16, v{src}')
            else:
                a(f'v_and_b32 v{WP+2*j+c}, s50, v{src}')
    for i in range(9):
        d = KV + 2 * i
        a(f'v_pk_mul_f32 {P(d)}, {P(KF+2*i)}, {P(WP+6)}')
    for j in (2, 1, 0):
        for i in range(9):
            d = KV + 2 * i
            a(f'v_pk_fma_f32 {P(d)}, {P(KF+2*(i+3-j))}, {P(WP+2*j)}, {P(d)}')
    a('s_waitcnt vmcnt(%d)' % PF_CODE)
    for r in range(9):
        a(f'v_lshlrev_b32 v{VF+2*r}, 16, v{VR+r}')
        a(f'v_and_b32 v{VF+2*r+1}, s50, v{VR+r}')
    for i in range(9):
        d = KV + 2 * i
        a(f'v_pk_mul_f32 {P(d)}, {P(d)}, {P(VF+2*i)}')
    O = 112
    kv = lambda row, c: KV + 2 * (row + 1) + c
    for c in range(2):
        for w in range(4):
            a(f'v_cvt_pk_bf16_f32 v{O+4*c+w}, v{kv(7-2*w,c)}, v{kv(6-2*w,c)}')
        a(f'buffer_store_dwordx4 {Q(O+4*c)}, v8, s[{O0}:{O0+3}], {"s47" if c else "0"} offen')
    for c in range(2):
        for w in range(4):
            a(f'v_cvt_pk_bf16_f32 v{O+8+4*c+w}, v{kv(6-2*w,c)}, v{kv(5-2*w,c)}')
        a(f'buffer_store_dwordx4 {Q(O+8+4*c)}, v8, s[{O1}:{O1+3}], {"s47" if c else "0"} offen')
    stamp(a, 4, VS)
    stamp_end(a, 5, VS, 0, 110)
    a('s_endpgm')
    a('prep_x:')
    a.flush_hist()
    a('s_lshl_b32 s48, s2, 13')
    a('v_lshlrev_b32 v7, 10, v5')
    a('v_lshl_add_u32 v7, v4, 4, v7')
    a('v_add_u32 v7, s48, v7')
    a('s_add_u32 s45, s45, s46')
    a('v_lshl_add_u32 v8, v5, 4, v8')
    a('v_add_u32 v8, s45, v8')
    a('s_lshl_b32 s46, s2, 5')
    a('v_lshlrev_b32 v9, 2, v5')
    a('v_add_u32 v9, s46, v9')
    a('s_mov_b32 s48, 0x2000')
    a('s_mov_b32 s51, 0x05040100')
    a('s_mov_b32 s52, 0x07060302')
    a('s_load_dwordx2 s[54:55], s[0:1], 32')
    a('s_load_dwordx2 s[56:57], s[0:1], 72')
    a('s_waitcnt lgkmcnt(0)')
    stamp(a, 1, VS)
    srd(a, X, 4, 2 * MiB)
    XR, XS = 10, 20
    a(f'buffer_load_dwordx4 {Q(XS)}, v7, s[{X}:{X+3}], 0 offen')
    a(f'buffer_load_dwordx4 {Q(XS+4)}, v7, s[{X}:{X+3}], 0 offen offset:512')
    for r in range(8):
        a(f'buffer_load_dword v{XR+r}, v{2 if r < 4 else 3}, s[{X}:{X+3}], 0 offen offset:{(r%4)*1024}')
    srd(a, O0, 12, CHB, WS_XT)
    srd(a, ST, 12, 65536, WS_ST)
    if PF_FILT:
        srd(a, K, 54, 2 * MiB)
        srd(a, V, 56, 1792 * 1024)
        a('s_lshl_b32 s58, s14, 5')
        a('s_add_u32 s58, s58, s15')
        a('s_lshl_b32 s58, s58, 13')
        a('s_mul_i32 s59, s2, 7168')
        a('v_and_b32 v30, 63, v0')
        a('v_lshlrev_b32 v30, 7, v30')
        a('v_readfirstlane_b32 s60, v0')
        a('s_cmp_eq_u32 s60, 256')
        a(f's_cselect_b32 s{K+2}, s{K+2}, 0')
        a('s_cmp_eq_u32 s60, 320')
        a(f's_cselect_b32 s{V+2}, s{V+2}, 0')
        a(f'buffer_load_dword v31, v30, s[{K}:{K+3}], s58 offen')
        a(f'buffer_load_dword v32, v30, s[{V}:{V+3}], s59 offen')
    stamp(a, 2, VS)
    a('s_waitcnt vmcnt(%d)' % (10 if PF_FILT else 8))
    stamp(a, 3, VS)
    E = 60
    for r in range(8):
        a(f'v_lshlrev_b32 v{E+2*r}, 16, v{XS+r}')
        a(f'v_and_b32 v{E+2*r+1}, s50, v{XS+r}')
    S = 80
    a(f'v_pk_add_f32 {P(S)}, {P(E)}, {P(E+2)}')
    a(f'v_pk_add_f32 {P(S+2)}, {P(E+4)}, {P(E+6)}')
    a(f'v_pk_add_f32 {P(S+4)}, {P(E+8)}, {P(E+10)}')
    a(f'v_pk_add_f32 {P(S+6)}, {P(E+12)}, {P(E+14)}')
    a(f'v_pk_add_f32 {P(S)}, {P(S)}, {P(S+2)}')
    a(f'v_pk_add_f32 {P(S+4)}, {P(S+4)}, {P(S+6)}')
    a(f'v_pk_add_f32 {P(S)}, {P(S)}, {P(S+4)}')
    a(f'v_add_f32 v{S}, v{S}, v{S+1}')
    red32(a, S, S + 1)
    a(f'v_mul_f32 v{S}, 0xbb000000, v{S}')
    a(f'v_mov_b32 v{S+1}, v{S}')
    a('s_waitcnt vmcnt(%d)' % (2 if PF_FILT else 0))
    O2 = 100
    for c in range(2):
        for w in range(4):
            a(f'v_perm_b32 v{O2+4*c+w}, v{XR+2*w+1}, v{XR+2*w}, s{51+c}')
        a(f'buffer_store_dwordx4 {Q(O2+4*c)}, v8, s[{O0}:{O0+3}], {"s47" if c else "0"} offen')
    for r in range(8):
        a(f'v_pk_add_f32 {P(E+2*r)}, {P(E+2*r)}, {P(S)}')
    a(f'v_pk_mul_f32 {P(S+2)}, {P(E)}, {P(E)}')
    a(f'v_pk_mul_f32 {P(S+4)}, {P(E+2)}, {P(E+2)}')
    for r in range(2, 8):
        d = S + 2 + 2 * (r & 1)
        a(f'v_pk_fma_f32 {P(d)}, {P(E+2*r)}, {P(E+2*r)}, {P(d)}')
    a(f'v_pk_add_f32 {P(S+2)}, {P(S+2)}, {P(S+4)}')
    a(f'v_add_f32 v{S+2}, v{S+2}, v{S+3}')
    red32(a, S + 2, S + 3)
    a(f'v_mul_f32 v{S+2}, 0x3b000000, v{S+2}')
    rne(a, S, S)
    ln_sigma(a, S + 2, S + 4)
    a(f'v_mul_f32 v{S+5}, v{S}, v{S+4}')
    a('v_mov_b32 v33, 0')
    a('v_lshrrev_b32 v34, 1, v9')
    a('s_mov_b32 s61, 0x8000')
    a('s_mov_b32 exec_lo, 1')
    a('s_mov_b32 exec_hi, 1')
    a(f'buffer_store_short v33, v34, s[{ST}:{ST+3}], s61 offen')
    a(f'buffer_store_dword v{S+4}, v9, s[{ST}:{ST+3}], 0 offen')
    a(f'buffer_store_dword v{S+5}, v9, s[{ST}:{ST+3}], s48 offen')
    stamp(a, 4, VS)
    stamp_end(a, 5, VS, 0, 110)
    a('prep_end:')
    a('s_endpgm')
    return name, 128, 102, None

CV_XC = 0
CV_E = 2 * 4 * 4640
CV_RED = CV_E + 2 * 8448
CV_AUX = CV_RED + 16384
CV_FM = CV_AUX + 24576
CV_FLG = CV_FM + 24576
CV_LDS = CV_FLG + 1280
NFMT = 224

def lds_spin(a, vf, vaddr, off, cnt, cond='ne'):
    L = a.newlabel('sp'); D = a.newlabel('spd')
    a(f'{L}:')
    a(f'ds_read_b32 v{vf}, v{vaddr} offset:{off}')
    a(f's_add_u32 s{cnt}, s{cnt}, 1')
    a(f's_cmp_gt_u32 s{cnt}, 0x100000')
    a(f's_cbranch_scc1 {D}')
    a('s_waitcnt lgkmcnt(0)')
    a(f'v_cmp_{cond}_u32 vcc, 0, v{vf}')
    a(f's_cbranch_vccnz {L}')
    a(f'{D}:')

def gen_conv(a):
    name = 'conv_kernel'
    begin(a, name)
    VS = 250
    H, XRS, HT = 20, 24, 32
    a('s_cmp_ge_u32 s2, 256')
    a('s_cbranch_scc1 conv_end')
    stamp_begin(a, VS)
    a('s_load_dwordx4 s[4:7], s[0:1], 32')
    a('s_load_dwordx2 s[14:15], s[0:1], 96')
    a('v_lshrrev_b32 v1, 6, v0')
    a('v_and_b32 v2, 63, v0')
    a('v_readfirstlane_b32 s60, v1')
    a('s_and_b32 s16, s2, 7')
    a('s_lshr_b32 s17, s2, 3')
    a('s_lshl_b32 s16, s16, 5')
    a('s_add_u32 s16, s16, s17')
    a('v_lshlrev_b32 v5, 3, v2')
    a('v_lshlrev_b32 v6, 4, v2')
    a('s_mov_b32 s93, 0x7f000000')
    a('s_mov_b32 s94, 0')
    a('s_cmp_ge_u32 s60, 4')
    a('s_cbranch_scc1 cv_help')
    a('s_lshr_b32 s61, s60, 1')
    a('s_and_b32 s62, s60, 1')
    a('s_lshl_b32 s63, s16, 1')
    a('s_add_u32 s63, s63, s61')
    a('s_lshl_b32 s64, s63, 12')
    a('s_lshl_b32 s65, s16, 2')
    a('s_mul_i32 s66, s61, 8448')
    a('s_add_u32 s66, s66, %d' % CV_E)
    a('s_mul_i32 s70, s61, 18560')
    a('s_mul_i32 s71, s62, 4640')
    a('s_add_u32 s71, s71, s70')
    a('s_xor_b32 s77, s62, 1')
    a('s_mul_i32 s72, s77, %d' % CHB)
    a('s_mul_i32 s73, s63, %d' % CS)
    a('s_add_u32 s72, s72, s73')
    a('s_lshl_b32 s69, s62, 11')
    a('s_lshl_b32 s75, s62, 12')
    a('v_lshrrev_b32 v7, 2, v2')
    a('v_and_b32 v8, 3, v2')
    a('v_lshlrev_b32 v7, 3, v7')
    a('v_lshl_add_u32 v7, v8, 2, v7')
    a('v_add_u32 v7, 0xffffff80, v7')
    a('s_add_u32 s68, s66, s75')
    a('s_add_u32 m0, s68, 256')
    a('s_waitcnt lgkmcnt(0)')
    stamp(a, 1, VS)
    srd(a, H, 4, 4096, offreg=64)
    for i in range(4):
        a(f'buffer_load_dwordx4 v5, s[{H}:{H+3}], s69 offen offset:{512*i} lds')
        a('s_add_u32 m0, m0, 512' if i < 3 else 's_mov_b32 m0, s66')
    srd(a, XRS, 14, 4096, WS_XR0, offreg=72)
    a(f'buffer_load_dword v7, s[{H}:{H+3}], 0 offen lds')
    a('s_mov_b32 m0, s71')
    a('s_load_dword s67, s[6:7], s65')
    for i in range(4):
        a(f'buffer_load_dwordx4 v6, s[{XRS}:{XRS+3}], 4 offen offset:{1024*i} lds')
    a('s_add_u32 m0, m0, 9280')
    a('s_lshl_b32 s74, s60, 2')
    for i in range(4):
        a(f'buffer_load_dwordx4 v6, s[{XRS}:{XRS+3}], 0 offen offset:{1024*i} lds')
    a('s_barrier')
    a('s_add_u32 m0, s74, %d' % CV_FLG)
    a('s_mov_b64 exec, 1')
    a(f'buffer_load_dword v6, s[{XRS}:{XRS+3}], s93 offen lds')
    a('s_mov_b64 exec, -1')
    srd(a, HT, 14, 2 * MiB, WS_HT)
    for par, sh in ((0, 62), (1, 77)):
        a(f's_lshl_b32 s{40+par}, s{sh}, 9')
        a(f's_lshl_b32 s{50+par}, s{sh}, 18')
    a('s_lshl_b32 s79, s63, 8')
    a('s_add_u32 s50, s50, s79')
    a('s_add_u32 s51, s51, s79')
    a('s_add_u32 s51, s51, 0x80000')
    a('s_add_u32 s52, s50, 0x100000')
    a('s_add_u32 s53, s51, 0x100000')
    a('v_and_b32 v12, 31, v2')
    a('v_lshlrev_b32 v12, 3, v12')
    a('s_and_b32 s74, s63, 3')
    a('s_lshl_b32 s74, s74, 6')
    a('v_xor_b32 v12, s74, v12')
    a('v_lshrrev_b32 v13, 5, v2')
    a('v_lshl_add_u32 v12, v13, 17, v12')
    XA, HA = 224, 225
    a('v_and_b32 v3, 15, v2')
    a('v_lshrrev_b32 v4, 4, v2')
    a('v_lshrrev_b32 v9, 2, v3')
    a('v_mul_u32_u24 v10, 4640, v8')
    a('v_lshlrev_b32 v9, 3, v9')
    a('v_sub_u32 v9, v4, v9')
    a('v_add_u32 v9, 24, v9')
    a(f'v_lshl_add_u32 v{XA}, v9, 4, v10')
    a('s_lshl_b32 s88, s62, 8')
    a('s_add_u32 s88, s88, s70')
    a(f'v_add_u32 v{XA}, s88, v{XA}')
    a(f'v_lshl_add_u32 v{HA}, v4, 1, v3')
    a(f'v_lshlrev_b32 v{HA}, 4, v{HA}')
    a('s_lshl_b32 s89, s62, 9')
    a('s_add_u32 s89, s89, s66')
    a('s_add_u32 s89, s89, 16')
    a(f'v_add_u32 v{HA}, s89, v{HA}')
    a('s_lshl_b32 s88, s61, 12')
    a('s_add_u32 s88, s88, %d' % (CV_AUX + 16384))
    for par in range(2):
        a(f's_sub_u32 s89, s70, s{40+par}')
        a('s_add_u32 s89, s89, %d' % (3 * 4640 + 4088 - 3072))
        a(f'v_sub_u32 v{10+par}, s89, v5')
        a(f's_add_u32 s89, s88, s{40+par}')
        a(f'v_add_u32 v{13+par}, s89, v5')
        a(f's_lshl_b32 s89, s{40+par}, 1')
        a('s_add_u32 s89, s89, %d' % CV_AUX)
        a(f'v_add_u32 v{60+par}, s89, v6')
    a('s_lshl_b32 s90, s60, 12')
    a('s_add_u32 s91, s90, %d' % CV_RED)
    a('s_xor_b32 s90, s90, 0x1000')
    a('s_add_u32 s90, s90, %d' % CV_RED)
    a('v_add_u32 v62, s91, v6')
    a('v_add_u32 v63, s90, v6')
    a('s_mov_b32 s92, 0xffff0000')
    a('v_and_b32 v9, 1, v2')
    a('s_lshl_b32 s89, s61, 3')
    a('s_add_u32 s89, s89, %d' % CV_FLG)
    a('v_lshl_add_u32 v9, v9, 2, s89')
    a('v_lshlrev_b32 v15, 2, v8')
    a('v_add_u32 v15, %d, v15' % (CV_FLG + 16))
    a('s_lshl_b32 s89, s60, 8')
    a('s_add_u32 s89, s89, %d' % (CV_FLG + 256))
    a('v_lshl_add_u32 v3, v2, 2, s89')
    a('s_xor_b32 s89, s60, 1')
    a('s_lshl_b32 s89, s89, 8')
    a('s_add_u32 s89, s89, %d' % (CV_FLG + 256))
    a('v_lshl_add_u32 v4, v2, 2, s89')
    a('v_mov_b32 v7, 0')
    stamp(a, 2, VS)
    lds_spin(a, 1, 9, 0, 94)
    stamp(a, 3, VS)
    FH = [64, 128]; FX = [96, 160]; ACC = 192
    XV, RS, MR, XF = 16, 24, 40, 232
    kvp = [56, 58, 226, 228]
    def rdH(s, ri, aa): return f'ds_read_b128 {Q(FH[s]+4*aa)}, v{HA} offset:{128*(8*aa+ri)}'
    def rdX(s, ri, bb): return f'ds_read_b128 {Q(FX[s]+4*bb)}, v{XA} offset:{64*(56-8*bb+ri)}'
    inited = [False] * 8
    def mf(s, aa, bb):
        nb = aa + bb
        c = Q(ACC + 4 * nb)
        src = c if inited[nb] else '0'
        inited[nb] = True
        return f'v_mfma_f32_16x16x32_bf16 {c}, {Q(FX[s]+4*bb)}, {Q(FH[s]+4*aa)}, {src}'
    pairs = sorted([(aa, bb) for aa in range(8) for bb in range(8) if aa + bb <= 7], key=lambda p: (max(p), p))
    q = DsQ(a)
    todo = []
    for ri in range(4):
        for x in range(8):
            todo.append((rdH(ri & 1, ri, x), ('H', ri, x)))
            todo.append((rdX(ri & 1, ri, x), ('X', ri, x)))
    for _ in range(12):
        q.op(*todo.pop(0))
    a('s_lshl_b32 s90, s61, 4')
    a('s_lshr_b32 s67, s67, s90')
    a('s_lshl_b32 s67, s67, 16')
    aux = []
    for t in range(4):
        par = t & 1
        aux.append(f'ds_read_b64 {P(kvp[t])}, v{10+par} offset:{1024*(3-t)}')
        aux.append(f'ds_read_b64 {P(XV+2*t)}, v{13+par} offset:{1024*t}')
        aux.append(f'ds_read_b128 {Q(RS+4*t)}, v{60+par} offset:{2048*t}')
        aux.append(f'ds_read_b128 {Q(MR+4*t)}, v{60+par} offset:{2048*t+8192}')
    pre = []
    for t in range(4):
        pre += [f'v_lshlrev_b32 v{XF+4*t}, 16, v{XV+2*t}', f'v_and_b32 v{XF+4*t+1}, s92, v{XV+2*t}',
                f'v_lshlrev_b32 v{XF+4*t+2}, 16, v{XV+2*t+1}', f'v_and_b32 v{XF+4*t+3}, s92, v{XV+2*t+1}']
    pre += [f'v_fma_f32 v{RS+r}, v{XF+r}, v{RS+r}, v{MR+r}' for r in range(16)]
    for t in range(4):
        pre += [f'v_and_b32 v{MR+4*t}, s92, v{kvp[t]+1}', f'v_lshlrev_b32 v{MR+4*t+1}, 16, v{kvp[t]+1}',
                f'v_and_b32 v{MR+4*t+2}, s92, v{kvp[t]}', f'v_lshlrev_b32 v{MR+4*t+3}, 16, v{kvp[t]}']
    pre += [f'v_mul_f32 v{MR+r}, v{MR+r}, v{RS+r}' for r in range(16)]
    pre += [f'v_fmac_f32 v{XF+r}, s67, v{MR+r}' for r in range(16)]
    for ri in range(3):
        s = ri & 1
        for n, (aa, bb) in enumerate(pairs):
            q.wait(('H', ri, aa), ('X', ri, bb))
            a(mf(s, aa, bb))
            used = 0
            if todo and todo[0][1][1] <= ri + 1 and (n % 2 == 0 or todo[0][1][1] == ri):
                q.op(*todo.pop(0)); used = 1
            if ri == 0 and n == 31: q.op('ds_read_b32 v1, v15', 'fb')
            if ri == 1 and n == 1:
                q.wait('fb')
                a('v_cmp_ne_u32 vcc, 0, v1')
                a('s_cbranch_vccnz cv_fbspin')
                a('cv_fbgo:')
            if ri == 1 and n % 2 == 1 and n >= 3 and aux: q.op(aux.pop(0), 'aux')
            if ri == 2:
                if n == 0: q.wait('aux')
                for _ in range(2 - used):
                    if pre: a(pre.pop(0))
    assert not todo and not aux, (len(todo), len(aux))
    a('s_cmp_eq_u32 s62, 0')
    a('s_waitcnt lgkmcnt(0)')
    a('s_cbranch_scc0 conv_h1')
    PR = 64
    hist = list(a.hist)
    for half in range(2):
        if half:
            a('conv_h1:'); a.hist = list(hist)
        rest = list(pre)
        keep = [2 * t + ((t & 1) ^ half) for t in range(4)]
        send = [2 * t + ((t & 1) ^ half ^ 1) for t in range(4)]
        ps = sorted([p for p in pairs if sum(p) in send], key=lambda p: sum(p))
        pk = sorted([p for p in pairs if sum(p) in keep], key=lambda p: sum(p))
        seq = ps + pk
        lastidx = {nb: max(i for i, p in enumerate(seq) if sum(p) == nb) for nb in range(8)}
        wr = {lastidx[nb] + 3: t for t, nb in enumerate(send)}
        for i, (aa, bb) in enumerate(seq):
            a(mf(1, aa, bb))
            for _ in range(2):
                if rest: a(rest.pop(0))
            if i in wr:
                t = wr[i]
                a(f'ds_write_b128 v62, {Q(ACC+4*send[t])} offset:{1024*t}')
            if i == 21: a('ds_write_b32 v3, v7')
            if i == 25: a('ds_read_b32 v1, v4')
            if i == 30:
                a('s_waitcnt lgkmcnt(0)')
                a('v_cmp_ne_u32 vcc, 0, v1')
                a(f's_cbranch_vccnz cv_rspin{half}')
                a(f'cv_rgo{half}:')
                for t in range(2): a(f'ds_read_b128 {Q(PR+4*t)}, v63 offset:{1024*t}')
            if i == 31:
                for t in range(2, 4): a(f'ds_read_b128 {Q(PR+4*t)}, v63 offset:{1024*t}')
            if i >= 32:
                t = i - 32
                if t < 3:
                    for r in range(4):
                        a(f'v_fmac_f32 v{XF+4*t+r}, v{RS+4*t+r}, v{ACC+4*keep[t]+r}')
        assert not rest
        stamp(a, 4, VS)
        for t in range(4):
            a(f's_waitcnt lgkmcnt({3-t})')
            for r in range(4):
                a(f'v_fmac_f32 v{XF+4*t+r}, v{RS+4*t+r}, v{PR+4*t+r}')
            if t == 3:
                for r in range(4):
                    a(f'v_fmac_f32 v{XF+4*t+r}, v{RS+4*t+r}, v{ACC+4*keep[t]+r}')
            a(f'v_cvt_pk_bf16_f32 v{88+2*t}, v{XF+4*t}, v{XF+4*t+1}')
            a(f'v_cvt_pk_bf16_f32 v{89+2*t}, v{XF+4*t+2}, v{XF+4*t+3}')
            a(f'buffer_store_dwordx2 {P(88+2*t)}, v12, s[{HT}:{HT+3}], s{50+t} offen' + (' sc1' if SC_HT else ''))
        stamp(a, 5, VS)
        stamp_end(a, 6, VS, 1, 248)
        a('s_endpgm')
    a('cv_fbspin:')
    lds_spin(a, 1, 15, 0, 94)
    a('s_branch cv_fbgo')
    for half in range(2):
        a(f'cv_rspin{half}:')
        lds_spin(a, 1, 4, 0, 94)
        a(f's_branch cv_rgo{half}')

    WS, SRC = 20, 24
    SCF = ' sc1' if SC_FMT else ''
    a('cv_help:')
    a.flush_hist()
    a('s_load_dwordx4 s[8:11], s[0:1], 56')
    a('s_load_dwordx2 s[12:13], s[0:1], 72')
    a('s_and_b32 s61, s60, 3')
    a('v_mov_b32 v20, 0')
    a('v_mov_b32 v21, 0')
    a('v_mov_b32 v22, -1')
    a('s_mul_i32 s62, s61, 9280')
    a('v_add_u32 v23, s62, v5')
    a('ds_write_b64 v23, v[20:21] offset:4096')
    a('ds_write_b64 v23, v[20:21] offset:%d' % (4096 + 4640))
    a('s_lshl_b32 s62, s61, 8')
    a('s_add_u32 s62, s62, %d' % CV_FLG)
    a('v_lshl_add_u32 v23, v2, 2, s62')
    a('ds_write_b32 v23, v22')
    a('ds_write_b32 v23, v22 offset:256')
    a('s_lshl_b32 s62, s61, 12')
    a('s_add_u32 s63, s62, %d' % WS_ST)
    a('s_lshr_b32 s64, s61, 1')
    a('s_lshl_b32 s65, s16, 1')
    a('s_add_u32 s64, s64, s65')
    a('s_mul_i32 s64, s64, %d' % CS)
    a('s_and_b32 s65, s61, 1')
    a('s_lshl_b32 s65, s65, 11')
    a('s_add_u32 s64, s64, s65')
    a('s_add_u32 s64, s64, %d' % WS_XT)
    a('s_add_u32 m0, s62, %d' % CV_AUX)
    a('s_mul_hi_u32 s78, s2, %d' % (2**32 // 28 + 1))
    a('s_mul_i32 s79, s78, 28')
    a('s_sub_u32 s79, s2, s79')
    a('v_and_b32 v3, 15, v2')
    a('v_lshrrev_b32 v4, 4, v2')
    a('v_lshrrev_b32 v24, 2, v3')
    a('v_and_b32 v25, 3, v3')
    a('v_lshrrev_b32 v26, 1, v4')
    a('v_and_b32 v27, 1, v4')
    a('s_lshl_b32 s66, s61, 13')
    a('s_add_u32 s66, s66, %d' % CV_FM)
    a('s_waitcnt lgkmcnt(0)')
    srd(a, WS, 14, WS_END)
    a('s_barrier')
    stamp(a, 1, VS)
    for i in range(4):
        a(f'buffer_load_dwordx4 v6, s[{WS}:{WS+3}], s63 offen offset:{1024*i} lds')
    a('s_lshl_b32 s62, s61, 11')
    a('s_add_u32 m0, s62, %d' % (CV_AUX + 16384))
    a('s_lshl_b32 s62, s61, 2')
    for i in range(2):
        a(f'buffer_load_dwordx4 v6, s[{WS}:{WS+3}], s64 offen offset:{1024*i} lds')
    a('s_add_u32 m0, s62, %d' % (CV_FLG + 16))
    a('s_mov_b64 exec, 1')
    a(f'buffer_load_dword v6, s[{WS}:{WS+3}], s93 offen lds')
    a('s_mov_b64 exec, -1')
    a('s_mov_b32 m0, s66')
    a('s_cmp_ge_u32 s2, %d' % NFMT)
    a('s_cbranch_scc1 cv_hend')
    a('s_cmp_eq_u32 s61, 3')
    a('s_cbranch_scc1 cv_hend')
    a('s_cmp_eq_u32 s61, 2')
    a('s_cbranch_scc1 cv_wd')
    a('s_cmp_eq_u32 s61, 0')
    a(f's_cselect_b32 s{SRC}, s8, s10')
    a(f's_cselect_b32 s{SRC+1}, s9, s11')
    a(f's_mov_b32 s{SRC+2}, {hex(512*3584)}')
    a(f's_mov_b32 s{SRC+3}, 0x20000')
    a('v_and_b32 v7, 7, v2')
    a('v_lshrrev_b32 v13, 3, v2')
    a('v_mul_u32_u24 v13, 3584, v13')
    a('v_lshl_add_u32 v13, v7, 4, v13')
    a('s_mul_i32 s80, s78, %d' % (64 * 3584))
    a('s_lshl_b32 s81, s79, 7')
    a('s_add_u32 s80, s80, s81')
    for i in range(8):
        a(f'buffer_load_dwordx4 v13, s[{SRC}:{SRC+3}], s80 offen lds')
        if i < 7:
            a('s_add_u32 m0, m0, 1024')
            a('s_add_u32 s80, s80, %d' % (8 * 3584))
    a('v_lshl_add_u32 v28, v26, 3, v24')
    a('v_lshlrev_b32 v28, 7, v28')
    a('v_lshl_add_u32 v28, v27, 5, v28')
    a('v_lshl_add_u32 v28, v25, 3, v28')
    a('v_add_u32 v28, s66, v28')
    for j in range(4):
        a('s_lshl_b32 s82, s79, 2')
        a(f's_add_u32 s82, s82, {j}')
        a('s_mul_hi_u32 s83, s82, %d' % (2**32 // 7 + 1))
        a('s_mul_i32 s84, s83, 7')
        a('s_sub_u32 s84, s82, s84')
        a('s_mul_i32 s83, s83, %d' % W1F_NT)
        a('s_lshl_b32 s84, s84, 10')
        a(f's_add_u32 s{40+j}, s83, s84')
    a('s_lshl_b32 s82, s61, 4')
    a('v_lshl_add_u32 v29, v26, 5, v3')
    a('v_add_u32 v29, s82, v29')
    a('v_lshlrev_b32 v29, 4, v29')
    a('v_cmp_eq_u32 vcc, 1, v27')
    for u in range(2):
        a(f'v_mov_b32 v{30+u}, s{40+2*u}')
        a(f'v_mov_b32 v8, s{41+2*u}')
        a(f'v_cndmask_b32 v{30+u}, v{30+u}, v8, vcc')
        a(f'v_add_u32 v{30+u}, v{30+u}, v29')
    a('s_mul_i32 s44, s78, %d' % (4 * 7168))
    a('s_add_u32 s44, s44, %d' % WS_W1F)
    a('s_lshr_b32 s46, s78, 2')
    a('s_lshl_b32 s46, s46, 9')
    a('s_and_b32 s47, s78, 3')
    a('s_lshl_b32 s47, s47, 2')
    a('s_add_u32 s46, s46, s47')
    a('s_add_u32 s46, s46, %d' % (WS_W1F + 32 * 7168))
    for r in range(4): a(f'v_mov_b32 v{16+r}, 0')
    a('s_mov_b32 s45, 0x3f803f80')
    stamp(a, 2, VS)
    a('s_waitcnt vmcnt(0)')
    stamp(a, 3, VS)
    FF = 32
    q = DsQ(a)
    for ks in range(4):
        for u in range(2):
            r = FF + 8 * ks + 4 * u
            q.op(f'ds_read_b64_tr_b16 {P(r)}, v28 offset:{2048*ks+64*u}', (ks, u))
            q.op(f'ds_read_b64_tr_b16 {P(r+2)}, v28 offset:{2048*ks+64*u+512}', (ks, u))
    for ks in range(4):
        for u in range(2):
            r = FF + 8 * ks + 4 * u
            q.wait((ks, u))
            a(f'buffer_store_dwordx4 {Q(r)}, v{30+u}, s[{WS}:{WS+3}], s44 offen{SCF}')
            for w in range(4):
                a(f'v_dot2c_f32_bf16 v{16+2*u+(w&1)}, s45, v{r+w}')
        a('s_add_u32 s44, s44, 7168')
    a('s_nop 2')
    for u in range(2):
        c = 16 + 2 * u
        a(f'v_add_f32 v{c}, v{c}, v{c+1}')
        a(f'v_mov_b32 v{c+1}, v{c}')
        a(f'v_permlane32_swap_b32 v{c}, v{c+1}')
        a(f'v_add_f32 v{c}, v{c}, v{c+1}')
        rne(a, c + 1, c)
        a(f'v_sub_f32 v{c}, v{c}, v{c+1}')
        a(f'v_cvt_pk_bf16_f32 v{c}, v{c+1}, v{c}')
    a('s_mov_b32 exec_hi, 0')
    for u in range(2):
        a(f'buffer_store_dword v{16+2*u}, v{30+u}, s[{WS}:{WS+3}], s46 offen')
    a('s_branch cv_hend')
    a('cv_wd:')
    a.flush_hist()
    srd(a, SRC, 12, 1792 * 1024)
    a('v_lshrrev_b32 v14, 5, v2')
    a('v_lshlrev_b32 v14, 10, v14')
    a('v_and_b32 v15, 31, v2')
    a('v_lshl_add_u32 v14, v15, 4, v14')
    a('s_lshr_b32 s84, s2, 1')
    a('s_and_b32 s85, s2, 1')
    a('s_lshl_b32 s86, s84, 14')
    a('s_lshl_b32 s87, s85, 9')
    a('s_add_u32 s86, s86, s87')
    for i in range(8):
        a(f'buffer_load_dwordx4 v14, s[{SRC}:{SRC+3}], s86 offen lds')
        if i < 7:
            a('s_add_u32 m0, m0, 1024')
            a('s_add_u32 s86, s86, 2048')
    a('v_lshl_add_u32 v28, v26, 2, v24')
    a('v_lshlrev_b32 v28, 9, v28')
    a('v_lshl_add_u32 v28, v27, 5, v28')
    a('v_lshl_add_u32 v28, v25, 3, v28')
    a('v_add_u32 v28, s66, v28')
    a('s_mul_i32 s44, s85, 448')
    a('s_add_u32 s44, s44, s84')
    a('s_lshl_b32 s44, s44, 11')
    a('s_add_u32 s44, s44, %d' % WS_WDF)
    stamp(a, 2, VS)
    a('s_waitcnt vmcnt(0)')
    stamp(a, 3, VS)
    q = DsQ(a)
    for x in range(8):
        q.op(f'ds_read_b64_tr_b16 {P(FF+4*x)}, v28 offset:{64*x}', x)
        q.op(f'ds_read_b64_tr_b16 {P(FF+4*x+2)}, v28 offset:{64*x+4096}', x)
    for x in range(8):
        q.wait(x)
        a(f'buffer_store_dwordx4 {Q(FF+4*x)}, v6, s[{WS}:{WS+3}], s44 offen offset:{1024*(x&1)}{SCF}')
        if x & 1: a('s_add_u32 s44, s44, %d' % (112 * 2048))
    a('cv_hend:')
    stamp(a, 4, VS)
    stamp_end(a, 5, VS, 1, 248)
    a('conv_end:')
    a('s_endpgm')
    return name, 252, 102, None

G1_SLOT = 22528
G1_NS = 7
G1_RING = G1_SLOT * G1_NS
FF_FLG = G1_RING
FF_LDS = FF_FLG + 512
FF_WD = 3 * G1_SLOT
FF_WD2 = 5 * G1_SLOT
FF_H = FF_WD + 40960
FF_RED = 0
BARS = {0: 3, 2: 5, 4: 7, 6: 9, 8: 11, 10: 13, 12: 15, 14: 18}
RK = 18
LK = 10
SC = ' sc1'
NOSTAT = 0
BAR14 = 1
BARGAP = 3
XALIGN = 0
XPAD = 0
PACE = 9
LEAP1 = 0
XPRIO = 0
NOBAR = 0
NODMA = 0

def epi_tile(g, T, C1, IR2):
    u = g + 8
    L = []
    for e in range(0, 8, 2): L.append(f'v_pk_mul_f32 {P(T+e)}, {P(g+e)}, {P(C1)}')
    for e in range(8): L.append(f'v_exp_f32 v{T+e}, v{T+e}')
    for e in range(0, 8, 2): L.append(f'v_pk_mul_f32 {P(g+e)}, {P(g+e)}, {P(u+e)}')
    for e in range(0, 8, 2): L.append(f'v_pk_fma_f32 {P(T+e)}, {P(T+e)}, {P(IR2)}, {P(IR2)}')
    for e in range(8): L.append(f'v_rcp_f32 v{T+e}, v{T+e}')
    for e in range(0, 8, 2): L.append(f'v_pk_mul_f32 {P(g+e)}, {P(g+e)}, {P(T+e)}')
    for w in range(4): L.append(f'v_cvt_pk_bf16_f32 v{T+8+w}, v{g+2*w}, v{g+2*w+1}')
    return L

def gen_ffn(a):
    name = 'ffn_kernel'
    begin(a, name)
    W1F, HT, WS, OUT = 8, 12, 16, 40
    a('s_cmp_ge_u32 s2, 256')
    a('s_cbranch_scc1 ff_end')
    a('s_load_dwordx2 s[4:5], s[0:1], 96')
    a('s_load_dwordx2 s[6:7], s[0:1], 80')
    a('v_lshrrev_b32 v1, 6, v0')
    a('v_and_b32 v2, 63, v0')
    a('v_readfirstlane_b32 s46, v1')
    a('s_and_b32 s21, s2, 1')
    a('s_lshl_b32 s21, s21, 3')
    a('s_bfe_u32 s27, s2, 0x30003')
    a('s_add_u32 s21, s21, s27')
    a('s_bfe_u32 s22, s2, 0x20001')
    a('s_lshl_b32 s22, s22, 2')
    a('s_lshr_b32 s23, s2, 6')
    a('s_add_u32 s22, s22, s23')
    a('s_and_b32 s20, s46, 3')
    a('v_lshlrev_b32 v3, 4, v2')
    a('s_cmp_ge_u32 s46, 4')
    a('s_cbranch_scc1 ff_ld')
    VS = 250
    stamp_begin(a, VS)
    a('v_lshlrev_b32 v9, 1, v0')
    a('v_add_u32 v9, %d, v9' % FF_FLG)
    a('v_mov_b32 v8, -1')
    a('ds_write_b16 v9, v8')
    a('v_lshrrev_b32 v5, 4, v2')
    a('v_and_b32 v6, 15, v2')
    a('v_lshrrev_b32 v12, 2, v6')
    a('v_and_b32 v13, 3, v6')
    a('s_waitcnt lgkmcnt(0)')
    a('s_barrier')
    a('v_lshrrev_b32 v14, 1, v5')
    a('v_and_b32 v15, 1, v5')
    a('v_lshl_add_u32 v11, v14, 3, v12')
    a('v_lshlrev_b32 v11, 8, v11')
    a('v_xor_b32 v12, s20, v12')
    a('v_lshl_add_u32 v11, v12, 6, v11')
    a('v_lshl_add_u32 v11, v15, 5, v11')
    a('v_lshl_add_u32 v11, v13, 3, v11')
    a('v_add_u32 v11, 14336, v11')
    a('v_mov_b32 v10, v3')
    a('v_lshlrev_b32 v8, 2, v13')
    a('v_add_u32 v8, %d, v8' % FF_FLG)
    a('s_lshl_b32 s37, s21, 2')
    a('s_add_u32 s37, s37, s20')
    a('s_mul_i32 s37, s37, 112')
    a('s_mul_i32 s38, s22, 7')
    a('s_add_u32 s37, s37, s38')
    a('s_lshl_b32 s37, s37, 10')
    a('s_add_u32 s37, s37, %d' % WS_ACT)
    a('s_lshl_b32 s38, s21, 1')
    a('s_lshr_b32 s39, s20, 1')
    a('s_add_u32 s38, s38, s39')
    a('s_lshl_b32 s38, s38, 7')
    a('s_lshl_b32 s39, s22, 3')
    a('s_add_u32 s38, s38, s39')
    a('s_and_b32 s39, s20, 1')
    a('s_lshl_b32 s39, s39, 2')
    a('s_add_u32 s38, s38, s39')
    a('s_add_u32 s38, s38, %d' % WS_GF)
    WF = [32, 60]; HF = [88, 92, 216, 220]; ACC = 96
    S1, S2, PV = 16, 18, 24
    for r in range(112):
        a(f'v_mov_b32 v{ACC+r}, 0')
    for r in range(4):
        a(f'v_mov_b32 v{S1+r}, 0')
    a('s_mov_b32 s34, 0xffff0000')
    a('s_mov_b32 s35, %d' % G1_SLOT)
    a('s_mov_b32 s33, 0')
    a('s_mov_b32 s32, %d' % sum(1 << k for k in BARS))
    a('s_mov_b32 s30, %d' % (-(G1_RING - G1_SLOT) & 0xffffffff))
    a('s_mov_b32 s31, %d' % G1_SLOT)
    srd(a, WS, 4, WS_END)
    def rdW(s, f): return f'ds_read_b128 {Q(WF[s]+4*f)}, v10 offset:{7168*s+1024*f}'
    def rdH(h, s): return [f'ds_read_b64_tr_b16 {P(h)}, v11 offset:{4096*s}', f'ds_read_b64_tr_b16 {P(h+2)}, v11 offset:{4096*s+1024}']
    def stats(h):
        U = []; A = []
        for w in range(4):
            t = 208 + 2 * w
            U.append([f'v_lshlrev_b32 v{t}, 16, v{h+w}', f'v_and_b32 v{t+1}, s34, v{h+w}'])
            A.append([f'v_add_f32 v{S1}, v{S1}, v{t}', f'v_fmac_f32 v{S2}, v{t}, v{t}', f'v_add_f32 v{S1+1}, v{S1+1}, v{t+1}', f'v_fmac_f32 v{S2+1}, v{t+1}, v{t+1}'])
        return U[0] + U[1] + A[0] + U[2] + A[1] + U[3] + A[2] + A[3]
    def mfma(s, f, h=None):
        h = HF[s] if h is None else h
        return f'v_mfma_f32_32x32x16_bf16 v[{ACC+16*f}:{ACC+16*f+15}], {Q(WF[s]+4*f)}, {Q(h)}, v[{ACC+16*f}:{ACC+16*f+15}]'
    stamp(a, 1, VS)
    if XPRIO: a(f's_setprio {XPRIO}')
    a('s_mov_b32 s44, 0')
    a('ff_x0:')
    a(f'ds_read_b32 v{PV}, v8')
    a('s_add_u32 s44, s44, 1')
    a('s_cmp_gt_u32 s44, 0x100000')
    a('s_cbranch_scc1 ff_x1')
    a('s_waitcnt lgkmcnt(0)')
    a(f'v_cmp_ne_u32 vcc, 0, v{PV}')
    a('s_cbranch_vccnz ff_x0')
    a('ff_x1:')
    stamp(a, 2, VS)
    for x in rdH(HF[0], 0): a(x)
    for f in range(7): a(rdW(0, f))
    a(f'ds_read_b32 v{PV}, v8 offset:16')
    for x in rdH(HF[1], 1): a(x)
    for f in range(7): a(rdW(1, f))
    a('v_add_u32 v10, %d, v10' % G1_SLOT)
    a('v_add_u32 v11, %d, v11' % G1_SLOT)
    a('ff_loop:')
    for ks in range(4):
        s = ks & 1; h = HF[ks]; hn = HF[(ks + 2) % 4]; st2 = ks // 2
        S = stats(h) if not NOSTAT else []
        ex = [[] for _ in range(7)]
        rh = rdH(hn, s)
        if s == 0:
            ex[0] = [f'v_cmp_ne_u32 vcc, 0, v{PV}', f's_cbranch_vccnz ff_xspin{st2}\nff_xgo{st2}:']
            ex[1] = [rh[0]]; ex[2] = [rh[1]]
            ex[3] = ['s_add_u32 s35, s35, %d' % G1_SLOT]; ex[4] = ['s_cmp_eq_u32 s35, %d' % G1_RING]; ex[5] = ['s_cselect_b32 s36, s30, s31']
            if ks == 0: ex[BARGAP] = ['s_barrier'] + ex[BARGAP]
        else:
            ex[0] = [f'ds_read_b32 v{PV}, v8 offset:{32+16*st2}']
            ex[1] = [rh[0]]; ex[2] = [rh[1], 's_cselect_b32 s35, 0, s35']
            ex[3] = ['v_add_u32 v11, s36, v11']
            if ks == 3:
                ex[4] = ['s_add_u32 s33, s33, 2', 'v_add_u32 v8, 32, v8']; ex[5] = ['s_cmp_lt_u32 s33, 16']
            ex[6] = ['v_add_u32 v10, s36, v10']
        tot = [1 + len(e) for e in ex]; tot[6] += 1 + (3 if ks == 3 else 0)
        if ks == 0: tot[BARGAP] += 2
        cnts = [0] * 7
        for _ in range(len(S)):
            i = min(range(7), key=lambda j: (tot[j] + cnts[j], j)); cnts[i] += 1
        k = 0
        a('s_waitcnt lgkmcnt(9)')
        for f in range(7):
            a(mfma(s, f, h))
            for x in (ex[f] + [rdW(s, f)] if f == 0 else [rdW(s, f)] + ex[f]): a(x)
            for x in S[k:k+cnts[f]]: a(x)
            k += cnts[f]
    a('s_cbranch_scc1 ff_loop')
    stamp(a, 3, VS)
    if STAMP: a(f'v_writelane_b32 v{VS}, s44, 13')
    a(f'v_add_f32 v{S1}, v{S1}, v{S1+1}')
    a(f'v_add_f32 v{S2}, v{S2}, v{S2+1}')
    a(f'v_mov_b32 v{S1+1}, v{S1}')
    a(f'v_mov_b32 v{S2+1}, v{S2}')
    a(f'v_permlane32_swap_b32 v{S1}, v{S1+1}')
    a(f'v_permlane32_swap_b32 v{S2}, v{S2+1}')
    a(f'v_add_f32 v{S1}, v{S1}, v{S1+1}')
    a(f'v_add_f32 v{S2}, v{S2}, v{S2+1}')
    a(f'v_mul_f32 v{S1}, 0xbb000000, v{S1}')
    a(f'v_mul_f32 v{S2}, 0x3b000000, v{S2}')
    a('s_waitcnt lgkmcnt(0)')
    for w in range(4):
        a(f'v_cvt_pk_bf16_f32 v{HF[0]+w}, v{S1}, v{S1}')
    a(f'v_fma_f32 v{S2}, -v{S1}, v{S1}, v{S2}')
    a(f'v_max_f32 v{S2}, 0, v{S2}')
    C1, IR2 = 24, 26
    b = Asm()
    ln_sigma(b, S2, C1)
    b(f'v_mul_f32 v{IR2}, v{S2}, v{S2}')
    b(f'v_mul_f32 v{C1}, 0xbfb8aa3b, v{C1}')
    b(f'v_mov_b32 v{IR2+1}, v{IR2}')
    b(f'v_mov_b32 v{C1+1}, v{C1}')
    fin = [l.strip() for l in b.lines if not l.strip().startswith('s_nop')]
    ep = [epi_tile(ACC + 16 * f, 64 + 16 * (f & 1), C1, IR2) for f in range(7)]
    a(mfma(0, 0))
    for x in fin[:5]: a(x)
    a(mfma(0, 1))
    for x in fin[5:10]: a(x)
    a(mfma(0, 2))
    for x in fin[10:]: a(x)
    e0 = ep[0]
    for f in range(3, 7):
        a(mfma(0, f))
        for x in e0[4*(f-3):4*(f-3)+4]: a(x)
    ep[0] = e0[16:]
    for f in range(7):
        T = 64 + 16 * (f & 1)
        for x in ep[f]: a(x)
        a(f'buffer_store_dwordx4 {Q(T+8)}, v3, s[{WS}:{WS+3}], s37 offen offset:{1024*(f&3)}{SC}')
        if f == 3: a('s_add_u32 s37, s37, 4096')
    stamp(a, 4, VS)
    a('v_mov_b32 v4, 1')
    a('v_mov_b32 v5, 0')
    a('s_waitcnt vmcnt(0)')
    a('s_mov_b64 exec, 1')
    a(f'buffer_store_dword v4, v5, s[{WS}:{WS+3}], s38 offen sc1')
    stamp(a, 5, VS)
    stamp_end(a, 6, VS, 2, 248)
    a('s_endpgm')
    for st2 in range(2):
        a(f'ff_xspin{st2}:')
        a(f'ds_read_b32 v{PV}, v8 offset:{16+16*st2}')
        a('s_add_u32 s44, s44, 1')
        a('s_cmp_gt_u32 s44, 0x100000')
        a('s_waitcnt lgkmcnt(0)')
        a(f's_cbranch_scc1 ff_xgo{st2}')
        a(f'v_cmp_ne_u32 vcc, 0, v{PV}')
        a(f's_cbranch_vccnz ff_xspin{st2}')
        a(f's_branch ff_xgo{st2}')
    a('ff_ld:')
    a.flush_hist()
    VS = 1
    stamp_begin(a, VS)
    a('s_mul_i32 s28, s22, %d' % W1F_NT)
    a('s_mul_i32 s24, s20, 3584')
    a('v_add_u32 v4, s24, v3')
    a('s_lshl_b32 s25, s21, 17')
    a('s_lshl_b32 s26, s20, 11')
    a('v_add_u32 v7, s26, v3')
    a('s_add_u32 s26, s26, 14336')
    def order1(phi):
        seq = [0]
        for B in range(4):
            per = [4 * B + c for c in (1, 2, 3)]
            if B < 3: per.insert(phi, 4 * (B + 1))
            seq += per
        if not LEAP1: seq = list(range(16))
        return sum(v << (4 * i) for i, v in enumerate(seq))
    a('s_lshr_b32 s66, s2, 3')
    a('s_mul_hi_u32 s67, s66, %d' % (2**32 // 3 + 1))
    a('s_mul_i32 s67, s67, 3')
    a('s_sub_u32 s66, s66, s67')
    for half in range(2):
        c = [(order1(p) >> (32 * half)) & 0xffffffff for p in range(3)]
        a(f's_mov_b32 s{68+half}, {hex(c[0])}')
        a('s_cmp_eq_u32 s66, 1')
        a(f's_cselect_b32 s{68+half}, {hex(c[1])}, s{68+half}')
        a('s_cmp_eq_u32 s66, 2')
        a(f's_cselect_b32 s{68+half}, {hex(c[2])}, s{68+half}')
    a('s_add_u32 s67, s21, s22')
    a('s_and_b32 s67, s67, %d' % (3 if LEAP1 else 0))
    a('s_mul_i32 s67, s67, 0x11111111')
    a('s_xor_b32 s68, s68, s67')
    a('s_xor_b32 s69, s69, s67')
    a('s_and_b32 s66, s68, 15')
    a('s_mul_i32 s30, s66, 14336')
    a('s_lshl_b32 s31, s66, 13')
    a('s_lshl_b32 s29, s20, 2')
    a('s_add_u32 s29, s29, %d' % FF_FLG)
    a('s_mov_b32 s47, 0x7f000000')
    a('s_mov_b32 m0, s26')
    a('s_waitcnt lgkmcnt(0)')
    srd(a, HT, 4, 131072, WS_HT, offreg=25)
    srd(a, W1F, 4, 33 * 7168, WS_W1F, offreg=28)
    a_real = a
    class Filt:
        def __call__(self, t):
            if NODMA and t.startswith('buffer_load_dwordx4') and t.endswith('lds'):
                if NODMA == 2: a_real(t.replace('buffer_load_dwordx4 ', 'buffer_load_dwordx4 v[112:115], ').replace(' lds', ''))
                return
            a_real(t)
    def pace():
        if PACE: a(f's_waitcnt vmcnt({PACE})')
    def dma(j, a=Filt()):
        slot = (j % G1_NS) * G1_SLOT
        if j < 16:
            if j: a('s_add_u32 m0, s26, %d' % slot)
            pace()
            a(f'buffer_load_dwordx4 v7, s[{HT}:{HT+3}], s31 offen lds')
            pace()
            a(f'buffer_load_dwordx4 v7, s[{HT}:{HT+3}], s31 offen offset:1024 lds')
        a('s_add_u32 m0, s24, %d' % slot)
        if j < 15: a(f's_bfe_u32 s66, s{68+(j+1)//8}, {hex(0x40000 + 4*((j+1)%8))}')
        else: a('s_mov_b32 s66, 16')
        a('s_lshl_b32 s31, s66, 13')
        pace()
        a(f'buffer_load_dwordx4 v4, s[{W1F}:{W1F+3}], s30 offen lds')
        pace()
        a(f'buffer_load_dwordx4 v4, s[{W1F}:{W1F+3}], s30 offen offset:1024 lds')
        pace()
        a(f'buffer_load_dwordx4 v4, s[{W1F}:{W1F+3}], s30 offen offset:2048 lds')
        a('s_mov_b32 exec_hi, 0')
        pace()
        a(f'buffer_load_dwordx4 v4, s[{W1F}:{W1F+3}], s30 offen offset:3072 lds')
        if j == 0: a('s_barrier')
        a('s_add_u32 m0, s29, %d' % (16 * j))
        a('s_mov_b32 exec_lo, 1')
        a('s_mul_i32 s30, s66, 14336')
        a(f'buffer_load_dword v4, s[{W1F}:{W1F+3}], s47 offen lds')
        a('s_mov_b64 exec, -1')
        if j >= 6 and not PACE: a('s_waitcnt vmcnt(49)')
    stamp(a, 1, VS)
    pos2s = {p: st for st, p in BARS.items()}
    allowed = G1_NS - 1
    for j in range(17):
        assert j <= allowed, (j, allowed)
        dma(j)
        if j == 1:
            a('s_and_b32 s48, s2, 7')
            a('s_lshl_b32 s48, s48, 2')
            a('s_bfe_u32 s49, s2, 0x20003')
            a('s_add_u32 s48, s48, s49')
            a('s_lshr_b32 s49, s2, 5')
            a('s_mul_i32 s50, s48, 224')
            a('s_mul_i32 s52, s20, 28')
            a('s_add_u32 s50, s50, s52')
            a('s_lshl_b32 s50, s50, 10')
            a('s_add_u32 s50, s50, %d' % WS_ACT)
            a('s_mul_i32 s51, s49, 112')
            a('s_add_u32 s51, s51, s52')
            a('s_lshl_b32 s51, s51, 11')
            a('s_add_u32 s51, s51, %d' % WS_WDF)
            if ROT2:
                a('s_mul_i32 s53, s49, 7')
                a('s_lshr_b32 s53, s53, 1')
                a('s_lshl_b32 s53, s53, 10')
            else:
                a('s_mov_b32 s53, 0')
            a('s_lshl_b32 s54, s53, 1')
            a('s_lshr_b32 s56, s20, 1')
            a('s_and_b32 s57, s20, 1')
            a('s_lshl_b32 s58, s56, 10')
            a('v_add_u32 v8, s58, v3')
            a('v_xor_b32 v9, 0x400, v8')
            a('s_mul_i32 s58, s57, 0x1c000')
            a('v_add_u32 v10, s58, v3')
            a('v_xor_b32 v11, 0x1c000, v10')
            srd(a, WS, 4, WS_END)
            srd(a, OUT, 6, 2 * MiB)
        if j in pos2s:
            a('s_barrier')
            allowed = max(allowed, pos2s[j] - 1 + G1_NS)
    stamp(a, 2, VS)
    wd_next = 's_add_u32 s54, s54, 2048\ns_cmp_eq_u32 s54, 57344\ns_cselect_b32 s54, 0, s54\ns_add_u32 s55, s51, s54'
    order = []
    ACC = 16
    WDR = 112
    a('s_add_u32 s55, s51, s54')
    wreg = {}
    for k in range(RK):
        wreg[k] = WDR + 8 * k
        a(f'buffer_load_dwordx4 {Q(wreg[k])}, v8, s[{WS}:{WS+3}], s55 offen')
        a(f'buffer_load_dwordx4 {Q(wreg[k]+4)}, v9, s[{WS}:{WS+3}], s55 offen')
        a(wd_next)
        if k % 4 == 3 or PACE: a('s_waitcnt vmcnt(%d)' % (PACE - 1 if PACE else 50))
        if k == BAR14: a('s_barrier')
    a('s_mul_i32 s58, s20, 10240')
    a('s_add_u32 s58, s58, %d' % FF_WD)
    a('s_mov_b32 m0, s58')
    for k in range(LK):
        a(f'buffer_load_dwordx4 v8, s[{WS}:{WS+3}], s55 offen lds')
        a('s_add_u32 m0, m0, 1024')
        a(f'buffer_load_dwordx4 v9, s[{WS}:{WS+3}], s55 offen lds')
        a('s_add_u32 m0, m0, %d' % (1024 if k != 4 else FF_WD2 - FF_WD - 9216))
        a(wd_next)
        if k % 4 == 3 or PACE: a('s_waitcnt vmcnt(%d)' % (PACE - 1 if PACE else 50))
    a('v_add_u32 v12, s58, v3')
    a('v_lshrrev_b32 v5, 3, v2')
    a('v_and_b32 v6, 7, v2')
    a('s_and_b32 s59, s48, 1')
    a('s_lshl_b32 s59, s59, 3')
    a('v_or_b32 v6, s59, v6')
    a('v_and_b32 v7, 3, v5')
    a('v_lshlrev_b32 v7, 2, v7')
    a('v_xor_b32 v6, v6, v7')
    a('v_lshlrev_b32 v5, 8, v5')
    a('v_lshl_add_u32 v5, v6, 4, v5')
    a('s_lshl_b32 s59, s49, 14')
    a('s_lshl_b32 s60, s20, 12')
    a('s_add_u32 s59, s59, s60')
    a('s_lshr_b32 s60, s48, 1')
    a('s_lshl_b32 s60, s60, 17')
    a('s_add_u32 s59, s59, s60')
    a('s_add_u32 s59, s59, %d' % WS_HT)
    a('s_add_u32 s60, s59, 0x800')
    a('s_lshl_b32 s61, s57, 11')
    a('s_mul_i32 s64, s56, %d' % (FF_WD2 - FF_WD))
    a('s_add_u32 s61, s61, s64')
    a('s_add_u32 m0, s61, %d' % FF_H)
    a(f'buffer_load_dwordx4 v5, s[{WS}:{WS+3}], s59 offen lds')
    a('s_add_u32 m0, m0, 1024')
    a(f'buffer_load_dwordx4 v5, s[{WS}:{WS+3}], s60 offen lds')
    a('v_and_b32 v4, 15, v2')
    a('v_lshrrev_b32 v5, 4, v2')
    a('v_lshrrev_b32 v6, 2, v4')
    a('v_and_b32 v7, 3, v4')
    a('v_lshrrev_b32 v13, 1, v5')
    a('v_and_b32 v5, 1, v5')
    a('v_lshl_add_u32 v14, v13, 2, v6')
    a('v_lshlrev_b32 v14, 7, v14')
    a('v_lshl_add_u32 v14, v5, 5, v14')
    a('v_lshl_add_u32 v14, v7, 3, v14')
    a('s_lshl_b32 s60, s57, 6')
    a('s_add_u32 s59, s64, s60')
    a('s_add_u32 s59, s59, %d' % FF_H)
    a('v_add_u32 v14, s59, v14')
    a('v_and_b32 v15, 31, v2')
    a('v_lshlrev_b32 v15, 10, v15')
    a('v_lshl_add_u32 v15, v13, 4, v15')
    a('s_lshl_b32 s62, s48, 16')
    a('s_lshl_b32 s60, s57, 15')
    a('s_add_u32 s62, s62, s60')
    a('s_lshl_b32 s60, s49, 7')
    a('s_add_u32 s62, s62, s60')
    a('s_lshl_b32 s60, s56, 6')
    a('s_add_u32 s62, s62, s60')
    a('s_mov_b32 s63, 0xffff0000')
    a('s_lshl_b32 s59, s48, 7')
    a('s_lshl_b32 s60, s20, 5')
    a('s_add_u32 s59, s59, s60')
    a('s_add_u32 s59, s59, %d' % WS_GF)
    a('v_and_b32 v4, 7, v2')
    a('v_lshlrev_b32 v4, 2, v4')
    a('s_mov_b32 s60, 0')
    stamp(a, 3, VS)
    a('ff_poll:')
    a(f'buffer_load_dword v5, v4, s[{WS}:{WS+3}], s59 offen sc1')
    a('s_add_u32 s60, s60, 1')
    a('s_waitcnt vmcnt(0)')
    a('v_cmp_eq_u32 vcc, 0, v5')
    a('s_cbranch_vccz ff_ready')
    a('s_cmp_lt_u32 s60, 0x40000')
    a('s_sleep 2')
    a('s_cbranch_scc1 ff_poll')
    a('ff_ready:')
    stamp(a, 4, VS)
    for p in (1, 2, 3):
        a(f's_xor_b32 s33, s20, {p}')
        a('s_mul_i32 s33, s33, 12288')
        a(f'v_add_u32 v{3+p}, s33, v3')
    a('s_mul_i32 s33, s20, 12288')
    a('v_add_u32 v7, s33, v3')
    a('s_add_u32 s41, s50, s53') if False else None
    a('s_add_u32 s61, s50, s53')
    act_next = 's_add_u32 s53, s53, 1024\ns_cmp_eq_u32 s53, 28672\ns_cselect_b32 s53, 0, s53\ns_add_u32 s61, s50, s53'
    free = [80, 88, 96, 104]
    areg = {}
    order = []
    q = DsQ(a)
    nact = 0; nwl = RK
    DA = 6
    def issue(k_now):
        nonlocal nact, nwl
        while True:
            if nwl < 28 and nwl <= k_now + (3 if nwl < RK + LK else DA) and free and nwl <= nact:
                r = free.pop(0); wreg[nwl] = r
                if nwl < RK + LK:
                    lo = 2048 * ((nwl - RK) % 5) + (FF_WD2 - FF_WD) * ((nwl - RK) // 5)
                    q.op(f'ds_read_b128 {Q(r)}, v12 offset:{lo}', nwl)
                    q.op(f'ds_read_b128 {Q(r+4)}, v12 offset:{lo+1024}', nwl)
                else:
                    a(f'buffer_load_dwordx4 {Q(r)}, v8, s[{WS}:{WS+3}], s55 offen')
                    a(f'buffer_load_dwordx4 {Q(r+4)}, v9, s[{WS}:{WS+3}], s55 offen')
                    a(wd_next)
                    order.extend([nwl] * 2)
                nwl += 1
            elif nact < 28 and nact <= k_now + DA and free:
                r = free.pop(0); areg[nact] = r
                a(f'buffer_load_dwordx4 {Q(r)}, v10, s[{WS}:{WS+3}], s61 offen{SC}')
                a(f'buffer_load_dwordx4 {Q(r+4)}, v11, s[{WS}:{WS+3}], s61 offen{SC}')
                a(act_next)
                order.extend([nact] * 2)
                nact += 1
            else:
                break
    issue(0)
    RESR = None
    for k in range(28):
        last = max(i for i, o in enumerate(order) if o == k)
        a(f's_waitcnt vmcnt({len(order) - 1 - last})')
        if RK <= k < RK + LK: q.wait(k)
        for p in (3, 2, 1, 0):
            px, py = p >> 1, p & 1
            c = f'v[{ACC+16*p}:{ACC+16*p+15}]'
            a(f'v_mfma_f32_32x32x16_bf16 {c}, {Q(wreg[k]+4*px)}, {Q(areg[k]+4*py)}, {"0" if k == 0 else c}')
        free += [wreg[k], areg[k]]
        issue(k + 1)
        if k == 25:
            a('s_barrier')
            RESR = free.pop(0)
            for x in range(4):
                q.op(f'ds_read_b64_tr_b16 {P(RESR+2*x)}, v14 offset:{1024*x}', 'res')
    stamp(a, 5, VS)
    for p in (3, 2, 1):
        for j in range(4):
            q.op(f'ds_write_b128 v{3+p}, {Q(ACC+16*p+4*j)} offset:{FF_RED+(p-1)*4096+1024*j}', 'w')
    R = 224 if 224 != RESR and 232 != RESR else 192
    assert RESR not in (R, R + 8)
    q.wait('res')
    for x in range(4):
        a(f'v_lshlrev_b32 v{R+4*x}, 16, v{RESR+2*x}')
        a(f'v_and_b32 v{R+4*x+1}, s63, v{RESR+2*x}')
        a(f'v_lshlrev_b32 v{R+4*x+2}, 16, v{RESR+2*x+1}')
        a(f'v_and_b32 v{R+4*x+3}, s63, v{RESR+2*x+1}')
    for r in range(0, 16, 2):
        a(f'v_pk_add_f32 {P(R+r)}, {P(R+r)}, {P(ACC+r)}')
    a('s_waitcnt lgkmcnt(0)')
    a('s_barrier')
    stamp(a, 6, VS)
    for j in range(4):
        for p in range(3):
            a(f'ds_read_b128 {Q(32+16*p+4*j)}, v7 offset:{FF_RED+4096*p+1024*j}')
    for j in range(4):
        a(f's_waitcnt lgkmcnt({9-3*j})')
        for r in range(4*j, 4*j+4, 2):
            a(f'v_pk_add_f32 {P(R+r)}, {P(R+r)}, {P(32+r)}')
            a(f'v_pk_add_f32 {P(48+r)}, {P(48+r)}, {P(64+r)}')
        for r in range(4*j, 4*j+4, 2):
            a(f'v_pk_add_f32 {P(R+r)}, {P(R+r)}, {P(48+r)}')
        a(f'v_cvt_pk_bf16_f32 v{100+2*j}, v{R+4*j}, v{R+4*j+1}')
        a(f'v_cvt_pk_bf16_f32 v{101+2*j}, v{R+4*j+2}, v{R+4*j+3}')
        if j & 1:
            p = j >> 1
            a(f'v_permlane32_swap_b32 v{100+4*p}, v{102+4*p}')
            a(f'v_permlane32_swap_b32 v{101+4*p}, v{103+4*p}')
            a(f'buffer_store_dwordx4 {Q(100+4*p)}, v15, s[{OUT}:{OUT+3}], s62 offen offset:{32*p}')
    stamp(a, 7, VS)
    stamp_end(a, 8, VS, 2, 110)
    a('ff_end:')
    a('s_endpgm')
    return name, 256, 102, None

class DsQ:
    def __init__(self, a):
        self.a = a; self.q = []; self.done = 0
    def op(self, txt, tag=None):
        self.a(txt); self.q.append(tag)
    def wait(self, *tags):
        idx = max(len(self.q) - 1 - self.q[::-1].index(t) for t in tags) + 1
        if idx > self.done:
            n = min(len(self.q) - idx, 15)
            self.a(f's_waitcnt lgkmcnt({n})')
            self.done = len(self.q) - n

def main(out):
    a = Asm()
    ks = []
    launches = [('prep_kernel', 256, 512, 0), ('conv_kernel', 256, 512, CV_LDS), ('ffn_kernel', 256, 512, FF_LDS)]
    gens = [gen_prep, gen_conv, gen_ffn]
    if TLA >= 0:
        launches.append(('tl_kernel', 1, 64, 0)); gens.append(gen_tl)
    txt = HEADER
    for n, g, b, l in launches:
        txt += f'; @launch kernel={n} grid=({g},1,1) block=({b},1,1) lds={l}\n'
    txt += '.amdgcn_target "amdgcn-amd-amdhsa--gfx950"\n.text\n'
    for g in gens:
        ks.append(g(a))
    txt += a.text() + 'code_end:\n'
    txt += '.section .rodata,"a"\n'
    for n, v, s, acc in ks:
        txt += kernel_desc(n, v, s, acc)
    open(out, 'w').write(txt)

if __name__ == '__main__':
    for arg in sys.argv[2:]:
        if arg == 'stamp': STAMP = True
        elif '=' in arg:
            k, v = arg.split('='); globals()[k] = int(v, 0)
    main(sys.argv[1] if len(sys.argv) > 1 else 'sequential_preLN__ssm_conv_h3__swiglu_ffn__prompt.s')
```

```python
import sys
sys.path.insert(0, 'dev')
from asmlib import *

MiB = 1 << 20
CS = 4224
CHB = 512 * CS
import os
WSB = int(os.environ.get('WSB', '0')) * MiB
WS_XR0 = WSB
XBS = 8192 + 128
WS_XB = WSB + CHB
WS_ST = WS_XB + 256 * XBS
WS_GF = WS_ST + 32768
WS_HT = WS_GF + 131072
WS_W1F = WS_HT + 2 * MiB
W1F_NT = 232 * 1024
PF_FILT = 1
PF_CODE = 1
SC_HT = 0
SC_FMT = 1
PF_WD = 1
ROT1 = 0
ROT2 = 1
WS_WDF = WS_W1F + 16 * W1F_NT
WS_ACT = WS_WDF + 1792 * 1024
WS_END = WS_ACT + 7 * MiB
WS_DBG = 32 * MiB

HEADER = open('sequential_preLN__ssm_conv_h3__swiglu_ffn__prompt.s.ref').read().split('; Override launch')[0]

def srd(a, d, base, size, off=None, offreg=None):
    if off:
        a(f's_add_u32 s{d}, s{base}, {hex(off)}')
        a(f's_addc_u32 s{d+1}, s{base+1}, 0')
        if offreg is not None:
            a(f's_add_u32 s{d}, s{d}, s{offreg}')
            a(f's_addc_u32 s{d+1}, s{d+1}, 0')
    elif offreg is not None:
        a(f's_add_u32 s{d}, s{base}, s{offreg}')
        a(f's_addc_u32 s{d+1}, s{base+1}, 0')
    else:
        a(f's_mov_b32 s{d}, s{base}')
        a(f's_mov_b32 s{d+1}, s{base+1}')
    a(f's_mov_b32 s{d+2}, {hex(size)}')
    a(f's_mov_b32 s{d+3}, 0x20000')

STAMP = False
def stamp(a, i, vst):
    if not STAMP: return
    a('s_memtime s[98:99]')
    a('s_waitcnt lgkmcnt(0)')
    a(f'v_writelane_b32 v{vst}, s98, {i}')
def stamp_rt(a, i, vst):
    if not STAMP: return
    a('s_memrealtime s[98:99]')
    a('s_waitcnt lgkmcnt(0)')
    a(f'v_writelane_b32 v{vst}, s98, {i}')
def stamp_begin(a, vst):
    if not STAMP: return
    a(f'v_mov_b32 v{vst}, 0')
    stamp_rt(a, 15, vst)
    stamp(a, 0, vst)
def stamp_end(a, i, vst, kidx, tmp):
    if not STAMP: return
    a('s_mov_b64 exec, -1')
    a('s_waitcnt vmcnt(0)')
    stamp(a, i, vst)
    stamp_rt(a, 14, vst)
    a('s_load_dwordx2 s[96:97], s[0:1], 96')
    a('s_waitcnt lgkmcnt(0)')
    srd(a, 92, 96, 4 << 20, WS_DBG)
    a(f'v_lshrrev_b32 v{tmp}, 6, v0')
    a(f'v_lshlrev_b32 v{tmp}, 6, v{tmp}')
    a(f'v_and_b32 v{tmp+1}, 63, v0')
    a(f'v_lshl_add_u32 v{tmp}, v{tmp+1}, 2, v{tmp}')
    a('s_lshl_b32 s98, s2, 9')
    a(f's_add_u32 s98, s98, {kidx*262144}')
    a('s_mov_b32 exec_lo, 0xffff')
    a('s_mov_b32 exec_hi, 0')
    a(f'buffer_store_dword v{vst}, v{tmp}, s[92:95], s98 offen')

TLA = -1
TLB = -1
TLM = 4
_tl_idx = [0]
def tl_mark(a):
    if TLA < 0: return
    k = _tl_idx[0]; _tl_idx[0] += 1
    L = a.newlabel('tl')
    a('s_cmp_lg_u32 s2, 0')
    a(f's_cbranch_scc1 {L}')
    a('s_memrealtime s[98:99]')
    a('s_load_dwordx2 s[96:97], s[0:1], 96')
    a('s_waitcnt lgkmcnt(0)')
    srd(a, 92, 96, 4096, WS_DBG)
    a('v_mov_b32 v1, s98')
    a('v_mov_b32 v2, 0')
    a(f'buffer_store_dword v1, v2, s[92:95], 0 offen offset:{4*k}')
    a(f'{L}:')
def gen_tl(a):
    name = 'tl_kernel'
    a.raw(f'.globl {name}'); a.raw('.p2align 8'); a.raw(f'.type {name},@function'); a.raw(f'{name}:')
    a.flush_hist()
    a('s_cmp_lg_u32 s2, 0')
    a('s_cbranch_scc1 tl_end')
    a('s_memrealtime s[20:21]')
    a('s_load_dwordx2 s[4:5], s[0:1], 96')
    a('s_waitcnt lgkmcnt(0)')
    srd(a, 8, 4, 4096, WS_DBG)
    a('v_mov_b32 v2, 0')
    a('buffer_load_dwordx4 v[4:7], v2, s[8:11], 0 offen')
    a('s_waitcnt vmcnt(0)')
    a('v_mov_b32 v%d, s20' % (4 + _tl_idx[0]))
    a(f'v_sub_u32 v9, v{4+TLB}, v{4+TLA}')
    a('v_readfirstlane_b32 s22, v9')
    a('s_min_u32 s22, s22, 5000')
    a(f's_mul_i32 s22, s22, {TLM}')
    a('tl_spin:')
    a('s_memrealtime s[24:25]')
    a('s_waitcnt lgkmcnt(0)')
    a('s_sub_u32 s24, s24, s20')
    a('s_cmp_lt_u32 s24, s22')
    a('s_cbranch_scc1 tl_spin')
    a('tl_end:')
    a('s_endpgm')
    return name, 16, 32, None

def begin(a, name):
    a.raw(f'.globl {name}')
    a.raw('.p2align 8')
    a.raw(f'.type {name},@function')
    a.raw(f'{name}:')
    a.flush_hist()
    tl_mark(a)

def red32(a, v, t):
    a(f'v_add_f32_dpp v{v}, v{v}, v{v} quad_perm:[1,0,3,2] row_mask:0xf bank_mask:0xf')
    a(f'v_add_f32_dpp v{v}, v{v}, v{v} quad_perm:[2,3,0,1] row_mask:0xf bank_mask:0xf')
    a(f'v_add_f32_dpp v{v}, v{v}, v{v} row_half_mirror row_mask:0xf bank_mask:0xf')
    a(f'v_add_f32_dpp v{v}, v{v}, v{v} row_mirror row_mask:0xf bank_mask:0xf')
    a(f'v_mov_b32 v{t}, v{v}')
    a(f'v_permlane16_swap_b32 v{v}, v{t}')
    a(f'v_add_f32 v{v}, v{v}, v{t}')

def rne(a, d, s):
    a(f'v_cvt_pk_bf16_f32 v{d}, v{s}, v{s}')
    a(f'v_lshlrev_b32 v{d}, 16, v{d}')

def ln_sigma(a, var, rs):
    rne(a, var, var)
    a(f'v_add_f32 v{var}, 0x3727c5ac, v{var}')
    rne(a, var, var)
    a(f'v_sqrt_f32 v{var}, v{var}')
    rne(a, var, var)
    a(f'v_rcp_f32 v{rs}, v{var}')

def interleave(a, ms, fill, start=0):
    n = len(ms); k = 0
    for i, m in enumerate(ms):
        a(m)
        tgt = (len(fill) * (i + 1) + n - 1) // n
        while k < tgt:
            a(fill[k]); k += 1

P = lambda r: f'v[{r}:{r+1}]'
Q = lambda r: f'v[{r}:{r+3}]'

def gen_prep(a):
    name = 'prep_kernel'
    begin(a, name)
    VS = 39
    X, K, V, SH, O0, ST = 16, 20, 24, 28, 32, 40
    a('s_cmp_ge_u32 s2, 256')
    a('s_cbranch_scc1 prep_end')
    stamp_begin(a, VS)
    a('s_load_dwordx8 s[4:11], s[0:1], 0')
    a('s_load_dwordx2 s[12:13], s[0:1], 96')
    a('v_lshrrev_b32 v1, 8, v0')
    a('v_and_b32 v4, 31, v0')
    a('v_readfirstlane_b32 s53, v1')
    a('v_bfe_u32 v5, v0, 5, 3')
    a('s_and_b32 s14, s2, 7')
    a('s_lshr_b32 s15, s2, 3')
    a('s_mov_b32 s50, 0xffff0000')
    a('s_cmp_eq_u32 s53, 0')
    a('s_cbranch_scc0 prep_x')
    a('s_lshl_b32 s44, s15, 16')
    a('s_lshl_b32 s45, s14, 7')
    a('s_add_u32 s44, s44, s45')
    a('v_lshlrev_b32 v2, 13, v5')
    a('v_lshl_add_u32 v2, v4, 2, v2')
    a('v_add_u32 v2, s44, v2')
    a('v_add_u32 v3, 0x1000, v2')
    a('v_subrev_u32 v1, 0x1000, v2')
    a('s_lshl_b32 s48, s14, 9')
    a('v_lshlrev_b32 v6, 4, v4')
    a('v_add_u32 v6, s48, v6')
    a('s_waitcnt lgkmcnt(0)')
    stamp(a, 1, VS)
    srd(a, K, 6, 2 * MiB)
    KR, VR, SHR = 10, 22, 32
    for r in range(11):
        rr = r + 1
        a(f'buffer_load_dword v{KR+r}, v{1+rr//4}, s[{K}:{K+3}], 0 offen offset:{(rr%4)*1024}')
    srd(a, SH, 10, 4096)
    a(f'buffer_load_dwordx4 {Q(SHR)}, v6, s[{SH}:{SH+3}], 0 offen')
    srd(a, V, 8, 2 * MiB)
    for r in range(8):
        a(f'buffer_load_dword v{VR+r}, v{2+r//4}, s[{V}:{V+3}], 0 offen offset:{(r%4)*1024}')
    srd(a, O0, 12, CHB, WS_XR0)
    a('s_mov_b32 s47, %d' % CS)
    a('s_mul_i32 s45, s14, %d' % (64 * CS))
    a('s_lshl_b32 s46, s15, 7')
    a('v_mul_u32_u24 v8, %d, v4' % (2 * CS))
    a('s_sub_u32 s45, s45, s46')
    a('s_add_u32 s45, s45, 4080')
    a('v_lshlrev_b32 v9, 4, v5')
    a('v_sub_u32 v8, v8, v9')
    a('v_add_u32 v8, s45, v8')
    if PF_CODE:
        a('s_getpc_b64 s[54:55]')
        a('pf_here:')
        a('s_add_u32 s54, s54, conv_kernel-pf_here')
        a('s_addc_u32 s55, s55, 0')
        a('s_lshl_b32 s56, s15, 10')
        a('v_lshl_add_u32 v36, v5, 7, s56')
        a('v_min_u32 v36, code_end-conv_kernel-4, v36')
        a('v_mov_b32 v37, s55')
        a('v_add_co_u32 v36, vcc, s54, v36')
        a('v_addc_co_u32 v37, vcc, 0, v37, vcc')
        a('global_load_dword v38, v[36:37], off')
    KF, WP, VF, KV = 40, 64, 72, 92
    stamp(a, 2, VS)
    a('s_waitcnt vmcnt(%d)' % (9 + PF_CODE))
    stamp(a, 3, VS)
    for r in range(11):
        a(f'v_lshlrev_b32 v{KF+2*r}, 16, v{KR+r}')
        a(f'v_and_b32 v{KF+2*r+1}, s50, v{KR+r}')
    a('s_waitcnt vmcnt(%d)' % (8 + PF_CODE))
    for j in range(4):
        for c in range(2):
            src = SHR + 2 * c + j // 2
            if j % 2 == 0:
                a(f'v_lshlrev_b32 v{WP+2*j+c}, 16, v{src}')
            else:
                a(f'v_and_b32 v{WP+2*j+c}, s50, v{src}')
    for i in range(8):
        a(f'v_pk_mul_f32 {P(KV+2*i)}, {P(KF+2*i)}, {P(WP+6)}')
    for j in (2, 1, 0):
        for i in range(8):
            d = KV + 2 * i
            a(f'v_pk_fma_f32 {P(d)}, {P(KF+2*(i+3-j))}, {P(WP+2*j)}, {P(d)}')
    a('s_waitcnt vmcnt(%d)' % PF_CODE)
    stamp(a, 4, VS)
    for r in range(8):
        a(f'v_lshlrev_b32 v{VF+2*r}, 16, v{VR+r}')
        a(f'v_and_b32 v{VF+2*r+1}, s50, v{VR+r}')
    for i in range(8):
        a(f'v_pk_mul_f32 {P(KV+2*i)}, {P(KV+2*i)}, {P(VF+2*i)}')
    O = 112
    for c in range(2):
        for w in range(4):
            a(f'v_cvt_pk_bf16_f32 v{O+4*c+w}, v{KV+2*(7-2*w)+c}, v{KV+2*(6-2*w)+c}')
        a(f'buffer_store_dwordx4 {Q(O+4*c)}, v8, s[{O0}:{O0+3}], {"s47" if c else "0"} offen')
    stamp(a, 5, VS)
    stamp_end(a, 6, VS, 0, 110)
    a('s_endpgm')
    a('prep_x:')
    a.flush_hist()
    a('s_load_dwordx2 s[54:55], s[0:1], 32')
    a('s_lshl_b32 s48, s2, 13')
    a('s_add_u32 s49, s48, 4096')
    a('v_lshlrev_b32 v7, 10, v5')
    a('v_lshl_add_u32 v7, v4, 4, v7')
    a('v_and_b32 v2, 255, v0')
    a('v_lshlrev_b32 v3, 2, v2')
    a('v_lshlrev_b32 v8, 5, v2')
    a('s_mul_i32 s45, s2, %d' % XBS)
    a('s_lshl_b32 s46, s2, 5')
    a('v_lshlrev_b32 v9, 2, v5')
    a('v_add_u32 v9, s46, v9')
    a('s_mov_b32 s51, 0x05040100')
    a('s_mov_b32 s52, 0x07060302')
    a('s_waitcnt lgkmcnt(0)')
    stamp(a, 1, VS)
    srd(a, X, 4, 2 * MiB)
    XR, XS = 10, 20
    a(f'buffer_load_dwordx4 {Q(XS)}, v7, s[{X}:{X+3}], s48 offen')
    a(f'buffer_load_dwordx4 {Q(XS+4)}, v7, s[{X}:{X+3}], s48 offen offset:512')
    for r in range(8):
        a(f'buffer_load_dword v{XR+r}, v3, s[{X}:{X+3}], s{48+r//4} offen offset:{(r%4)*1024}')
    srd(a, O0, 12, 256 * XBS, WS_XB)
    srd(a, ST, 12, 32768 + 131072, WS_ST)
    a('s_mov_b32 s48, 0x2000')
    if PF_FILT:
        srd(a, K, 54, 2 * MiB)
        a('s_lshl_b32 s58, s14, 5')
        a('s_add_u32 s58, s58, s15')
        a('s_lshl_b32 s58, s58, 13')
        a('v_lshrrev_b32 v30, 2, v2')
        a('v_lshlrev_b32 v30, 7, v30')
    stamp(a, 2, VS)
    a('s_waitcnt vmcnt(8)')
    stamp(a, 3, VS)
    E = 60
    for r in range(8):
        a(f'v_lshlrev_b32 v{E+2*r}, 16, v{XS+r}')
        a(f'v_and_b32 v{E+2*r+1}, s50, v{XS+r}')
    S = 80
    a(f'v_pk_add_f32 {P(S)}, {P(E)}, {P(E+2)}')
    a(f'v_pk_add_f32 {P(S+2)}, {P(E+4)}, {P(E+6)}')
    a(f'v_pk_add_f32 {P(S+4)}, {P(E+8)}, {P(E+10)}')
    a(f'v_pk_add_f32 {P(S+6)}, {P(E+12)}, {P(E+14)}')
    a(f'v_pk_add_f32 {P(S)}, {P(S)}, {P(S+2)}')
    a(f'v_pk_add_f32 {P(S+4)}, {P(S+4)}, {P(S+6)}')
    a(f'v_pk_add_f32 {P(S)}, {P(S)}, {P(S+4)}')
    a(f'v_add_f32 v{S}, v{S}, v{S+1}')
    red32(a, S, S + 1)
    a(f'v_mul_f32 v{S}, 0xbb000000, v{S}')
    a(f'v_mov_b32 v{S+1}, v{S}')
    a('s_waitcnt vmcnt(0)')
    if PF_FILT:
        a(f'buffer_load_dword v31, v30, s[{K}:{K+3}], s58 offen')
    O2 = 100
    for c in range(2):
        for w in range(4):
            a(f'v_perm_b32 v{O2+4*c+w}, v{XR+2*w+1}, v{XR+2*w}, s{51+c}')
        a(f'buffer_store_dwordx4 {Q(O2+4*c)}, v8, s[{O0}:{O0+3}], s45 offen offset:{16*c}')
    for r in range(8):
        a(f'v_pk_add_f32 {P(E+2*r)}, {P(E+2*r)}, {P(S)}')
    a(f'v_pk_mul_f32 {P(S+2)}, {P(E)}, {P(E)}')
    a(f'v_pk_mul_f32 {P(S+4)}, {P(E+2)}, {P(E+2)}')
    for r in range(2, 8):
        d = S + 2 + 2 * (r & 1)
        a(f'v_pk_fma_f32 {P(d)}, {P(E+2*r)}, {P(E+2*r)}, {P(d)}')
    a(f'v_pk_add_f32 {P(S+2)}, {P(S+2)}, {P(S+4)}')
    a(f'v_add_f32 v{S+2}, v{S+2}, v{S+3}')
    red32(a, S + 2, S + 3)
    a(f'v_mul_f32 v{S+2}, 0x3b000000, v{S+2}')
    rne(a, S, S)
    ln_sigma(a, S + 2, S + 4)
    a(f'v_mul_f32 v{S+5}, v{S}, v{S+4}')
    for r in range(4): a(f'v_mov_b32 v{32+r}, 0')
    a('v_lshrrev_b32 v36, 3, v9')
    a('v_lshlrev_b32 v36, 7, v36')
    a('s_mov_b32 s61, 0x8000')
    a('s_mov_b32 exec_lo, 1')
    a('s_mov_b32 exec_hi, 1')
    a(f'buffer_store_dwordx4 v[32:35], v36, s[{ST}:{ST+3}], s61 offen')
    a(f'buffer_store_dword v{S+4}, v9, s[{ST}:{ST+3}], 0 offen')
    a(f'buffer_store_dword v{S+5}, v9, s[{ST}:{ST+3}], s48 offen')
    stamp(a, 4, VS)
    stamp_end(a, 5, VS, 0, 110)
    a('prep_end:')
    a('s_endpgm')
    return name, 128, 102, None

CV_XC = 0
CV_E = 2 * 4 * 4640
CV_RED = CV_E + 2 * 8448
CV_AUX = CV_RED + 16384
CV_FM = CV_AUX + 24576
CV_FLG = CV_FM + 24576
CV_LDS = CV_FLG + 2304
NFMT = 224
NOHELP = 0

def lds_spin(a, vf, vaddr, off, cnt, cond='ne'):
    L = a.newlabel('sp'); D = a.newlabel('spd')
    a(f'{L}:')
    a(f'ds_read_b32 v{vf}, v{vaddr} offset:{off}')
    a(f's_add_u32 s{cnt}, s{cnt}, 1')
    a(f's_cmp_gt_u32 s{cnt}, 0x100000')
    a(f's_cbranch_scc1 {D}')
    a('s_waitcnt lgkmcnt(0)')
    a(f'v_cmp_{cond}_u32 vcc, 0, v{vf}')
    a(f's_cbranch_vccnz {L}')
    a(f'{D}:')

def gen_conv(a):
    name = 'conv_kernel'
    begin(a, name)
    VS = 250
    H, XRS, HT = 20, 24, 32
    a('s_cmp_ge_u32 s2, 256')
    a('s_cbranch_scc1 conv_end')
    stamp_begin(a, VS)
    a('s_load_dwordx4 s[4:7], s[0:1], 32')
    a('s_load_dwordx2 s[14:15], s[0:1], 96')
    a('v_lshrrev_b32 v1, 6, v0')
    a('v_and_b32 v2, 63, v0')
    a('v_readfirstlane_b32 s60, v1')
    a('s_and_b32 s16, s2, 7')
    a('s_lshr_b32 s17, s2, 3')
    a('s_lshl_b32 s16, s16, 5')
    a('s_add_u32 s16, s16, s17')
    a('v_lshlrev_b32 v5, 3, v2')
    a('v_lshlrev_b32 v6, 4, v2')
    a('s_mov_b32 s93, 0x7f000000')
    a('s_mov_b32 s94, 0')
    a('s_bfe_u32 s61, s60, 0x10001')
    a('s_and_b32 s62, s60, 1')
    a('s_lshl_b32 s63, s16, 1')
    a('s_add_u32 s63, s63, s61')
    a('s_mul_i32 s70, s61, 18560')
    a('s_mul_i32 s73, s63, %d' % CS)
    def odd_load():
        for i in range(2):
            a(f'buffer_load_dwordx4 {Q(16+16*i)}, v6, s[{XRS}:{XRS+3}], s69 offen offset:{1024*i}')
            a(f'buffer_load_dwordx2 {P(20+16*i)}, v6, s[{XRS}:{XRS+3}], s69 offen offset:{1024*i+16}')
    def odd_build(i):
        b = 16 * i
        for w in range(4): a(f'v_alignbit_b32 v{b+22+w}, v{b+17+w}, v{b+16+w}, 16')
        for w in range(4): a(f'v_alignbit_b32 v{b+26+w}, v{b+18+w}, v{b+17+w}, 16')
        a(f'ds_write_b128 v56, {Q(b+22)} offset:{9280+1024*i}')
        a(f'ds_write_b128 v56, {Q(b+26)} offset:{1024*i}')
    a('s_cmp_ge_u32 s60, 4')
    a('s_cbranch_scc1 cv_help')
    a('s_lshl_b32 s64, s63, 12')
    a('s_lshl_b32 s65, s16, 2')
    a('s_mul_i32 s66, s61, 8448')
    a('s_add_u32 s66, s66, %d' % CV_E)
    a('s_mul_i32 s71, s62, 9280')
    a('s_add_u32 s71, s71, s70')
    a('s_add_u32 s71, s71, 4640')
    a('s_xor_b32 s77, s62, 1')
    a('s_lshl_b32 s72, s77, 2')
    a('s_lshl_b32 s69, s62, 11')
    a('s_lshl_b32 s75, s62, 12')
    a('v_lshrrev_b32 v7, 2, v2')
    a('v_and_b32 v8, 3, v2')
    a('v_lshlrev_b32 v7, 3, v7')
    a('v_lshl_add_u32 v7, v8, 2, v7')
    a('v_add_u32 v7, 0xffffff80, v7')
    a('s_add_u32 s68, s66, s75')
    a('s_mov_b32 m0, s71')
    a('s_waitcnt lgkmcnt(0)')
    stamp(a, 1, VS)
    srd(a, XRS, 14, 4096, WS_XR0, offreg=73)
    odd_load()
    for i in range(4):
        a(f'buffer_load_dwordx4 v6, s[{XRS}:{XRS+3}], s72 offen offset:{1024*i} lds')
    a('s_add_u32 m0, s68, 256')
    srd(a, H, 4, 4096, offreg=64)
    for i in range(4):
        a(f'buffer_load_dwordx4 v5, s[{H}:{H+3}], s69 offen offset:{512*i} lds')
        a('s_add_u32 m0, m0, 512' if i < 3 else 's_mov_b32 m0, s66')
    a('s_load_dword s67, s[6:7], s65')
    a(f'buffer_load_dword v7, s[{H}:{H+3}], 0 offen lds')
    a('s_barrier')
    a('s_add_u32 s74, s69, s70')
    a('v_add_u32 v56, s74, v6')
    srd(a, HT, 14, 2 * MiB, WS_HT)
    for par, sh in ((0, 62), (1, 77)):
        a(f's_lshl_b32 s{40+par}, s{sh}, 9')
        a(f's_lshl_b32 s{50+par}, s{sh}, 18')
    a('s_lshl_b32 s79, s63, 8')
    a('s_add_u32 s50, s50, s79')
    a('s_add_u32 s51, s51, s79')
    a('s_add_u32 s51, s51, 0x80000')
    a('s_add_u32 s52, s50, 0x100000')
    a('s_add_u32 s53, s51, 0x100000')
    a('v_and_b32 v12, 31, v2')
    a('v_lshlrev_b32 v12, 3, v12')
    a('s_and_b32 s74, s63, 3')
    a('s_lshl_b32 s74, s74, 6')
    a('v_xor_b32 v12, s74, v12')
    a('v_lshrrev_b32 v13, 5, v2')
    a('v_lshl_add_u32 v12, v13, 17, v12')
    XA, HA = 224, 225
    a('v_and_b32 v3, 15, v2')
    a('v_lshrrev_b32 v4, 4, v2')
    a('v_lshrrev_b32 v9, 2, v3')
    a('v_mul_u32_u24 v10, 4640, v8')
    a('v_lshlrev_b32 v9, 3, v9')
    a('v_sub_u32 v9, v4, v9')
    a('v_add_u32 v9, 24, v9')
    a(f'v_lshl_add_u32 v{XA}, v9, 4, v10')
    a('s_lshl_b32 s88, s62, 8')
    a('s_add_u32 s88, s88, s70')
    a(f'v_add_u32 v{XA}, s88, v{XA}')
    a(f'v_lshl_add_u32 v{HA}, v4, 1, v3')
    a(f'v_lshlrev_b32 v{HA}, 4, v{HA}')
    a('s_lshl_b32 s89, s62, 9')
    a('s_add_u32 s89, s89, s66')
    a('s_add_u32 s89, s89, 16')
    a(f'v_add_u32 v{HA}, s89, v{HA}')
    a('s_lshl_b32 s88, s61, 4')
    a('s_add_u32 s88, s88, 16384')
    a('v_lshrrev_b32 v9, 1, v2')
    a('v_lshlrev_b32 v9, 5, v9')
    a('v_and_b32 v15, 1, v2')
    a('v_lshl_add_u32 v9, v15, 3, v9')
    for par in range(2):
        a(f's_sub_u32 s89, s70, s{40+par}')
        a('s_add_u32 s89, s89, %d' % (3 * 4640 + 4088 - 3072))
        a(f'v_sub_u32 v{10+par}, s89, v5')
        a(f's_lshl_b32 s89, s{40+par}, 1')
        a('s_add_u32 s89, s89, %d' % CV_AUX)
        a(f'v_add_u32 v{60+par}, s89, v6')
        a('s_add_u32 s89, s89, s88')
        a(f'v_add_u32 v{13+par}, s89, v9')
    a('s_lshl_b32 s90, s60, 12')
    a('s_add_u32 s91, s90, %d' % CV_RED)
    a('s_xor_b32 s90, s90, 0x1000')
    a('s_add_u32 s90, s90, %d' % CV_RED)
    a('v_add_u32 v62, s91, v6')
    a('v_add_u32 v63, s90, v6')
    a('s_mov_b32 s92, 0xffff0000')
    a('v_lshlrev_b32 v15, 2, v8')
    a('v_add_u32 v15, %d, v15' % (CV_FLG + 16))
    a('s_lshl_b32 s89, s60, 8')
    a('s_add_u32 s89, s89, %d' % (CV_FLG + 256))
    a('v_lshl_add_u32 v3, v2, 2, s89')
    a('s_xor_b32 s89, s60, 1')
    a('s_lshl_b32 s89, s89, 8')
    a('s_add_u32 s89, s89, %d' % (CV_FLG + 256))
    a('v_lshl_add_u32 v4, v2, 2, s89')
    a('v_mov_b32 v7, 0')
    stamp(a, 2, VS)
    a('s_waitcnt vmcnt(11)')
    stamp(a, 7, VS)
    odd_build(0)
    a('s_waitcnt vmcnt(9)')
    odd_build(1)
    stamp(a, 8, VS)
    a('s_waitcnt vmcnt(5)')
    stamp(a, 9, VS)
    a('s_waitcnt vmcnt(0)')
    stamp(a, 10, VS)
    a('ds_write_b32 v3, v7 offset:1024')
    lds_spin(a, 1, 4, 1024, 94)
    stamp(a, 3, VS)
    FH = [64, 128]; FX = [96, 160]; ACC = 192
    XV, RS, MR, XF = 16, 24, 40, 232
    kvp = [56, 58, 226, 228]
    def rdH(s, ri, aa): return f'ds_read_b128 {Q(FH[s]+4*aa)}, v{HA} offset:{128*(8*aa+ri)}'
    def rdX(s, ri, bb): return f'ds_read_b128 {Q(FX[s]+4*bb)}, v{XA} offset:{64*(56-8*bb+ri)}'
    inited = [False] * 8
    def mf(s, aa, bb):
        nb = aa + bb
        c = Q(ACC + 4 * nb)
        src = c if inited[nb] else '0'
        inited[nb] = True
        return f'v_mfma_f32_16x16x32_bf16 {c}, {Q(FX[s]+4*bb)}, {Q(FH[s]+4*aa)}, {src}'
    pairs = sorted([(aa, bb) for aa in range(8) for bb in range(8) if aa + bb <= 7], key=lambda p: (max(p), p))
    q = DsQ(a)
    todo = []
    for ri in range(4):
        for x in range(8):
            todo.append((rdH(ri & 1, ri, x), ('H', ri, x)))
            todo.append((rdX(ri & 1, ri, x), ('X', ri, x)))
    for _ in range(12):
        q.op(*todo.pop(0))
    a('s_lshl_b32 s90, s61, 4')
    a('s_lshr_b32 s67, s67, s90')
    a('s_lshl_b32 s67, s67, 16')
    aux = []
    for t in range(4):
        par = t & 1
        aux.append(f'ds_read_b64 {P(kvp[t])}, v{10+par} offset:{1024*(3-t)}')
        aux.append(f'ds_read_b64 {P(XV+2*t)}, v{13+par} offset:{2048*t}')
        aux.append(f'ds_read_b128 {Q(RS+4*t)}, v{60+par} offset:{2048*t}')
        aux.append(f'ds_read_b128 {Q(MR+4*t)}, v{60+par} offset:{2048*t+8192}')
    pre = []
    for t in range(4):
        pre += [f'v_lshlrev_b32 v{XF+4*t}, 16, v{XV+2*t}', f'v_and_b32 v{XF+4*t+1}, s92, v{XV+2*t}',
                f'v_lshlrev_b32 v{XF+4*t+2}, 16, v{XV+2*t+1}', f'v_and_b32 v{XF+4*t+3}, s92, v{XV+2*t+1}']
    pre += [f'v_fma_f32 v{RS+r}, v{XF+r}, v{RS+r}, v{MR+r}' for r in range(16)]
    for t in range(4):
        pre += [f'v_and_b32 v{MR+4*t}, s92, v{kvp[t]+1}', f'v_lshlrev_b32 v{MR+4*t+1}, 16, v{kvp[t]+1}',
                f'v_and_b32 v{MR+4*t+2}, s92, v{kvp[t]}', f'v_lshlrev_b32 v{MR+4*t+3}, 16, v{kvp[t]}']
    pre += [f'v_mul_f32 v{MR+r}, v{MR+r}, v{RS+r}' for r in range(16)]
    pre += [f'v_fmac_f32 v{XF+r}, s67, v{MR+r}' for r in range(16)]
    for ri in range(3):
        s = ri & 1
        for n, (aa, bb) in enumerate(pairs):
            q.wait(('H', ri, aa), ('X', ri, bb))
            a(mf(s, aa, bb))
            used = 0
            if todo and todo[0][1][1] <= ri + 1 and (n % 2 == 0 or todo[0][1][1] == ri):
                q.op(*todo.pop(0)); used = 1
            if ri == 0 and n == 31: q.op('ds_read_b32 v1, v15', 'fb')
            if ri == 1 and n == 1:
                q.wait('fb')
                a('v_cmp_ne_u32 vcc, 0, v1')
                a('s_cbranch_vccnz cv_fbspin')
                a('cv_fbgo:')
            if ri == 1 and n % 2 == 1 and n >= 3 and aux: q.op(aux.pop(0), 'aux')
            if ri == 2:
                if n == 0: q.wait('aux')
                for _ in range(2 - used):
                    if pre: a(pre.pop(0))
    assert not todo and not aux, (len(todo), len(aux))
    a('s_cmp_eq_u32 s62, 0')
    a('s_waitcnt lgkmcnt(0)')
    a('s_cbranch_scc0 conv_h1')
    PR = 64
    hist = list(a.hist)
    for half in range(2):
        if half:
            a('conv_h1:'); a.hist = list(hist)
        rest = list(pre)
        keep = [2 * t + ((t & 1) ^ half) for t in range(4)]
        send = [2 * t + ((t & 1) ^ half ^ 1) for t in range(4)]
        ps = sorted([p for p in pairs if sum(p) in send], key=lambda p: sum(p))
        pk = sorted([p for p in pairs if sum(p) in keep], key=lambda p: sum(p))
        seq = ps + pk
        lastidx = {nb: max(i for i, p in enumerate(seq) if sum(p) == nb) for nb in range(8)}
        wr = {lastidx[nb] + 3: t for t, nb in enumerate(send)}
        for i, (aa, bb) in enumerate(seq):
            a(mf(1, aa, bb))
            for _ in range(2):
                if rest: a(rest.pop(0))
            if i in wr:
                t = wr[i]
                a(f'ds_write_b128 v62, {Q(ACC+4*send[t])} offset:{1024*t}')
            if i == 21: a('ds_write_b32 v3, v7')
            if i == 25: a('ds_read_b32 v1, v4')
            if i == 30:
                a('s_waitcnt lgkmcnt(0)')
                a('v_cmp_ne_u32 vcc, 0, v1')
                a(f's_cbranch_vccnz cv_rspin{half}')
                a(f'cv_rgo{half}:')
                for t in range(2): a(f'ds_read_b128 {Q(PR+4*t)}, v63 offset:{1024*t}')
            if i == 31:
                for t in range(2, 4): a(f'ds_read_b128 {Q(PR+4*t)}, v63 offset:{1024*t}')
            if i >= 32:
                t = i - 32
                if t < 3:
                    for r in range(4):
                        a(f'v_fmac_f32 v{XF+4*t+r}, v{RS+4*t+r}, v{ACC+4*keep[t]+r}')
        assert not rest
        stamp(a, 4, VS)
        for t in range(4):
            a(f's_waitcnt lgkmcnt({3-t})')
            for r in range(4):
                a(f'v_fmac_f32 v{XF+4*t+r}, v{RS+4*t+r}, v{PR+4*t+r}')
            if t == 3:
                for r in range(4):
                    a(f'v_fmac_f32 v{XF+4*t+r}, v{RS+4*t+r}, v{ACC+4*keep[t]+r}')
            a(f'v_cvt_pk_bf16_f32 v{88+2*t}, v{XF+4*t}, v{XF+4*t+1}')
            a(f'v_cvt_pk_bf16_f32 v{89+2*t}, v{XF+4*t+2}, v{XF+4*t+3}')
            a(f'buffer_store_dwordx2 {P(88+2*t)}, v12, s[{HT}:{HT+3}], s{50+t} offen' + (' sc1' if SC_HT else ''))
        stamp(a, 5, VS)
        stamp_end(a, 6, VS, 1, 248)
        a('s_endpgm')
    a('cv_fbspin:')
    lds_spin(a, 1, 15, 0, 94)
    a('s_branch cv_fbgo')
    for half in range(2):
        a(f'cv_rspin{half}:')
        lds_spin(a, 1, 4, 0, 94)
        a(f's_branch cv_rgo{half}')

    WS, SRC = 20, 28
    SCF = ' sc1' if SC_FMT else ''
    a('cv_help:')
    a.flush_hist()
    a('s_load_dwordx4 s[8:11], s[0:1], 56')
    a('s_load_dwordx2 s[12:13], s[0:1], 72')
    a('s_and_b32 s61, s60, 3')
    a('v_mov_b32 v32, 0')
    a('v_mov_b32 v33, 0')
    a('v_mov_b32 v34, -1')
    a('s_mul_i32 s62, s61, 9280')
    a('v_add_u32 v35, s62, v5')
    a('ds_write_b64 v35, v[32:33] offset:4096')
    a('ds_write_b64 v35, v[32:33] offset:%d' % (4096 + 4640))
    a('s_lshl_b32 s62, s61, 8')
    a('s_add_u32 s62, s62, %d' % CV_FLG)
    a('v_lshl_add_u32 v35, v2, 2, s62')
    a('ds_write_b32 v35, v34')
    a('ds_write_b32 v35, v34 offset:256')
    a('ds_write_b32 v35, v34 offset:1280')
    a('s_lshl_b32 s62, s61, 12')
    a('s_add_u32 s63, s62, %d' % WS_ST)
    a('s_mul_i32 s64, s61, %d' % (64 * XBS))
    a('s_lshl_b32 s65, s16, 5')
    a('s_add_u32 s64, s64, s65')
    a('s_add_u32 s64, s64, %d' % WS_XB)
    a('s_add_u32 s65, s64, %d' % (32 * XBS - 1024))
    a('v_lshrrev_b32 v9, 1, v2')
    a('v_mul_u32_u24 v9, %d, v9' % XBS)
    a('v_and_b32 v10, 1, v2')
    a('v_lshl_add_u32 v9, v10, 4, v9')
    a('s_add_u32 m0, s62, %d' % CV_AUX)
    a('s_mul_hi_u32 s78, s2, %d' % (2**32 // 28 + 1))
    a('s_mul_i32 s79, s78, 28')
    a('s_sub_u32 s79, s2, s79')
    a('s_lshl_b32 s66, s61, 13')
    a('s_add_u32 s66, s66, %d' % CV_FM)
    a('s_waitcnt lgkmcnt(0)')
    srd(a, WS, 14, WS_END)
    a('s_barrier')
    stamp(a, 1, VS)
    for i in range(4):
        a(f'buffer_load_dwordx4 v6, s[{WS}:{WS+3}], s63 offen offset:{1024*i} lds')
    a('s_lshl_b32 s62, s61, 11')
    a('s_add_u32 m0, s62, %d' % (CV_AUX + 16384))
    a('s_lshl_b32 s62, s61, 2')
    a(f'buffer_load_dwordx4 v9, s[{WS}:{WS+3}], s64 offen lds')
    a(f'buffer_load_dwordx4 v9, s[{WS}:{WS+3}], s65 offen offset:1024 lds')
    a('s_add_u32 m0, s62, %d' % (CV_FLG + 16))
    a('s_mov_b64 exec, 1')
    a(f'buffer_load_dword v6, s[{WS}:{WS+3}], s93 offen lds')
    a('s_mov_b64 exec, -1')
    a('v_and_b32 v3, 15, v2')
    a('v_lshrrev_b32 v4, 4, v2')
    a('v_lshrrev_b32 v24, 2, v3')
    a('v_and_b32 v25, 3, v3')
    a('v_lshrrev_b32 v26, 1, v4')
    a('v_and_b32 v27, 1, v4')
    a('s_mov_b32 m0, s66')
    a('s_cmp_ge_u32 s2, %d' % (0 if NOHELP else NFMT))
    a('s_cbranch_scc1 cv_hend')
    a('s_cmp_eq_u32 s61, 3')
    a('s_cbranch_scc1 cv_hend')
    a('s_cmp_eq_u32 s61, 2')
    a('s_cbranch_scc1 cv_wd')
    a('s_cmp_eq_u32 s61, 0')
    a(f's_cselect_b32 s{SRC}, s8, s10')
    a(f's_cselect_b32 s{SRC+1}, s9, s11')
    a(f's_mov_b32 s{SRC+2}, {hex(512*3584)}')
    a(f's_mov_b32 s{SRC+3}, 0x20000')
    a('v_and_b32 v7, 7, v2')
    a('v_lshrrev_b32 v13, 3, v2')
    a('v_mul_u32_u24 v13, 3584, v13')
    a('v_lshl_add_u32 v13, v7, 4, v13')
    a('s_mul_i32 s80, s78, %d' % (64 * 3584))
    a('s_lshl_b32 s81, s79, 7')
    a('s_add_u32 s80, s80, s81')
    for i in range(8):
        a(f'buffer_load_dwordx4 v13, s[{SRC}:{SRC+3}], s80 offen lds')
        if i < 7:
            a('s_add_u32 m0, m0, 1024')
            a('s_add_u32 s80, s80, %d' % (8 * 3584))
    a('v_lshl_add_u32 v28, v26, 3, v24')
    a('v_lshlrev_b32 v28, 7, v28')
    a('v_lshl_add_u32 v28, v27, 5, v28')
    a('v_lshl_add_u32 v28, v25, 3, v28')
    a('v_add_u32 v28, s66, v28')
    for j in range(4):
        a('s_lshl_b32 s82, s79, 2')
        a(f's_add_u32 s82, s82, {j}')
        a('s_mul_hi_u32 s83, s82, %d' % (2**32 // 7 + 1))
        a('s_mul_i32 s84, s83, 7')
        a('s_sub_u32 s84, s82, s84')
        a('s_mul_i32 s83, s83, %d' % W1F_NT)
        a('s_lshl_b32 s84, s84, 10')
        a(f's_add_u32 s{40+j}, s83, s84')
    a('s_lshl_b32 s82, s61, 4')
    a('v_lshl_add_u32 v29, v26, 5, v3')
    a('v_add_u32 v29, s82, v29')
    a('v_lshlrev_b32 v29, 4, v29')
    a('v_cmp_eq_u32 vcc, 1, v27')
    for u in range(2):
        a(f'v_mov_b32 v{30+u}, s{40+2*u}')
        a(f'v_mov_b32 v8, s{41+2*u}')
        a(f'v_cndmask_b32 v{30+u}, v{30+u}, v8, vcc')
        a(f'v_add_u32 v{30+u}, v{30+u}, v29')
    a('s_mul_i32 s44, s78, %d' % (4 * 7168))
    a('s_add_u32 s44, s44, %d' % WS_W1F)
    a('s_lshr_b32 s46, s78, 2')
    a('s_lshl_b32 s46, s46, 9')
    a('s_and_b32 s47, s78, 3')
    a('s_lshl_b32 s47, s47, 2')
    a('s_add_u32 s46, s46, s47')
    a('s_add_u32 s46, s46, %d' % (WS_W1F + 32 * 7168))
    for r in range(4): a(f'v_mov_b32 v{16+r}, 0')
    a('s_mov_b32 s45, 0x3f803f80')
    stamp(a, 2, VS)
    a('s_waitcnt vmcnt(0)')
    stamp(a, 3, VS)
    FF = 32
    q = DsQ(a)
    for ks in range(4):
        for u in range(2):
            r = FF + 8 * ks + 4 * u
            q.op(f'ds_read_b64_tr_b16 {P(r)}, v28 offset:{2048*ks+64*u}', (ks, u))
            q.op(f'ds_read_b64_tr_b16 {P(r+2)}, v28 offset:{2048*ks+64*u+512}', (ks, u))
    for ks in range(4):
        for u in range(2):
            r = FF + 8 * ks + 4 * u
            q.wait((ks, u))
            a(f'buffer_store_dwordx4 {Q(r)}, v{30+u}, s[{WS}:{WS+3}], s44 offen{SCF}')
            for w in range(4):
                a(f'v_dot2c_f32_bf16 v{16+2*u+(w&1)}, s45, v{r+w}')
        a('s_add_u32 s44, s44, 7168')
    a('s_nop 2')
    for u in range(2):
        c = 16 + 2 * u
        a(f'v_add_f32 v{c}, v{c}, v{c+1}')
        a(f'v_mov_b32 v{c+1}, v{c}')
        a(f'v_permlane32_swap_b32 v{c}, v{c+1}')
        a(f'v_add_f32 v{c}, v{c}, v{c+1}')
        rne(a, c + 1, c)
        a(f'v_sub_f32 v{c}, v{c}, v{c+1}')
        a(f'v_cvt_pk_bf16_f32 v{c}, v{c+1}, v{c}')
    a('s_mov_b32 exec_hi, 0')
    for u in range(2):
        a(f'buffer_store_dword v{16+2*u}, v{30+u}, s[{WS}:{WS+3}], s46 offen')
    a('s_branch cv_hend')
    a('cv_wd:')
    a.flush_hist()
    srd(a, SRC, 12, 1792 * 1024)
    a('v_lshrrev_b32 v14, 5, v2')
    a('v_lshlrev_b32 v14, 10, v14')
    a('v_and_b32 v15, 31, v2')
    a('v_lshl_add_u32 v14, v15, 4, v14')
    a('s_lshr_b32 s84, s2, 1')
    a('s_and_b32 s85, s2, 1')
    a('s_lshl_b32 s86, s84, 14')
    a('s_lshl_b32 s87, s85, 9')
    a('s_add_u32 s86, s86, s87')
    for i in range(8):
        a(f'buffer_load_dwordx4 v14, s[{SRC}:{SRC+3}], s86 offen lds')
        if i < 7:
            a('s_add_u32 m0, m0, 1024')
            a('s_add_u32 s86, s86, 2048')
    a('v_lshl_add_u32 v28, v26, 2, v24')
    a('v_lshlrev_b32 v28, 9, v28')
    a('v_lshl_add_u32 v28, v27, 5, v28')
    a('v_lshl_add_u32 v28, v25, 3, v28')
    a('v_add_u32 v28, s66, v28')
    a('s_mul_i32 s44, s85, 448')
    a('s_add_u32 s44, s44, s84')
    a('s_lshl_b32 s44, s44, 11')
    a('s_add_u32 s44, s44, %d' % WS_WDF)
    stamp(a, 2, VS)
    a('s_waitcnt vmcnt(0)')
    stamp(a, 3, VS)
    q = DsQ(a)
    for x in range(8):
        q.op(f'ds_read_b64_tr_b16 {P(FF+4*x)}, v28 offset:{64*x}', x)
        q.op(f'ds_read_b64_tr_b16 {P(FF+4*x+2)}, v28 offset:{64*x+4096}', x)
    for x in range(8):
        q.wait(x)
        a(f'buffer_store_dwordx4 {Q(FF+4*x)}, v6, s[{WS}:{WS+3}], s44 offen offset:{1024*(x&1)}{SCF}')
        if x & 1: a('s_add_u32 s44, s44, %d' % (112 * 2048))
    a('cv_hend:')
    stamp(a, 4, VS)
    stamp_end(a, 5, VS, 1, 248)
    a('conv_end:')
    a('s_endpgm')
    return name, 252, 102, None

G1_SLOT = 22528
G1_NS = 7
G1_RING = G1_SLOT * G1_NS
FF_FLG = G1_RING
FF_LDS = FF_FLG + 512
FF_WD = 3 * G1_SLOT
FF_WD2 = 5 * G1_SLOT
FF_H = FF_WD + 40960
FF_RED = 0
BARS = {0: 3, 2: 5, 4: 7, 6: 9, 8: 11, 10: 13, 12: 15, 14: 18}
RK = 18
LK = 10
SC = ' sc1'
NOSTAT = 0
BAR14 = 1
BARGAP = 3
XALIGN = 0
XPAD = 0
PACE = 9
WDI0 = 8
WDIN = 4
PACE2 = 14
PH = [[0, 1], [2, 3, 4], [5, 6]]
PFL = [5, 6, 6]
DA = 6
XR2 = 0
XPRIO = 0
NOBAR = 0
NODMA = 0

def epi_tile(g, T, C1, IR2):
    u = g + 8
    L = []
    for e in range(0, 8, 2): L.append(f'v_pk_mul_f32 {P(T+e)}, {P(g+e)}, {P(C1)}')
    for e in range(8): L.append(f'v_exp_f32 v{T+e}, v{T+e}')
    for e in range(0, 8, 2): L.append(f'v_pk_mul_f32 {P(g+e)}, {P(g+e)}, {P(u+e)}')
    for e in range(0, 8, 2): L.append(f'v_pk_fma_f32 {P(T+e)}, {P(T+e)}, {P(IR2)}, {P(IR2)}')
    for e in range(8): L.append(f'v_rcp_f32 v{T+e}, v{T+e}')
    for e in range(0, 8, 2): L.append(f'v_pk_mul_f32 {P(g+e)}, {P(g+e)}, {P(T+e)}')
    for w in range(4): L.append(f'v_cvt_pk_bf16_f32 v{T+8+w}, v{g+2*w}, v{g+2*w+1}')
    return L

def gen_ffn(a):
    name = 'ffn_kernel'
    begin(a, name)
    W1F, HT, WS, OUT = 8, 12, 16, 40
    a('s_cmp_ge_u32 s2, 256')
    a('s_cbranch_scc1 ff_end')
    a('s_load_dwordx2 s[4:5], s[0:1], 96')
    a('s_load_dwordx2 s[6:7], s[0:1], 80')
    a('v_lshrrev_b32 v1, 6, v0')
    a('v_and_b32 v2, 63, v0')
    a('v_readfirstlane_b32 s46, v1')
    a('s_and_b32 s21, s2, 1')
    a('s_lshl_b32 s21, s21, 3')
    a('s_bfe_u32 s27, s2, 0x30003')
    a('s_add_u32 s21, s21, s27')
    a('s_bfe_u32 s22, s2, 0x20001')
    a('s_lshl_b32 s22, s22, 2')
    a('s_lshr_b32 s23, s2, 6')
    a('s_add_u32 s22, s22, s23')
    a('s_and_b32 s20, s46, 3')
    a('v_lshlrev_b32 v3, 4, v2')
    a('s_cmp_ge_u32 s46, 4')
    a('s_cbranch_scc1 ff_ld')
    VS = 250
    stamp_begin(a, VS)
    a('v_lshlrev_b32 v9, 1, v0')
    a('v_add_u32 v9, %d, v9' % FF_FLG)
    a('v_mov_b32 v8, -1')
    a('ds_write_b16 v9, v8')
    a('v_lshrrev_b32 v5, 4, v2')
    a('v_and_b32 v6, 15, v2')
    a('v_lshrrev_b32 v12, 2, v6')
    a('v_and_b32 v13, 3, v6')
    a('s_waitcnt lgkmcnt(0)')
    a('s_barrier')
    a('v_lshrrev_b32 v14, 1, v5')
    a('v_and_b32 v15, 1, v5')
    a('v_lshl_add_u32 v11, v14, 3, v12')
    a('v_lshlrev_b32 v11, 8, v11')
    a('v_xor_b32 v12, s20, v12')
    a('v_lshl_add_u32 v11, v12, 6, v11')
    a('v_lshl_add_u32 v11, v15, 5, v11')
    a('v_lshl_add_u32 v11, v13, 3, v11')
    a('v_add_u32 v11, 14336, v11')
    a('v_mov_b32 v10, v3')
    a('v_lshlrev_b32 v8, 2, v13')
    a('v_add_u32 v8, %d, v8' % FF_FLG)
    a('s_lshl_b32 s37, s21, 2')
    a('s_add_u32 s37, s37, s20')
    a('s_mul_i32 s37, s37, 112')
    a('s_mul_i32 s38, s22, 7')
    a('s_add_u32 s37, s37, s38')
    a('s_lshl_b32 s37, s37, 10')
    a('s_add_u32 s37, s37, %d' % WS_ACT)
    a('s_lshl_b32 s38, s21, 1')
    a('s_lshr_b32 s39, s20, 1')
    a('s_add_u32 s38, s38, s39')
    a('s_lshl_b32 s38, s38, 2')
    a('s_lshr_b32 s39, s22, 2')
    a('s_add_u32 s38, s38, s39')
    a('s_lshl_b32 s38, s38, 3')
    a('s_and_b32 s39, s22, 3')
    a('s_lshl_b32 s39, s39, 1')
    a('s_add_u32 s38, s38, s39')
    a('s_and_b32 s39, s20, 1')
    a('s_add_u32 s38, s38, s39')
    a('s_lshl_b32 s38, s38, 7')
    a('s_add_u32 s38, s38, %d' % WS_GF)
    a('v_mov_b32 v4, 1')
    a('v_mov_b32 v5, 0')
    WF = [32, 60]; HF = [88, 92, 216, 220]; ACC = 96
    S1, S2, PV = 16, 18, 24
    for r in range(112):
        a(f'v_mov_b32 v{ACC+r}, 0')
    for r in range(4):
        a(f'v_mov_b32 v{S1+r}, 0')
    a('s_mov_b32 s34, 0xffff0000')
    a('s_mov_b32 s35, %d' % G1_SLOT)
    a('s_mov_b32 s33, 0')
    a('s_mov_b32 s32, %d' % sum(1 << k for k in BARS))
    a('s_mov_b32 s30, %d' % (-(G1_RING - G1_SLOT) & 0xffffffff))
    a('s_mov_b32 s31, %d' % G1_SLOT)
    srd(a, WS, 4, WS_END)
    def rdW(s, f): return f'ds_read_b128 {Q(WF[s]+4*f)}, v10 offset:{7168*s+1024*f}'
    def rdH(h, s): return [f'ds_read_b64_tr_b16 {P(h)}, v11 offset:{4096*s}', f'ds_read_b64_tr_b16 {P(h+2)}, v11 offset:{4096*s+1024}']
    def stats(h):
        U = []; A = []
        for w in range(4):
            t = 208 + 2 * w
            U.append([f'v_lshlrev_b32 v{t}, 16, v{h+w}', f'v_and_b32 v{t+1}, s34, v{h+w}'])
            A.append([f'v_add_f32 v{S1}, v{S1}, v{t}', f'v_fmac_f32 v{S2}, v{t}, v{t}', f'v_add_f32 v{S1+1}, v{S1+1}, v{t+1}', f'v_fmac_f32 v{S2+1}, v{t+1}, v{t+1}'])
        return U[0] + U[1] + A[0] + U[2] + A[1] + U[3] + A[2] + A[3]
    def mfma(s, f, h=None):
        h = HF[s] if h is None else h
        return f'v_mfma_f32_32x32x16_bf16 v[{ACC+16*f}:{ACC+16*f+15}], {Q(WF[s]+4*f)}, {Q(h)}, v[{ACC+16*f}:{ACC+16*f+15}]'
    stamp(a, 1, VS)
    if XPRIO: a(f's_setprio {XPRIO}')
    a('s_mov_b32 s44, 0')
    a('ff_x0:')
    a(f'ds_read_b32 v{PV}, v8')
    a('s_add_u32 s44, s44, 1')
    a('s_cmp_gt_u32 s44, 0x100000')
    a('s_cbranch_scc1 ff_x1')
    a('s_waitcnt lgkmcnt(0)')
    a(f'v_cmp_ne_u32 vcc, 0, v{PV}')
    a('s_cbranch_vccnz ff_x0')
    a('ff_x1:')
    stamp(a, 2, VS)
    for x in rdH(HF[0], 0): a(x)
    for f in range(7): a(rdW(0, f))
    a(f'ds_read_b32 v{PV}, v8 offset:16')
    for x in rdH(HF[1], 1): a(x)
    for f in range(7): a(rdW(1, f))
    a('v_add_u32 v10, %d, v10' % G1_SLOT)
    a('v_add_u32 v11, %d, v11' % G1_SLOT)
    a('ff_loop:')
    for ks in range(4):
        s = ks & 1; h = HF[ks]; hn = HF[(ks + 2) % 4]; st2 = ks // 2
        S = stats(h) if not NOSTAT else []
        ex = [[] for _ in range(7)]
        rh = rdH(hn, s)
        if s == 0:
            ex[0] = [f'v_cmp_ne_u32 vcc, 0, v{PV}', f's_cbranch_vccnz ff_xspin{st2}\nff_xgo{st2}:']
            ex[1] = [rh[0]]; ex[2] = [rh[1]]
            ex[3] = ['s_add_u32 s35, s35, %d' % G1_SLOT]; ex[4] = ['s_cmp_eq_u32 s35, %d' % G1_RING]; ex[5] = ['s_cselect_b32 s36, s30, s31']
            if ks == 0: ex[BARGAP] = ['s_barrier'] + ex[BARGAP]
        else:
            ex[0] = [f'ds_read_b32 v{PV}, v8 offset:{32+16*st2}']
            ex[1] = [rh[0]]; ex[2] = [rh[1], 's_cselect_b32 s35, 0, s35']
            ex[3] = ['v_add_u32 v11, s36, v11']
            if ks == 3:
                ex[4] = ['s_add_u32 s33, s33, 2', 'v_add_u32 v8, 32, v8']; ex[5] = ['s_cmp_lt_u32 s33, 16']
            ex[6] = ['v_add_u32 v10, s36, v10']
        tot = [1 + len(e) for e in ex]; tot[6] += 1 + (3 if ks == 3 else 0)
        if ks == 0: tot[BARGAP] += 2
        cnts = [0] * 7
        for _ in range(len(S)):
            i = min(range(7), key=lambda j: (tot[j] + cnts[j], j)); cnts[i] += 1
        k = 0
        a('s_waitcnt lgkmcnt(9)')
        for f in range(7):
            a(mfma(s, f, h))
            for x in (ex[f] + [rdW(s, f)] if f == 0 else [rdW(s, f)] + ex[f]): a(x)
            for x in S[k:k+cnts[f]]: a(x)
            k += cnts[f]
    a('s_cbranch_scc1 ff_loop')
    stamp(a, 3, VS)
    if STAMP: a(f'v_writelane_b32 v{VS}, s44, 13')
    a(f'v_add_f32 v{S1}, v{S1}, v{S1+1}')
    a(f'v_add_f32 v{S2}, v{S2}, v{S2+1}')
    a(f'v_mov_b32 v{S1+1}, v{S1}')
    a(f'v_mov_b32 v{S2+1}, v{S2}')
    a(f'v_permlane32_swap_b32 v{S1}, v{S1+1}')
    a(f'v_permlane32_swap_b32 v{S2}, v{S2+1}')
    a(f'v_add_f32 v{S1}, v{S1}, v{S1+1}')
    a(f'v_add_f32 v{S2}, v{S2}, v{S2+1}')
    a(f'v_mul_f32 v{S1}, 0xbb000000, v{S1}')
    a(f'v_mul_f32 v{S2}, 0x3b000000, v{S2}')
    a('s_waitcnt lgkmcnt(0)')
    for w in range(4):
        a(f'v_cvt_pk_bf16_f32 v{HF[0]+w}, v{S1}, v{S1}')
    a(f'v_fma_f32 v{S2}, -v{S1}, v{S1}, v{S2}')
    a(f'v_max_f32 v{S2}, 0, v{S2}')
    C1, IR2 = 24, 26
    b = Asm()
    ln_sigma(b, S2, C1)
    b(f'v_mul_f32 v{IR2}, v{S2}, v{S2}')
    b(f'v_mul_f32 v{C1}, 0xbfb8aa3b, v{C1}')
    b(f'v_mov_b32 v{IR2+1}, v{IR2}')
    b(f'v_mov_b32 v{C1+1}, v{C1}')
    fin = [l.strip() for l in b.lines if not l.strip().startswith('s_nop')]
    ep = [epi_tile(ACC + 16 * f, 64 + 16 * (f & 1), C1, IR2) for f in range(7)]
    a(mfma(0, 0))
    for x in fin[:5]: a(x)
    a(mfma(0, 1))
    for x in fin[5:10]: a(x)
    a(mfma(0, 2))
    for x in fin[10:]: a(x)
    e0 = ep[0]
    for f in range(3, 7):
        a(mfma(0, f))
        for x in e0[4*(f-3):4*(f-3)+4]: a(x)
    ep[0] = e0[16:]
    vq = []
    for f in range(7):
        T = 64 + 16 * (f & 1)
        for x in ep[f]: a(x)
        a(f'buffer_store_dwordx4 {Q(T+8)}, v3, s[{WS}:{WS+3}], s37 offen offset:{1024*(f&3)}{SC}')
        vq.append(f)
        if f == 3: a('s_add_u32 s37, s37, 4096')
        if f == 6: stamp(a, 4, VS)
        for ph in range(len(PH)):
            if PFL[ph] == f:
                a(f's_waitcnt vmcnt({len(vq) - 1 - vq.index(PH[ph][-1])})')
                a('s_mov_b64 exec, 1')
                a(f'buffer_store_dword v4, v5, s[{WS}:{WS+3}], s38 offen offset:{4*ph} sc1')
                a('s_mov_b64 exec, -1')
                vq.append('f')
    stamp(a, 5, VS)
    stamp_end(a, 6, VS, 2, 248)
    a('s_endpgm')
    for st2 in range(2):
        a(f'ff_xspin{st2}:')
        a(f'ds_read_b32 v{PV}, v8 offset:{16+16*st2}')
        a('s_add_u32 s44, s44, 1')
        a('s_cmp_gt_u32 s44, 0x100000')
        a('s_waitcnt lgkmcnt(0)')
        a(f's_cbranch_scc1 ff_xgo{st2}')
        a(f'v_cmp_ne_u32 vcc, 0, v{PV}')
        a(f's_cbranch_vccnz ff_xspin{st2}')
        a(f's_branch ff_xgo{st2}')
    a('ff_ld:')
    a.flush_hist()
    VS = 1
    stamp_begin(a, VS)
    a('s_mul_i32 s28, s22, %d' % W1F_NT)
    a('s_mul_i32 s24, s20, 3584')
    a('v_add_u32 v4, s24, v3')
    a('s_lshl_b32 s25, s21, 17')
    a('s_lshl_b32 s26, s20, 11')
    a('v_add_u32 v7, s26, v3')
    a('s_add_u32 s26, s26, 14336')
    a('s_mov_b32 s30, 0')
    a('s_mov_b32 s31, 0')
    a('s_lshl_b32 s29, s20, 2')
    a('s_add_u32 s29, s29, %d' % FF_FLG)
    a('s_mov_b32 s47, 0x7f000000')
    a('s_mov_b32 m0, s26')
    a('s_waitcnt lgkmcnt(0)')
    srd(a, HT, 4, 131072, WS_HT, offreg=25)
    srd(a, W1F, 4, 33 * 7168, WS_W1F, offreg=28)
    a_real = a
    class Filt:
        def __call__(self, t):
            if NODMA and t.startswith('buffer_load_dwordx4') and t.endswith('lds'):
                if NODMA == 2: a_real(t.replace('buffer_load_dwordx4 ', 'buffer_load_dwordx4 v[112:115], ').replace(' lds', ''))
                return
            a_real(t)
    pc = [PACE]
    def pace():
        if pc[0]: a(f's_waitcnt vmcnt({pc[0]})')
    def dma(j, a=Filt()):
        slot = (j % G1_NS) * G1_SLOT
        if j < 16:
            if j: a('s_add_u32 m0, s26, %d' % slot)
            pace()
            a(f'buffer_load_dwordx4 v7, s[{HT}:{HT+3}], s31 offen lds')
            pace()
            a(f'buffer_load_dwordx4 v7, s[{HT}:{HT+3}], s31 offen offset:1024 lds')
        a('s_add_u32 m0, s24, %d' % slot)
        a('s_add_u32 s31, s31, 8192')
        pace()
        a(f'buffer_load_dwordx4 v4, s[{W1F}:{W1F+3}], s30 offen lds')
        pace()
        a(f'buffer_load_dwordx4 v4, s[{W1F}:{W1F+3}], s30 offen offset:1024 lds')
        pace()
        a(f'buffer_load_dwordx4 v4, s[{W1F}:{W1F+3}], s30 offen offset:2048 lds')
        a('s_mov_b32 exec_hi, 0')
        pace()
        a(f'buffer_load_dwordx4 v4, s[{W1F}:{W1F+3}], s30 offen offset:3072 lds')
        if j == 0: a('s_barrier')
        a('s_add_u32 m0, s29, %d' % (16 * j))
        a('s_mov_b32 exec_lo, 1')
        a('s_add_u32 s30, s30, 14336')
        a(f'buffer_load_dword v4, s[{W1F}:{W1F+3}], s47 offen lds')
        a('s_mov_b64 exec, -1')
        if j >= 6 and not PACE: a('s_waitcnt vmcnt(49)')
    stamp(a, 1, VS)
    pos2s = {p: st for st, p in BARS.items()}
    allowed = G1_NS - 1
    posmap = [(p, f) for ph in PH for p in range(4) for f in ph]
    ACC = 16
    WDR = 112
    wreg = {}
    nwd = 0
    def wd_off(k):
        p, f = posmap[k]
        return f's_add_u32 s55, s{72+p}, {2048*f}'
    def wd_reg_load():
        nonlocal nwd
        k = nwd; nwd += 1
        wreg[k] = WDR + 8 * k
        a(wd_off(k))
        pace()
        a(f'buffer_load_dwordx4 {Q(wreg[k])}, v8, s[{WS}:{WS+3}], s55 offen')
        pace()
        a(f'buffer_load_dwordx4 {Q(wreg[k]+4)}, v9, s[{WS}:{WS+3}], s55 offen')
    for j in range(17):
        assert j <= allowed, (j, allowed)
        dma(j)
        if j == 1:
            a('s_and_b32 s48, s2, 7')
            a('s_lshl_b32 s48, s48, 2')
            a('s_bfe_u32 s49, s2, 0x20003')
            a('s_add_u32 s48, s48, s49')
            a('s_lshr_b32 s49, s2, 5')
            a('s_mul_i32 s50, s48, 224')
            a('s_mul_i32 s52, s20, 28')
            a('s_add_u32 s50, s50, s52')
            a('s_lshl_b32 s50, s50, 10')
            a('s_add_u32 s50, s50, %d' % WS_ACT)
            a('s_mul_i32 s51, s49, 112')
            a('s_add_u32 s51, s51, s52')
            a('s_lshl_b32 s51, s51, 11')
            a('s_add_u32 s51, s51, %d' % WS_WDF)
            a('s_add_u32 s53, s48, s49')
            a('s_and_b32 s53, s53, %d' % (3 if XR2 else 0))
            for p in range(4):
                a(f's_xor_b32 s54, s53, {p}')
                a('s_mul_i32 s54, s54, 7168')
                a(f's_add_u32 s{68+p}, s50, s54')
                a('s_lshl_b32 s54, s54, 1')
                a(f's_add_u32 s{72+p}, s51, s54')
            a('s_lshr_b32 s56, s20, 1')
            a('s_and_b32 s57, s20, 1')
            a('s_lshl_b32 s58, s56, 10')
            a('v_add_u32 v8, s58, v3')
            a('v_xor_b32 v9, 0x400, v8')
            a('s_mul_i32 s58, s57, 0x1c000')
            a('v_add_u32 v10, s58, v3')
            a('v_xor_b32 v11, 0x1c000, v10')
            srd(a, WS, 4, WS_END)
            srd(a, OUT, 6, 2 * MiB)
        if WDI0 <= j < WDI0 + WDIN: wd_reg_load()
        if j in pos2s:
            a('s_barrier')
            allowed = max(allowed, pos2s[j] - 1 + G1_NS)
    stamp(a, 2, VS)
    n0 = nwd
    pc[0] = PACE2
    while nwd < RK:
        wd_reg_load()
        if nwd - n0 == BAR14 + 1: a('s_barrier')
    assert RK - n0 > BAR14
    a('s_mul_i32 s58, s20, 10240')
    a('s_add_u32 s58, s58, %d' % FF_WD)
    a('s_mov_b32 m0, s58')
    for k in range(LK):
        a(wd_off(RK + k))
        pace()
        a(f'buffer_load_dwordx4 v8, s[{WS}:{WS+3}], s55 offen lds')
        a('s_add_u32 m0, m0, 1024')
        pace()
        a(f'buffer_load_dwordx4 v9, s[{WS}:{WS+3}], s55 offen lds')
        a('s_add_u32 m0, m0, %d' % (1024 if k != 4 else FF_WD2 - FF_WD - 9216))
    a('v_add_u32 v12, s58, v3')
    a('v_lshrrev_b32 v5, 3, v2')
    a('v_and_b32 v6, 7, v2')
    a('s_and_b32 s59, s48, 1')
    a('s_lshl_b32 s59, s59, 3')
    a('v_or_b32 v6, s59, v6')
    a('v_and_b32 v7, 3, v5')
    a('v_lshlrev_b32 v7, 2, v7')
    a('v_xor_b32 v6, v6, v7')
    a('v_lshlrev_b32 v5, 8, v5')
    a('v_lshl_add_u32 v5, v6, 4, v5')
    a('s_lshl_b32 s59, s49, 14')
    a('s_lshl_b32 s60, s20, 12')
    a('s_add_u32 s59, s59, s60')
    a('s_lshr_b32 s60, s48, 1')
    a('s_lshl_b32 s60, s60, 17')
    a('s_add_u32 s59, s59, s60')
    a('s_add_u32 s59, s59, %d' % WS_HT)
    a('s_add_u32 s60, s59, 0x800')
    a('s_lshl_b32 s61, s57, 11')
    a('s_mul_i32 s64, s56, %d' % (FF_WD2 - FF_WD))
    a('s_add_u32 s61, s61, s64')
    a('s_add_u32 m0, s61, %d' % FF_H)
    a(f'buffer_load_dwordx4 v5, s[{WS}:{WS+3}], s59 offen lds')
    a('s_add_u32 m0, m0, 1024')
    a(f'buffer_load_dwordx4 v5, s[{WS}:{WS+3}], s60 offen lds')
    a('v_and_b32 v4, 15, v2')
    a('v_lshrrev_b32 v5, 4, v2')
    a('v_lshrrev_b32 v6, 2, v4')
    a('v_and_b32 v7, 3, v4')
    a('v_lshrrev_b32 v13, 1, v5')
    a('v_and_b32 v5, 1, v5')
    a('v_lshl_add_u32 v14, v13, 2, v6')
    a('v_lshlrev_b32 v14, 7, v14')
    a('v_lshl_add_u32 v14, v5, 5, v14')
    a('v_lshl_add_u32 v14, v7, 3, v14')
    a('s_lshl_b32 s60, s57, 6')
    a('s_add_u32 s59, s64, s60')
    a('s_add_u32 s59, s59, %d' % FF_H)
    a('v_add_u32 v14, s59, v14')
    a('v_and_b32 v15, 31, v2')
    a('v_lshlrev_b32 v15, 10, v15')
    a('v_lshl_add_u32 v15, v13, 4, v15')
    a('s_lshl_b32 s62, s48, 16')
    a('s_lshl_b32 s60, s57, 15')
    a('s_add_u32 s62, s62, s60')
    a('s_lshl_b32 s60, s49, 7')
    a('s_add_u32 s62, s62, s60')
    a('s_lshl_b32 s60, s56, 6')
    a('s_add_u32 s62, s62, s60')
    a('s_mov_b32 s63, 0xffff0000')
    a('s_lshl_b32 s59, s48, 2')
    a('s_add_u32 s59, s59, s20')
    a('s_lshl_b32 s59, s59, 10')
    a('s_add_u32 s59, s59, %d' % WS_GF)
    a('v_and_b32 v13, 7, v2')
    a('v_lshlrev_b32 v13, 7, v13')
    a('v_bfe_u32 v4, v2, 3, 2')
    a('v_lshl_add_u32 v13, v4, 2, v13')
    a('s_mov_b32 s60, 0')
    for p in (1, 2, 3):
        a(f's_xor_b32 s33, s20, {p}')
        a('s_mul_i32 s33, s33, 12288')
        a(f'v_add_u32 v{3+p}, s33, v3')
    a('s_mul_i32 s33, s20, 12288')
    a('v_add_u32 v7, s33, v3')
    PVR = 2
    poll_ld = f'buffer_load_dword v{PVR}, v13, s[{WS}:{WS+3}], s59 offen sc1'
    def poll_loop(ph, back=None):
        L = f'ff_poll{ph}'
        a(f'{L}:')
        a(poll_ld)
        a('s_add_u32 s60, s60, 1')
        a('s_waitcnt vmcnt(0)')
        a(f'v_cmp_eq_u32 vcc, 0, v{PVR}')
        a(f's_and_b32 s65, vcc_lo, {hex(0xff << (8*ph))}')
        a(f's_cbranch_scc0 ff_rdy{ph}')
        a('s_cmp_lt_u32 s60, 0x40000')
        a('s_sleep 2')
        a(f's_cbranch_scc1 {L}')
        if back: a(f's_branch ff_rdy{ph}')
    stamp(a, 3, VS)
    poll_loop(0)
    a('ff_rdy0:')
    stamp(a, 4, VS)
    free = [80, 88, 96, 104]
    areg = {}
    order = []
    q = DsQ(a)
    nact = 0; nwl = RK
    pstart = {}
    c = 0
    for ph, tl in enumerate(PH):
        pstart[c] = ph; c += 4 * len(tl)
    vdone = [0]
    def vwait(tag):
        last = max(i for i, o in enumerate(order) if o == tag)
        if last + 1 > vdone[0]:
            a(f's_waitcnt vmcnt({len(order) - 1 - last})')
            vdone[0] = last + 1
    def issue(k_now):
        nonlocal nact, nwl
        while True:
            if nwl < 28 and nwl <= k_now + 3 and free:
                r = free.pop(0); wreg[nwl] = r
                lo = 2048 * ((nwl - RK) % 5) + (FF_WD2 - FF_WD) * ((nwl - RK) // 5)
                q.op(f'ds_read_b128 {Q(r)}, v12 offset:{lo}', nwl)
                q.op(f'ds_read_b128 {Q(r+4)}, v12 offset:{lo+1024}', nwl)
                nwl += 1
            elif nact < 28 and nact <= k_now + DA and free:
                if nact in pstart and nact > 0:
                    ph = pstart[nact]
                    vwait(('poll', ph))
                    a(f'v_cmp_eq_u32 vcc, 0, v{PVR}')
                    a(f's_and_b32 s65, vcc_lo, {hex(0xff << (8*ph))}')
                    a(f's_cbranch_scc1 ff_poll{ph}')
                    a(f'ff_rdy{ph}:')
                r = free.pop(0); areg[nact] = r
                p, f = posmap[nact]
                a(f's_add_u32 s61, s{68+p}, {1024*f}')
                a(f'buffer_load_dwordx4 {Q(r)}, v10, s[{WS}:{WS+3}], s61 offen{SC}')
                a(f'buffer_load_dwordx4 {Q(r+4)}, v11, s[{WS}:{WS+3}], s61 offen{SC}')
                order.extend([nact] * 2)
                nact += 1
                if nact + 3 in pstart:
                    a(poll_ld); order.append(('poll', pstart[nact + 3]))
            else:
                break
    issue(0)
    RESR = None
    for k in range(28):
        vwait(k)
        if RK <= k: q.wait(k)
        for p in (3, 2, 1, 0):
            px, py = p >> 1, p & 1
            c = f'v[{ACC+16*p}:{ACC+16*p+15}]'
            a(f'v_mfma_f32_32x32x16_bf16 {c}, {Q(wreg[k]+4*px)}, {Q(areg[k]+4*py)}, {"0" if k == 0 else c}')
        free += [wreg[k], areg[k]]
        issue(k + 1)
        if k == 25:
            a('s_barrier')
            RESR = free.pop(0)
            for x in range(4):
                q.op(f'ds_read_b64_tr_b16 {P(RESR+2*x)}, v14 offset:{1024*x}', 'res')
    stamp(a, 5, VS)
    for p in (3, 2, 1):
        for j in range(4):
            q.op(f'ds_write_b128 v{3+p}, {Q(ACC+16*p+4*j)} offset:{FF_RED+(p-1)*4096+1024*j}', 'w')
    R = 224 if 224 != RESR and 232 != RESR else 192
    assert RESR not in (R, R + 8)
    q.wait('res')
    for x in range(4):
        a(f'v_lshlrev_b32 v{R+4*x}, 16, v{RESR+2*x}')
        a(f'v_and_b32 v{R+4*x+1}, s63, v{RESR+2*x}')
        a(f'v_lshlrev_b32 v{R+4*x+2}, 16, v{RESR+2*x+1}')
        a(f'v_and_b32 v{R+4*x+3}, s63, v{RESR+2*x+1}')
    for r in range(0, 16, 2):
        a(f'v_pk_add_f32 {P(R+r)}, {P(R+r)}, {P(ACC+r)}')
    a('s_waitcnt lgkmcnt(0)')
    a('s_barrier')
    stamp(a, 6, VS)
    for j in range(4):
        for p in range(3):
            a(f'ds_read_b128 {Q(32+16*p+4*j)}, v7 offset:{FF_RED+4096*p+1024*j}')
    for j in range(4):
        a(f's_waitcnt lgkmcnt({9-3*j})')
        for r in range(4*j, 4*j+4, 2):
            a(f'v_pk_add_f32 {P(R+r)}, {P(R+r)}, {P(32+r)}')
            a(f'v_pk_add_f32 {P(48+r)}, {P(48+r)}, {P(64+r)}')
        for r in range(4*j, 4*j+4, 2):
            a(f'v_pk_add_f32 {P(R+r)}, {P(R+r)}, {P(48+r)}')
        a(f'v_cvt_pk_bf16_f32 v{100+2*j}, v{R+4*j}, v{R+4*j+1}')
        a(f'v_cvt_pk_bf16_f32 v{101+2*j}, v{R+4*j+2}, v{R+4*j+3}')
        if j & 1:
            p = j >> 1
            a(f'v_permlane32_swap_b32 v{100+4*p}, v{102+4*p}')
            a(f'v_permlane32_swap_b32 v{101+4*p}, v{103+4*p}')
            a(f'buffer_store_dwordx4 {Q(100+4*p)}, v15, s[{OUT}:{OUT+3}], s62 offen offset:{32*p}')
    stamp(a, 7, VS)
    stamp_end(a, 8, VS, 2, 110)
    a('ff_end:')
    a('s_endpgm')
    for ph in range(1, len(PH)): poll_loop(ph, True)
    return name, 256, 102, None

class DsQ:
    def __init__(self, a):
        self.a = a; self.q = []; self.done = 0
    def op(self, txt, tag=None):
        self.a(txt); self.q.append(tag)
    def wait(self, *tags):
        idx = max(len(self.q) - 1 - self.q[::-1].index(t) for t in tags) + 1
        if idx > self.done:
            n = min(len(self.q) - idx, 15)
            self.a(f's_waitcnt lgkmcnt({n})')
            self.done = len(self.q) - n

def main(out):
    a = Asm()
    ks = []
    launches = [('prep_kernel', 256, 512, 0), ('conv_kernel', 256, 512, CV_LDS), ('ffn_kernel', 256, 512, FF_LDS)]
    gens = [gen_prep, gen_conv, gen_ffn]
    if TLA >= 0:
        launches.append(('tl_kernel', 1, 64, 0)); gens.append(gen_tl)
    txt = HEADER
    for n, g, b, l in launches:
        txt += f'; @launch kernel={n} grid=({g},1,1) block=({b},1,1) lds={l}\n'
    txt += '.amdgcn_target "amdgcn-amd-amdhsa--gfx950"\n.text\n'
    for g in gens:
        ks.append(g(a))
    txt += a.text() + 'code_end:\n'
    txt += '.section .rodata,"a"\n'
    for n, v, s, acc in ks:
        txt += kernel_desc(n, v, s, acc)
    open(out, 'w').write(txt)

if __name__ == '__main__':
    for arg in sys.argv[2:]:
        if arg == 'stamp': STAMP = True
        elif '=' in arg:
            k, v = arg.split('='); globals()[k] = int(v, 0)
    main(sys.argv[1] if len(sys.argv) > 1 else 'sequential_preLN__ssm_conv_h3__swiglu_ffn__prompt.s')
```

```python
import sys, re
sys.path.insert(0, 'dev')
from asmlib import kernel_desc
src = open(sys.argv[1]).read()
NAME = 'sequential_preLN__ssm_conv_h3__swiglu_ffn__prompt_kernel'
head, rest = src.split('; @launch', 1)
body = src[src.index('.amdgcn_target'):src.index('.section .rodata')]
parts = re.split(r'\.globl (\w+_kernel)\n\.p2align 8\n\.type \w+,@function\n\w+:\n', body)
pre, n1, b1, n2, b2, n3, b3 = parts
def sync(k, nxt):
    return f'''sync{k}:
    s_mov_b64 exec, -1
    s_waitcnt vmcnt(0) lgkmcnt(0)
    buffer_wbl2 sc1
    s_waitcnt vmcnt(0)
    s_barrier
    v_readfirstlane_b32 s20, v0
    s_load_dwordx2 s[4:5], s[0:1], 88
    s_nop 3
    s_cmp_lg_u32 s20, 0
    s_waitcnt lgkmcnt(0)
    s_mov_b32 s8, s4
    s_mov_b32 s9, s5
    s_mov_b32 s10, 256
    s_mov_b32 s11, 0x20000
    s_cbranch_scc1 sync{k}_w
    s_and_b32 s21, s2, 7
    s_lshl_b32 s21, s21, 2
    v_mov_b32 v1, 1
    v_mov_b32 v2, s21
    s_mov_b64 exec, 1
    buffer_atomic_add v1, v2, s[8:11], 0 offen offset:{128*(k-1)} sc1
    s_mov_b64 exec, 0xff
    v_lshlrev_b32 v2, 2, v0
    s_mov_b32 s22, 0
sync{k}_p:
    buffer_load_dword v1, v2, s[8:11], 0 offen offset:{128*(k-1)} sc1
    s_add_u32 s22, s22, 1
    s_waitcnt vmcnt(0)
    v_cmp_ne_u32 vcc, 32, v1
    s_cbranch_vccz sync{k}_d
    s_cmp_lt_u32 s22, 0x40000
    s_sleep 1
    s_cbranch_scc1 sync{k}_p
sync{k}_d:
    s_mov_b64 exec, -1
    buffer_inv sc1
    s_waitcnt vmcnt(0)
sync{k}_w:
    s_barrier
    s_branch {nxt}
'''
def redirect(b, k, endlab):
    b = b.replace(f'{endlab}:\n    s_endpgm', f'    s_branch sync{k}\n{endlab}:\n    @@END')
    b = b.replace('    s_endpgm', f'    s_branch sync{k}')
    return b.replace('@@END', 's_endpgm')
b1 = redirect(b1, 1, 'prep_end'); b2 = redirect(b2, 2, 'conv_end')
lds = max(int(x) for x in re.findall(r'lds=(\d+)', src))
out = head + f'; @launch grid=(256,1,1) block=(512,1,1) lds={lds}\n' + pre
out += f'.globl {NAME}\n.p2align 8\n.type {NAME},@function\n{NAME}:\n' + b1 + sync(1, n2) + f'.p2align 8\n{n2}:\n' + b2 + sync(2, n3) + f'.p2align 8\n{n3}:\n' + b3
out += '.section .rodata,"a"\n' + kernel_desc(NAME, 256, 102)
open(sys.argv[2], 'w').write(out)
```

```python
import sys, re
sys.path.insert(0, 'dev')
from asmlib import kernel_desc
src = open(sys.argv[1]).read()
NAME = 'sequential_preLN__ssm_conv_h3__swiglu_ffn__prompt_kernel'
head, rest = src.split('; @launch', 1)
body = src[src.index('.amdgcn_target'):src.index('.section .rodata')]
parts = re.split(r'\.globl (\w+_kernel)\n\.p2align 8\n\.type \w+,@function\n\w+:\n', body)
pre, n1, b1, n2, b2, n3, b3 = parts
def sync(k, nxt):
    return f'''sync{k}:
    s_mov_b64 exec, -1
    s_waitcnt vmcnt(0) lgkmcnt(0)
    s_barrier
    v_readfirstlane_b32 s20, v0
    s_load_dwordx2 s[4:5], s[0:1], 88
    s_nop 3
    s_cmp_lg_u32 s20, 0
    s_waitcnt lgkmcnt(0)
    s_mov_b32 s8, s4
    s_mov_b32 s9, s5
    s_mov_b32 s10, 256
    s_mov_b32 s11, 0x20000
    s_cbranch_scc1 sync{k}_w
    s_and_b32 s21, s2, 7
    s_lshl_b32 s21, s21, 2
    v_mov_b32 v1, 1
    v_mov_b32 v2, s21
    s_mov_b64 exec, 1
    buffer_atomic_add v1, v2, s[8:11], 0 offen offset:{128*(k-1)} sc1
    s_mov_b64 exec, 0xff
    v_lshlrev_b32 v2, 2, v0
    s_mov_b32 s22, 0
sync{k}_p:
    buffer_load_dword v1, v2, s[8:11], 0 offen offset:{128*(k-1)} sc1
    s_add_u32 s22, s22, 1
    s_waitcnt vmcnt(0)
    v_cmp_ne_u32 vcc, 32, v1
    s_cbranch_vccz sync{k}_d
    s_cmp_lt_u32 s22, 0x40000
    s_sleep 1
    s_cbranch_scc1 sync{k}_p
sync{k}_d:
    s_mov_b64 exec, -1
sync{k}_w:
    s_barrier
    s_branch {nxt}
'''
def sc(b):
    return '\n'.join((l + ' sc1' if l.strip().startswith('buffer_store') and 'sc1' not in l else l) for l in b.split('\n'))
def redirect(b, k, endlab):
    b = sc(b)
    b = b.replace(f'{endlab}:\n    s_endpgm', f'    s_branch sync{k}\n{endlab}:\n    @@END')
    b = b.replace('    s_endpgm', f'    s_branch sync{k}')
    return b.replace('@@END', 's_endpgm')
b1 = redirect(b1, 1, 'prep_end'); b2 = redirect(b2, 2, 'conv_end')
lds = max(int(x) for x in re.findall(r'lds=(\d+)', src))
out = head + f'; @launch grid=(256,1,1) block=(512,1,1) lds={lds}\n' + pre
out += f'.globl {NAME}\n.p2align 8\n.type {NAME},@function\n{NAME}:\n' + b1 + sync(1, n2) + f'.p2align 8\n{n2}:\n' + b2 + sync(2, n3) + f'.p2align 8\n{n3}:\n' + b3
out += '.section .rodata,"a"\n' + kernel_desc(NAME, 256, 102)
open(sys.argv[2], 'w').write(out)
```

```python
import sys
sys.path.insert(0, 'dev')
from asmlib import *

MiB = 1 << 20
CS = 4224
CHB = 512 * CS
import os
WSB = int(os.environ.get('WSB', '0')) * MiB
WS_XR0 = WSB
XBS = 8192 + 128
WS_XB = WSB + CHB
WS_ST = WS_XB + 256 * XBS
WS_GF = WS_ST + 32768
WS_HT = WS_GF + 131072
WS_W1F = WS_HT + 2 * MiB
W1F_NT = 232 * 1024
PF_FILT = 1
PF_CODE = 1
SC_HT = 0
SC_FMT = 1
PF_WD = 1
ROT1 = 0
ROT2 = 1
WS_WDF = WS_W1F + 16 * W1F_NT
WS_ACT = WS_WDF + 1792 * 1024
WS_END = WS_ACT + 7 * MiB
WS_DBG = 32 * MiB

HEADER = open('sequential_preLN__ssm_conv_h3__swiglu_ffn__prompt.s.ref').read().split('; Override launch')[0]

def srd(a, d, base, size, off=None, offreg=None):
    if off:
        a(f's_add_u32 s{d}, s{base}, {hex(off)}')
        a(f's_addc_u32 s{d+1}, s{base+1}, 0')
        if offreg is not None:
            a(f's_add_u32 s{d}, s{d}, s{offreg}')
            a(f's_addc_u32 s{d+1}, s{d+1}, 0')
    elif offreg is not None:
        a(f's_add_u32 s{d}, s{base}, s{offreg}')
        a(f's_addc_u32 s{d+1}, s{base+1}, 0')
    else:
        a(f's_mov_b32 s{d}, s{base}')
        a(f's_mov_b32 s{d+1}, s{base+1}')
    a(f's_mov_b32 s{d+2}, {hex(size)}')
    a(f's_mov_b32 s{d+3}, 0x20000')

STAMP = False
def stamp(a, i, vst):
    if not STAMP: return
    a('s_memtime s[98:99]')
    a('s_waitcnt lgkmcnt(0)')
    a(f'v_writelane_b32 v{vst}, s98, {i}')
def stamp_rt(a, i, vst):
    if not STAMP: return
    a('s_memrealtime s[98:99]')
    a('s_waitcnt lgkmcnt(0)')
    a(f'v_writelane_b32 v{vst}, s98, {i}')
def stamp_begin(a, vst):
    if not STAMP: return
    a(f'v_mov_b32 v{vst}, 0')
    stamp_rt(a, 15, vst)
    stamp(a, 0, vst)
def stamp_end(a, i, vst, kidx, tmp):
    if not STAMP: return
    a('s_mov_b64 exec, -1')
    a('s_waitcnt vmcnt(0)')
    stamp(a, i, vst)
    stamp_rt(a, 14, vst)
    a('s_load_dwordx2 s[96:97], s[0:1], 96')
    a('s_waitcnt lgkmcnt(0)')
    srd(a, 92, 96, 4 << 20, WS_DBG)
    a(f'v_lshrrev_b32 v{tmp}, 6, v0')
    a(f'v_lshlrev_b32 v{tmp}, 6, v{tmp}')
    a(f'v_and_b32 v{tmp+1}, 63, v0')
    a(f'v_lshl_add_u32 v{tmp}, v{tmp+1}, 2, v{tmp}')
    a('s_lshl_b32 s98, s2, 9')
    a(f's_add_u32 s98, s98, {kidx*262144}')
    a('s_mov_b32 exec_lo, 0xffff')
    a('s_mov_b32 exec_hi, 0')
    a(f'buffer_store_dword v{vst}, v{tmp}, s[92:95], s98 offen')

TLA = -1
TLB = -1
TLM = 4
_tl_idx = [0]
def tl_mark(a):
    if TLA < 0: return
    k = _tl_idx[0]; _tl_idx[0] += 1
    L = a.newlabel('tl')
    a('s_cmp_lg_u32 s2, 0')
    a(f's_cbranch_scc1 {L}')
    a('s_memrealtime s[98:99]')
    a('s_load_dwordx2 s[96:97], s[0:1], 96')
    a('s_waitcnt lgkmcnt(0)')
    srd(a, 92, 96, 4096, WS_DBG)
    a('v_mov_b32 v1, s98')
    a('v_mov_b32 v2, 0')
    a(f'buffer_store_dword v1, v2, s[92:95], 0 offen offset:{4*k}')
    a(f'{L}:')
def gen_tl(a):
    name = 'tl_kernel'
    a.raw(f'.globl {name}'); a.raw('.p2align 8'); a.raw(f'.type {name},@function'); a.raw(f'{name}:')
    a.flush_hist()
    a('s_cmp_lg_u32 s2, 0')
    a('s_cbranch_scc1 tl_end')
    a('s_memrealtime s[20:21]')
    a('s_load_dwordx2 s[4:5], s[0:1], 96')
    a('s_waitcnt lgkmcnt(0)')
    srd(a, 8, 4, 4096, WS_DBG)
    a('v_mov_b32 v2, 0')
    a('buffer_load_dwordx4 v[4:7], v2, s[8:11], 0 offen')
    a('s_waitcnt vmcnt(0)')
    a('v_mov_b32 v%d, s20' % (4 + _tl_idx[0]))
    a(f'v_sub_u32 v9, v{4+TLB}, v{4+TLA}')
    a('v_readfirstlane_b32 s22, v9')
    a('s_min_u32 s22, s22, 5000')
    a(f's_mul_i32 s22, s22, {TLM}')
    a('tl_spin:')
    a('s_memrealtime s[24:25]')
    a('s_waitcnt lgkmcnt(0)')
    a('s_sub_u32 s24, s24, s20')
    a('s_cmp_lt_u32 s24, s22')
    a('s_cbranch_scc1 tl_spin')
    a('tl_end:')
    a('s_endpgm')
    return name, 16, 32, None

def begin(a, name):
    a.raw(f'.globl {name}')
    a.raw('.p2align 8')
    a.raw(f'.type {name},@function')
    a.raw(f'{name}:')
    a.flush_hist()
    tl_mark(a)

def red32(a, v, t):
    a(f'v_add_f32_dpp v{v}, v{v}, v{v} quad_perm:[1,0,3,2] row_mask:0xf bank_mask:0xf')
    a(f'v_add_f32_dpp v{v}, v{v}, v{v} quad_perm:[2,3,0,1] row_mask:0xf bank_mask:0xf')
    a(f'v_add_f32_dpp v{v}, v{v}, v{v} row_half_mirror row_mask:0xf bank_mask:0xf')
    a(f'v_add_f32_dpp v{v}, v{v}, v{v} row_mirror row_mask:0xf bank_mask:0xf')
    a(f'v_mov_b32 v{t}, v{v}')
    a(f'v_permlane16_swap_b32 v{v}, v{t}')
    a(f'v_add_f32 v{v}, v{v}, v{t}')

def rne(a, d, s):
    a(f'v_cvt_pk_bf16_f32 v{d}, v{s}, v{s}')
    a(f'v_lshlrev_b32 v{d}, 16, v{d}')

def ln_sigma(a, var, rs):
    rne(a, var, var)
    a(f'v_add_f32 v{var}, 0x3727c5ac, v{var}')
    rne(a, var, var)
    a(f'v_sqrt_f32 v{var}, v{var}')
    rne(a, var, var)
    a(f'v_rcp_f32 v{rs}, v{var}')

def interleave(a, ms, fill, start=0):
    n = len(ms); k = 0
    for i, m in enumerate(ms):
        a(m)
        tgt = (len(fill) * (i + 1) + n - 1) // n
        while k < tgt:
            a(fill[k]); k += 1

P = lambda r: f'v[{r}:{r+1}]'
Q = lambda r: f'v[{r}:{r+3}]'

def gen_prep(a):
    name = 'prep_kernel'
    begin(a, name)
    VS = 39
    X, K, V, SH, O0, ST = 16, 20, 24, 28, 32, 40
    a('s_cmp_ge_u32 s2, 256')
    a('s_cbranch_scc1 prep_end')
    stamp_begin(a, VS)
    a('s_load_dwordx8 s[4:11], s[0:1], 0')
    a('s_load_dwordx2 s[12:13], s[0:1], 96')
    a('v_lshrrev_b32 v1, 8, v0')
    a('v_and_b32 v4, 31, v0')
    a('v_readfirstlane_b32 s53, v1')
    a('v_bfe_u32 v5, v0, 5, 3')
    a('s_and_b32 s14, s2, 7')
    a('s_lshr_b32 s15, s2, 3')
    a('s_mov_b32 s50, 0xffff0000')
    a('s_cmp_eq_u32 s53, 0')
    a('s_cbranch_scc0 prep_x')
    a('s_lshl_b32 s44, s15, 16')
    a('s_lshl_b32 s45, s14, 7')
    a('s_add_u32 s44, s44, s45')
    a('v_lshlrev_b32 v2, 13, v5')
    a('v_lshl_add_u32 v2, v4, 2, v2')
    a('v_add_u32 v2, s44, v2')
    a('v_add_u32 v3, 0x1000, v2')
    a('v_subrev_u32 v1, 0x1000, v2')
    a('s_lshl_b32 s48, s14, 9')
    a('v_lshlrev_b32 v6, 4, v4')
    a('v_add_u32 v6, s48, v6')
    a('s_waitcnt lgkmcnt(0)')
    stamp(a, 1, VS)
    srd(a, K, 6, 2 * MiB)
    KR, VR, SHR = 10, 22, 32
    for r in range(11):
        rr = r + 1
        a(f'buffer_load_dword v{KR+r}, v{1+rr//4}, s[{K}:{K+3}], 0 offen offset:{(rr%4)*1024}')
    srd(a, SH, 10, 4096)
    a(f'buffer_load_dwordx4 {Q(SHR)}, v6, s[{SH}:{SH+3}], 0 offen')
    srd(a, V, 8, 2 * MiB)
    for r in range(8):
        a(f'buffer_load_dword v{VR+r}, v{2+r//4}, s[{V}:{V+3}], 0 offen offset:{(r%4)*1024}')
    srd(a, O0, 12, CHB, WS_XR0)
    a('s_mov_b32 s47, %d' % CS)
    a('s_mul_i32 s45, s14, %d' % (64 * CS))
    a('s_lshl_b32 s46, s15, 7')
    a('v_mul_u32_u24 v8, %d, v4' % (2 * CS))
    a('s_sub_u32 s45, s45, s46')
    a('s_add_u32 s45, s45, 4080')
    a('v_lshlrev_b32 v9, 4, v5')
    a('v_sub_u32 v8, v8, v9')
    a('v_add_u32 v8, s45, v8')
    if PF_CODE:
        a('s_getpc_b64 s[54:55]')
        a('pf_here:')
        a('s_add_u32 s54, s54, conv_kernel-pf_here')
        a('s_addc_u32 s55, s55, 0')
        a('s_lshl_b32 s56, s15, 10')
        a('v_lshl_add_u32 v36, v5, 7, s56')
        a('v_min_u32 v36, code_end-conv_kernel-4, v36')
        a('v_mov_b32 v37, s55')
        a('v_add_co_u32 v36, vcc, s54, v36')
        a('v_addc_co_u32 v37, vcc, 0, v37, vcc')
        a('global_load_dword v38, v[36:37], off')
    KF, WP, VF, KV = 40, 64, 72, 92
    stamp(a, 2, VS)
    a('s_waitcnt vmcnt(%d)' % (9 + PF_CODE))
    stamp(a, 3, VS)
    for r in range(11):
        a(f'v_lshlrev_b32 v{KF+2*r}, 16, v{KR+r}')
        a(f'v_and_b32 v{KF+2*r+1}, s50, v{KR+r}')
    a('s_waitcnt vmcnt(%d)' % (8 + PF_CODE))
    for j in range(4):
        for c in range(2):
            src = SHR + 2 * c + j // 2
            if j % 2 == 0:
                a(f'v_lshlrev_b32 v{WP+2*j+c}, 16, v{src}')
            else:
                a(f'v_and_b32 v{WP+2*j+c}, s50, v{src}')
    for i in range(8):
        a(f'v_pk_mul_f32 {P(KV+2*i)}, {P(KF+2*i)}, {P(WP+6)}')
    for j in (2, 1, 0):
        for i in range(8):
            d = KV + 2 * i
            a(f'v_pk_fma_f32 {P(d)}, {P(KF+2*(i+3-j))}, {P(WP+2*j)}, {P(d)}')
    a('s_waitcnt vmcnt(%d)' % PF_CODE)
    stamp(a, 4, VS)
    for r in range(8):
        a(f'v_lshlrev_b32 v{VF+2*r}, 16, v{VR+r}')
        a(f'v_and_b32 v{VF+2*r+1}, s50, v{VR+r}')
    for i in range(8):
        a(f'v_pk_mul_f32 {P(KV+2*i)}, {P(KV+2*i)}, {P(VF+2*i)}')
    O = 112
    for c in range(2):
        for w in range(4):
            a(f'v_cvt_pk_bf16_f32 v{O+4*c+w}, v{KV+2*(7-2*w)+c}, v{KV+2*(6-2*w)+c}')
        a(f'buffer_store_dwordx4 {Q(O+4*c)}, v8, s[{O0}:{O0+3}], {"s47" if c else "0"} offen')
    stamp(a, 5, VS)
    stamp_end(a, 6, VS, 0, 110)
    a('s_endpgm')
    a('prep_x:')
    a.flush_hist()
    a('s_load_dwordx2 s[54:55], s[0:1], 32')
    a('s_lshl_b32 s48, s2, 13')
    a('s_add_u32 s49, s48, 4096')
    a('v_lshlrev_b32 v7, 10, v5')
    a('v_lshl_add_u32 v7, v4, 4, v7')
    a('v_and_b32 v2, 255, v0')
    a('v_lshlrev_b32 v3, 2, v2')
    a('v_lshlrev_b32 v8, 5, v2')
    a('s_mul_i32 s45, s2, %d' % XBS)
    a('s_lshl_b32 s46, s2, 5')
    a('v_lshlrev_b32 v9, 2, v5')
    a('v_add_u32 v9, s46, v9')
    a('s_mov_b32 s51, 0x05040100')
    a('s_mov_b32 s52, 0x07060302')
    a('s_waitcnt lgkmcnt(0)')
    stamp(a, 1, VS)
    srd(a, X, 4, 2 * MiB)
    XR, XS = 10, 20
    a(f'buffer_load_dwordx4 {Q(XS)}, v7, s[{X}:{X+3}], s48 offen')
    a(f'buffer_load_dwordx4 {Q(XS+4)}, v7, s[{X}:{X+3}], s48 offen offset:512')
    for r in range(8):
        a(f'buffer_load_dword v{XR+r}, v3, s[{X}:{X+3}], s{48+r//4} offen offset:{(r%4)*1024}')
    srd(a, O0, 12, 256 * XBS, WS_XB)
    srd(a, ST, 12, 32768 + 131072, WS_ST)
    a('s_mov_b32 s48, 0x2000')
    if PF_FILT:
        srd(a, K, 54, 2 * MiB)
        a('s_lshl_b32 s58, s14, 5')
        a('s_add_u32 s58, s58, s15')
        a('s_lshl_b32 s58, s58, 13')
        a('v_lshrrev_b32 v30, 2, v2')
        a('v_lshlrev_b32 v30, 7, v30')
    stamp(a, 2, VS)
    a('s_waitcnt vmcnt(8)')
    stamp(a, 3, VS)
    E = 60
    for r in range(8):
        a(f'v_lshlrev_b32 v{E+2*r}, 16, v{XS+r}')
        a(f'v_and_b32 v{E+2*r+1}, s50, v{XS+r}')
    S = 80
    a(f'v_pk_add_f32 {P(S)}, {P(E)}, {P(E+2)}')
    a(f'v_pk_add_f32 {P(S+2)}, {P(E+4)}, {P(E+6)}')
    a(f'v_pk_add_f32 {P(S+4)}, {P(E+8)}, {P(E+10)}')
    a(f'v_pk_add_f32 {P(S+6)}, {P(E+12)}, {P(E+14)}')
    a(f'v_pk_add_f32 {P(S)}, {P(S)}, {P(S+2)}')
    a(f'v_pk_add_f32 {P(S+4)}, {P(S+4)}, {P(S+6)}')
    a(f'v_pk_add_f32 {P(S)}, {P(S)}, {P(S+4)}')
    a(f'v_add_f32 v{S}, v{S}, v{S+1}')
    red32(a, S, S + 1)
    a(f'v_mul_f32 v{S}, 0xbb000000, v{S}')
    a(f'v_mov_b32 v{S+1}, v{S}')
    a('s_waitcnt vmcnt(0)')
    if PF_FILT:
        a(f'buffer_load_dword v31, v30, s[{K}:{K+3}], s58 offen')
    O2 = 100
    for c in range(2):
        for w in range(4):
            a(f'v_perm_b32 v{O2+4*c+w}, v{XR+2*w+1}, v{XR+2*w}, s{51+c}')
        a(f'buffer_store_dwordx4 {Q(O2+4*c)}, v8, s[{O0}:{O0+3}], s45 offen offset:{16*c}')
    for r in range(8):
        a(f'v_pk_add_f32 {P(E+2*r)}, {P(E+2*r)}, {P(S)}')
    a(f'v_pk_mul_f32 {P(S+2)}, {P(E)}, {P(E)}')
    a(f'v_pk_mul_f32 {P(S+4)}, {P(E+2)}, {P(E+2)}')
    for r in range(2, 8):
        d = S + 2 + 2 * (r & 1)
        a(f'v_pk_fma_f32 {P(d)}, {P(E+2*r)}, {P(E+2*r)}, {P(d)}')
    a(f'v_pk_add_f32 {P(S+2)}, {P(S+2)}, {P(S+4)}')
    a(f'v_add_f32 v{S+2}, v{S+2}, v{S+3}')
    red32(a, S + 2, S + 3)
    a(f'v_mul_f32 v{S+2}, 0x3b000000, v{S+2}')
    rne(a, S, S)
    ln_sigma(a, S + 2, S + 4)
    a(f'v_mul_f32 v{S+5}, v{S}, v{S+4}')
    for r in range(4): a(f'v_mov_b32 v{32+r}, 0')
    a('v_lshrrev_b32 v36, 3, v9')
    a('v_lshlrev_b32 v36, 7, v36')
    a('s_mov_b32 s61, 0x8000')
    a('s_mov_b32 exec_lo, 1')
    a('s_mov_b32 exec_hi, 1')
    a(f'buffer_store_dwordx4 v[32:35], v36, s[{ST}:{ST+3}], s61 offen')
    a(f'buffer_store_dword v{S+4}, v9, s[{ST}:{ST+3}], 0 offen')
    a(f'buffer_store_dword v{S+5}, v9, s[{ST}:{ST+3}], s48 offen')
    stamp(a, 4, VS)
    stamp_end(a, 5, VS, 0, 110)
    a('prep_end:')
    a('s_endpgm')
    return name, 128, 102, None

CV_XC = 0
CV_E = 2 * 4 * 4640
CV_RED = CV_E + 2 * 8448
CV_AUX = CV_RED + 16384
CV_FM = CV_AUX + 24576
CV_FLG = CV_FM + 24576
CV_LDS = CV_FLG + 2304
NFMT = 224
NOHELP = 0

def lds_spin(a, vf, vaddr, off, cnt, cond='ne'):
    L = a.newlabel('sp'); D = a.newlabel('spd')
    a(f'{L}:')
    a(f'ds_read_b32 v{vf}, v{vaddr} offset:{off}')
    a(f's_add_u32 s{cnt}, s{cnt}, 1')
    a(f's_cmp_gt_u32 s{cnt}, 0x100000')
    a(f's_cbranch_scc1 {D}')
    a('s_waitcnt lgkmcnt(0)')
    a(f'v_cmp_{cond}_u32 vcc, 0, v{vf}')
    a(f's_cbranch_vccnz {L}')
    a(f'{D}:')

def gen_conv(a):
    name = 'conv_kernel'
    begin(a, name)
    VS = 250
    H, XRS, HT = 20, 24, 32
    a('s_cmp_ge_u32 s2, 256')
    a('s_cbranch_scc1 conv_end')
    stamp_begin(a, VS)
    a('s_load_dwordx4 s[4:7], s[0:1], 32')
    a('s_load_dwordx2 s[14:15], s[0:1], 96')
    a('v_lshrrev_b32 v1, 6, v0')
    a('v_and_b32 v2, 63, v0')
    a('v_readfirstlane_b32 s60, v1')
    a('s_and_b32 s16, s2, 7')
    a('s_lshr_b32 s17, s2, 3')
    a('s_lshl_b32 s16, s16, 5')
    a('s_add_u32 s16, s16, s17')
    a('v_lshlrev_b32 v5, 3, v2')
    a('v_lshlrev_b32 v6, 4, v2')
    a('s_mov_b32 s93, 0x7f000000')
    a('s_mov_b32 s94, 0')
    a('s_bfe_u32 s61, s60, 0x10001')
    a('s_and_b32 s62, s60, 1')
    a('s_lshl_b32 s63, s16, 1')
    a('s_add_u32 s63, s63, s61')
    a('s_mul_i32 s70, s61, 18560')
    a('s_mul_i32 s73, s63, %d' % CS)
    def odd_load():
        for i in range(2):
            a(f'buffer_load_dwordx4 {Q(16+16*i)}, v6, s[{XRS}:{XRS+3}], s69 offen offset:{1024*i}')
            a(f'buffer_load_dwordx2 {P(20+16*i)}, v6, s[{XRS}:{XRS+3}], s69 offen offset:{1024*i+16}')
    def odd_build(i):
        b = 16 * i
        for w in range(4): a(f'v_alignbit_b32 v{b+22+w}, v{b+17+w}, v{b+16+w}, 16')
        for w in range(4): a(f'v_alignbit_b32 v{b+26+w}, v{b+18+w}, v{b+17+w}, 16')
        a(f'ds_write_b128 v56, {Q(b+22)} offset:{9280+1024*i}')
        a(f'ds_write_b128 v56, {Q(b+26)} offset:{1024*i}')
    a('s_cmp_ge_u32 s60, 4')
    a('s_cbranch_scc1 cv_help')
    a('s_lshl_b32 s64, s63, 12')
    a('s_lshl_b32 s65, s16, 2')
    a('s_mul_i32 s66, s61, 8448')
    a('s_add_u32 s66, s66, %d' % CV_E)
    a('s_mul_i32 s71, s62, 9280')
    a('s_add_u32 s71, s71, s70')
    a('s_add_u32 s71, s71, 4640')
    a('s_xor_b32 s77, s62, 1')
    a('s_lshl_b32 s72, s77, 2')
    a('s_lshl_b32 s69, s62, 11')
    a('s_lshl_b32 s75, s62, 12')
    a('v_lshrrev_b32 v7, 2, v2')
    a('v_and_b32 v8, 3, v2')
    a('v_lshlrev_b32 v7, 3, v7')
    a('v_lshl_add_u32 v7, v8, 2, v7')
    a('v_add_u32 v7, 0xffffff80, v7')
    a('s_add_u32 s68, s66, s75')
    a('s_mov_b32 m0, s71')
    a('s_waitcnt lgkmcnt(0)')
    stamp(a, 1, VS)
    srd(a, XRS, 14, 4096, WS_XR0, offreg=73)
    odd_load()
    for i in range(4):
        a(f'buffer_load_dwordx4 v6, s[{XRS}:{XRS+3}], s72 offen offset:{1024*i} lds')
    a('s_add_u32 m0, s68, 256')
    srd(a, H, 4, 4096, offreg=64)
    for i in range(4):
        a(f'buffer_load_dwordx4 v5, s[{H}:{H+3}], s69 offen offset:{512*i} lds')
        a('s_add_u32 m0, m0, 512' if i < 3 else 's_mov_b32 m0, s66')
    a('s_load_dword s67, s[6:7], s65')
    a(f'buffer_load_dword v7, s[{H}:{H+3}], 0 offen lds')
    a('s_barrier')
    a('s_add_u32 s74, s69, s70')
    a('v_add_u32 v56, s74, v6')
    srd(a, HT, 14, 2 * MiB, WS_HT)
    for par, sh in ((0, 62), (1, 77)):
        a(f's_lshl_b32 s{40+par}, s{sh}, 9')
        a(f's_lshl_b32 s{50+par}, s{sh}, 18')
    a('s_lshl_b32 s79, s63, 8')
    a('s_add_u32 s50, s50, s79')
    a('s_add_u32 s51, s51, s79')
    a('s_add_u32 s51, s51, 0x80000')
    a('s_add_u32 s52, s50, 0x100000')
    a('s_add_u32 s53, s51, 0x100000')
    a('v_and_b32 v12, 31, v2')
    a('v_lshlrev_b32 v12, 3, v12')
    a('s_and_b32 s74, s63, 3')
    a('s_lshl_b32 s74, s74, 6')
    a('v_xor_b32 v12, s74, v12')
    a('v_lshrrev_b32 v13, 5, v2')
    a('v_lshl_add_u32 v12, v13, 17, v12')
    XA, HA = 224, 225
    a('v_and_b32 v3, 15, v2')
    a('v_lshrrev_b32 v4, 4, v2')
    a('v_lshrrev_b32 v9, 2, v3')
    a('v_mul_u32_u24 v10, 4640, v8')
    a('v_lshlrev_b32 v9, 3, v9')
    a('v_sub_u32 v9, v4, v9')
    a('v_add_u32 v9, 24, v9')
    a(f'v_lshl_add_u32 v{XA}, v9, 4, v10')
    a('s_lshl_b32 s88, s62, 8')
    a('s_add_u32 s88, s88, s70')
    a(f'v_add_u32 v{XA}, s88, v{XA}')
    a(f'v_lshl_add_u32 v{HA}, v4, 1, v3')
    a(f'v_lshlrev_b32 v{HA}, 4, v{HA}')
    a('s_lshl_b32 s89, s62, 9')
    a('s_add_u32 s89, s89, s66')
    a('s_add_u32 s89, s89, 16')
    a(f'v_add_u32 v{HA}, s89, v{HA}')
    a('s_lshl_b32 s88, s61, 4')
    a('s_add_u32 s88, s88, 16384')
    a('v_lshrrev_b32 v9, 1, v2')
    a('v_lshlrev_b32 v9, 5, v9')
    a('v_and_b32 v15, 1, v2')
    a('v_lshl_add_u32 v9, v15, 3, v9')
    for par in range(2):
        a(f's_sub_u32 s89, s70, s{40+par}')
        a('s_add_u32 s89, s89, %d' % (3 * 4640 + 4088 - 3072))
        a(f'v_sub_u32 v{10+par}, s89, v5')
        a(f's_lshl_b32 s89, s{40+par}, 1')
        a('s_add_u32 s89, s89, %d' % CV_AUX)
        a(f'v_add_u32 v{60+par}, s89, v6')
        a('s_add_u32 s89, s89, s88')
        a(f'v_add_u32 v{13+par}, s89, v9')
    a('s_lshl_b32 s90, s60, 12')
    a('s_add_u32 s91, s90, %d' % CV_RED)
    a('s_xor_b32 s90, s90, 0x1000')
    a('s_add_u32 s90, s90, %d' % CV_RED)
    a('v_add_u32 v62, s91, v6')
    a('v_add_u32 v63, s90, v6')
    a('s_mov_b32 s92, 0xffff0000')
    a('v_lshlrev_b32 v15, 2, v8')
    a('v_add_u32 v15, %d, v15' % (CV_FLG + 16))
    a('s_lshl_b32 s89, s60, 8')
    a('s_add_u32 s89, s89, %d' % (CV_FLG + 256))
    a('v_lshl_add_u32 v3, v2, 2, s89')
    a('s_xor_b32 s89, s60, 1')
    a('s_lshl_b32 s89, s89, 8')
    a('s_add_u32 s89, s89, %d' % (CV_FLG + 256))
    a('v_lshl_add_u32 v4, v2, 2, s89')
    a('v_mov_b32 v7, 0')
    stamp(a, 2, VS)
    a('s_waitcnt vmcnt(11)')
    stamp(a, 7, VS)
    odd_build(0)
    a('s_waitcnt vmcnt(9)')
    odd_build(1)
    stamp(a, 8, VS)
    a('s_waitcnt vmcnt(5)')
    stamp(a, 9, VS)
    a('s_waitcnt vmcnt(0)')
    stamp(a, 10, VS)
    a('ds_write_b32 v3, v7 offset:1024')
    lds_spin(a, 1, 4, 1024, 94)
    stamp(a, 3, VS)
    FH = [64, 128]; FX = [96, 160]; ACC = 192
    XV, RS, MR, XF = 16, 24, 40, 232
    kvp = [56, 58, 226, 228]
    def rdH(s, ri, aa): return f'ds_read_b128 {Q(FH[s]+4*aa)}, v{HA} offset:{128*(8*aa+ri)}'
    def rdX(s, ri, bb): return f'ds_read_b128 {Q(FX[s]+4*bb)}, v{XA} offset:{64*(56-8*bb+ri)}'
    inited = [False] * 8
    def mf(s, aa, bb):
        nb = aa + bb
        c = Q(ACC + 4 * nb)
        src = c if inited[nb] else '0'
        inited[nb] = True
        return f'v_mfma_f32_16x16x32_bf16 {c}, {Q(FX[s]+4*bb)}, {Q(FH[s]+4*aa)}, {src}'
    pairs = sorted([(aa, bb) for aa in range(8) for bb in range(8) if aa + bb <= 7], key=lambda p: (max(p), p))
    q = DsQ(a)
    todo = []
    for ri in range(4):
        for x in range(8):
            todo.append((rdH(ri & 1, ri, x), ('H', ri, x)))
            todo.append((rdX(ri & 1, ri, x), ('X', ri, x)))
    for _ in range(12):
        q.op(*todo.pop(0))
    a('s_lshl_b32 s90, s61, 4')
    a('s_lshr_b32 s67, s67, s90')
    a('s_lshl_b32 s67, s67, 16')
    aux = []
    for t in range(4):
        par = t & 1
        aux.append(f'ds_read_b64 {P(kvp[t])}, v{10+par} offset:{1024*(3-t)}')
        aux.append(f'ds_read_b64 {P(XV+2*t)}, v{13+par} offset:{2048*t}')
        aux.append(f'ds_read_b128 {Q(RS+4*t)}, v{60+par} offset:{2048*t}')
        aux.append(f'ds_read_b128 {Q(MR+4*t)}, v{60+par} offset:{2048*t+8192}')
    pre = []
    for t in range(4):
        pre += [f'v_lshlrev_b32 v{XF+4*t}, 16, v{XV+2*t}', f'v_and_b32 v{XF+4*t+1}, s92, v{XV+2*t}',
                f'v_lshlrev_b32 v{XF+4*t+2}, 16, v{XV+2*t+1}', f'v_and_b32 v{XF+4*t+3}, s92, v{XV+2*t+1}']
    pre += [f'v_fma_f32 v{RS+r}, v{XF+r}, v{RS+r}, v{MR+r}' for r in range(16)]
    for t in range(4):
        pre += [f'v_and_b32 v{MR+4*t}, s92, v{kvp[t]+1}', f'v_lshlrev_b32 v{MR+4*t+1}, 16, v{kvp[t]+1}',
                f'v_and_b32 v{MR+4*t+2}, s92, v{kvp[t]}', f'v_lshlrev_b32 v{MR+4*t+3}, 16, v{kvp[t]}']
    pre += [f'v_mul_f32 v{MR+r}, v{MR+r}, v{RS+r}' for r in range(16)]
    pre += [f'v_fmac_f32 v{XF+r}, s67, v{MR+r}' for r in range(16)]
    for ri in range(3):
        s = ri & 1
        for n, (aa, bb) in enumerate(pairs):
            q.wait(('H', ri, aa), ('X', ri, bb))
            a(mf(s, aa, bb))
            used = 0
            if todo and todo[0][1][1] <= ri + 1 and (n % 2 == 0 or todo[0][1][1] == ri):
                q.op(*todo.pop(0)); used = 1
            if ri == 0 and n == 31: q.op('ds_read_b32 v1, v15', 'fb')
            if ri == 1 and n == 1:
                q.wait('fb')
                a('v_cmp_ne_u32 vcc, 0, v1')
                a('s_cbranch_vccnz cv_fbspin')
                a('cv_fbgo:')
            if ri == 1 and n % 2 == 1 and n >= 3 and aux: q.op(aux.pop(0), 'aux')
            if ri == 2:
                if n == 0: q.wait('aux')
                for _ in range(2 - used):
                    if pre: a(pre.pop(0))
    assert not todo and not aux, (len(todo), len(aux))
    a('s_cmp_eq_u32 s62, 0')
    a('s_waitcnt lgkmcnt(0)')
    a('s_cbranch_scc0 conv_h1')
    PR = 64
    hist = list(a.hist)
    for half in range(2):
        if half:
            a('conv_h1:'); a.hist = list(hist)
        rest = list(pre)
        keep = [2 * t + ((t & 1) ^ half) for t in range(4)]
        send = [2 * t + ((t & 1) ^ half ^ 1) for t in range(4)]
        ps = sorted([p for p in pairs if sum(p) in send], key=lambda p: sum(p))
        pk = sorted([p for p in pairs if sum(p) in keep], key=lambda p: sum(p))
        seq = ps + pk
        lastidx = {nb: max(i for i, p in enumerate(seq) if sum(p) == nb) for nb in range(8)}
        wr = {lastidx[nb] + 3: t for t, nb in enumerate(send)}
        for i, (aa, bb) in enumerate(seq):
            a(mf(1, aa, bb))
            for _ in range(2):
                if rest: a(rest.pop(0))
            if i in wr:
                t = wr[i]
                a(f'ds_write_b128 v62, {Q(ACC+4*send[t])} offset:{1024*t}')
            if i == 21: a('ds_write_b32 v3, v7')
            if i == 25: a('ds_read_b32 v1, v4')
            if i == 30:
                a('s_waitcnt lgkmcnt(0)')
                a('v_cmp_ne_u32 vcc, 0, v1')
                a(f's_cbranch_vccnz cv_rspin{half}')
                a(f'cv_rgo{half}:')
                for t in range(2): a(f'ds_read_b128 {Q(PR+4*t)}, v63 offset:{1024*t}')
            if i == 31:
                for t in range(2, 4): a(f'ds_read_b128 {Q(PR+4*t)}, v63 offset:{1024*t}')
            if i >= 32:
                t = i - 32
                if t < 3:
                    for r in range(4):
                        a(f'v_fmac_f32 v{XF+4*t+r}, v{RS+4*t+r}, v{ACC+4*keep[t]+r}')
        assert not rest
        stamp(a, 4, VS)
        for t in range(4):
            a(f's_waitcnt lgkmcnt({3-t})')
            for r in range(4):
                a(f'v_fmac_f32 v{XF+4*t+r}, v{RS+4*t+r}, v{PR+4*t+r}')
            if t == 3:
                for r in range(4):
                    a(f'v_fmac_f32 v{XF+4*t+r}, v{RS+4*t+r}, v{ACC+4*keep[t]+r}')
            a(f'v_cvt_pk_bf16_f32 v{88+2*t}, v{XF+4*t}, v{XF+4*t+1}')
            a(f'v_cvt_pk_bf16_f32 v{89+2*t}, v{XF+4*t+2}, v{XF+4*t+3}')
            a(f'buffer_store_dwordx2 {P(88+2*t)}, v12, s[{HT}:{HT+3}], s{50+t} offen' + (' sc1' if SC_HT else ''))
        stamp(a, 5, VS)
        stamp_end(a, 6, VS, 1, 248)
        a('s_endpgm')
    a('cv_fbspin:')
    lds_spin(a, 1, 15, 0, 94)
    a('s_branch cv_fbgo')
    for half in range(2):
        a(f'cv_rspin{half}:')
        lds_spin(a, 1, 4, 0, 94)
        a(f's_branch cv_rgo{half}')

    WS, SRC = 20, 28
    SCF = ' sc1' if SC_FMT else ''
    a('cv_help:')
    a.flush_hist()
    a('s_load_dwordx4 s[8:11], s[0:1], 56')
    a('s_load_dwordx2 s[12:13], s[0:1], 72')
    a('s_and_b32 s61, s60, 3')
    a('v_mov_b32 v32, 0')
    a('v_mov_b32 v33, 0')
    a('v_mov_b32 v34, -1')
    a('s_mul_i32 s62, s61, 9280')
    a('v_add_u32 v35, s62, v5')
    a('ds_write_b64 v35, v[32:33] offset:4096')
    a('ds_write_b64 v35, v[32:33] offset:%d' % (4096 + 4640))
    a('s_lshl_b32 s62, s61, 8')
    a('s_add_u32 s62, s62, %d' % CV_FLG)
    a('v_lshl_add_u32 v35, v2, 2, s62')
    a('ds_write_b32 v35, v34')
    a('ds_write_b32 v35, v34 offset:256')
    a('ds_write_b32 v35, v34 offset:1280')
    a('s_lshl_b32 s62, s61, 12')
    a('s_add_u32 s63, s62, %d' % WS_ST)
    a('s_mul_i32 s64, s61, %d' % (64 * XBS))
    a('s_lshl_b32 s65, s16, 5')
    a('s_add_u32 s64, s64, s65')
    a('s_add_u32 s64, s64, %d' % WS_XB)
    a('s_add_u32 s65, s64, %d' % (32 * XBS - 1024))
    a('v_lshrrev_b32 v9, 1, v2')
    a('v_mul_u32_u24 v9, %d, v9' % XBS)
    a('v_and_b32 v10, 1, v2')
    a('v_lshl_add_u32 v9, v10, 4, v9')
    a('s_add_u32 m0, s62, %d' % CV_AUX)
    a('s_mul_hi_u32 s78, s2, %d' % (2**32 // 28 + 1))
    a('s_mul_i32 s79, s78, 28')
    a('s_sub_u32 s79, s2, s79')
    a('s_lshl_b32 s66, s61, 13')
    a('s_add_u32 s66, s66, %d' % CV_FM)
    a('s_waitcnt lgkmcnt(0)')
    srd(a, WS, 14, WS_END)
    a('s_barrier')
    stamp(a, 1, VS)
    for i in range(4):
        a(f'buffer_load_dwordx4 v6, s[{WS}:{WS+3}], s63 offen offset:{1024*i} lds')
    a('s_lshl_b32 s62, s61, 11')
    a('s_add_u32 m0, s62, %d' % (CV_AUX + 16384))
    a('s_lshl_b32 s62, s61, 2')
    a(f'buffer_load_dwordx4 v9, s[{WS}:{WS+3}], s64 offen lds')
    a(f'buffer_load_dwordx4 v9, s[{WS}:{WS+3}], s65 offen offset:1024 lds')
    a('s_add_u32 m0, s62, %d' % (CV_FLG + 16))
    a('s_mov_b64 exec, 1')
    a(f'buffer_load_dword v6, s[{WS}:{WS+3}], s93 offen lds')
    a('s_mov_b64 exec, -1')
    a('v_and_b32 v3, 15, v2')
    a('v_lshrrev_b32 v4, 4, v2')
    a('v_lshrrev_b32 v24, 2, v3')
    a('v_and_b32 v25, 3, v3')
    a('v_lshrrev_b32 v26, 1, v4')
    a('v_and_b32 v27, 1, v4')
    a('s_mov_b32 m0, s66')
    a('s_cmp_ge_u32 s2, %d' % (0 if NOHELP else NFMT))
    a('s_cbranch_scc1 cv_hend')
    a('s_cmp_eq_u32 s61, 3')
    a('s_cbranch_scc1 cv_hend')
    a('s_cmp_eq_u32 s61, 2')
    a('s_cbranch_scc1 cv_wd')
    a('s_cmp_eq_u32 s61, 0')
    a(f's_cselect_b32 s{SRC}, s8, s10')
    a(f's_cselect_b32 s{SRC+1}, s9, s11')
    a(f's_mov_b32 s{SRC+2}, {hex(512*3584)}')
    a(f's_mov_b32 s{SRC+3}, 0x20000')
    a('v_and_b32 v7, 7, v2')
    a('v_lshrrev_b32 v13, 3, v2')
    a('v_mul_u32_u24 v13, 3584, v13')
    a('v_lshl_add_u32 v13, v7, 4, v13')
    a('s_mul_i32 s80, s78, %d' % (64 * 3584))
    a('s_lshl_b32 s81, s79, 7')
    a('s_add_u32 s80, s80, s81')
    for i in range(8):
        a(f'buffer_load_dwordx4 v13, s[{SRC}:{SRC+3}], s80 offen lds')
        if i < 7:
            a('s_add_u32 m0, m0, 1024')
            a('s_add_u32 s80, s80, %d' % (8 * 3584))
    a('v_lshl_add_u32 v28, v26, 3, v24')
    a('v_lshlrev_b32 v28, 7, v28')
    a('v_lshl_add_u32 v28, v27, 5, v28')
    a('v_lshl_add_u32 v28, v25, 3, v28')
    a('v_add_u32 v28, s66, v28')
    for j in range(4):
        a('s_lshl_b32 s82, s79, 2')
        a(f's_add_u32 s82, s82, {j}')
        a('s_mul_hi_u32 s83, s82, %d' % (2**32 // 7 + 1))
        a('s_mul_i32 s84, s83, 7')
        a('s_sub_u32 s84, s82, s84')
        a('s_mul_i32 s83, s83, %d' % W1F_NT)
        a('s_lshl_b32 s84, s84, 10')
        a(f's_add_u32 s{40+j}, s83, s84')
    a('s_lshl_b32 s82, s61, 4')
    a('v_lshl_add_u32 v29, v26, 5, v3')
    a('v_add_u32 v29, s82, v29')
    a('v_lshlrev_b32 v29, 4, v29')
    a('v_cmp_eq_u32 vcc, 1, v27')
    for u in range(2):
        a(f'v_mov_b32 v{30+u}, s{40+2*u}')
        a(f'v_mov_b32 v8, s{41+2*u}')
        a(f'v_cndmask_b32 v{30+u}, v{30+u}, v8, vcc')
        a(f'v_add_u32 v{30+u}, v{30+u}, v29')
    a('s_mul_i32 s44, s78, %d' % (4 * 7168))
    a('s_add_u32 s44, s44, %d' % WS_W1F)
    a('s_lshr_b32 s46, s78, 2')
    a('s_lshl_b32 s46, s46, 9')
    a('s_and_b32 s47, s78, 3')
    a('s_lshl_b32 s47, s47, 2')
    a('s_add_u32 s46, s46, s47')
    a('s_add_u32 s46, s46, %d' % (WS_W1F + 32 * 7168))
    for r in range(4): a(f'v_mov_b32 v{16+r}, 0')
    a('s_mov_b32 s45, 0x3f803f80')
    stamp(a, 2, VS)
    a('s_waitcnt vmcnt(0)')
    stamp(a, 3, VS)
    FF = 32
    q = DsQ(a)
    for ks in range(4):
        for u in range(2):
            r = FF + 8 * ks + 4 * u
            q.op(f'ds_read_b64_tr_b16 {P(r)}, v28 offset:{2048*ks+64*u}', (ks, u))
            q.op(f'ds_read_b64_tr_b16 {P(r+2)}, v28 offset:{2048*ks+64*u+512}', (ks, u))
    for ks in range(4):
        for u in range(2):
            r = FF + 8 * ks + 4 * u
            q.wait((ks, u))
            a(f'buffer_store_dwordx4 {Q(r)}, v{30+u}, s[{WS}:{WS+3}], s44 offen{SCF}')
            for w in range(4):
                a(f'v_dot2c_f32_bf16 v{16+2*u+(w&1)}, s45, v{r+w}')
        a('s_add_u32 s44, s44, 7168')
    a('s_nop 2')
    for u in range(2):
        c = 16 + 2 * u
        a(f'v_add_f32 v{c}, v{c}, v{c+1}')
        a(f'v_mov_b32 v{c+1}, v{c}')
        a(f'v_permlane32_swap_b32 v{c}, v{c+1}')
        a(f'v_add_f32 v{c}, v{c}, v{c+1}')
        rne(a, c + 1, c)
        a(f'v_sub_f32 v{c}, v{c}, v{c+1}')
        a(f'v_cvt_pk_bf16_f32 v{c}, v{c+1}, v{c}')
    a('s_mov_b32 exec_hi, 0')
    for u in range(2):
        a(f'buffer_store_dword v{16+2*u}, v{30+u}, s[{WS}:{WS+3}], s46 offen')
    a('s_branch cv_hend')
    a('cv_wd:')
    a.flush_hist()
    srd(a, SRC, 12, 1792 * 1024)
    a('v_lshrrev_b32 v14, 5, v2')
    a('v_lshlrev_b32 v14, 10, v14')
    a('v_and_b32 v15, 31, v2')
    a('v_lshl_add_u32 v14, v15, 4, v14')
    a('s_lshr_b32 s84, s2, 1')
    a('s_and_b32 s85, s2, 1')
    a('s_lshl_b32 s86, s84, 14')
    a('s_lshl_b32 s87, s85, 9')
    a('s_add_u32 s86, s86, s87')
    for i in range(8):
        a(f'buffer_load_dwordx4 v14, s[{SRC}:{SRC+3}], s86 offen lds')
        if i < 7:
            a('s_add_u32 m0, m0, 1024')
            a('s_add_u32 s86, s86, 2048')
    a('v_lshl_add_u32 v28, v26, 2, v24')
    a('v_lshlrev_b32 v28, 9, v28')
    a('v_lshl_add_u32 v28, v27, 5, v28')
    a('v_lshl_add_u32 v28, v25, 3, v28')
    a('v_add_u32 v28, s66, v28')
    a('s_mul_i32 s44, s85, 448')
    a('s_add_u32 s44, s44, s84')
    a('s_lshl_b32 s44, s44, 11')
    a('s_add_u32 s44, s44, %d' % WS_WDF)
    stamp(a, 2, VS)
    a('s_waitcnt vmcnt(0)')
    stamp(a, 3, VS)
    q = DsQ(a)
    for x in range(8):
        q.op(f'ds_read_b64_tr_b16 {P(FF+4*x)}, v28 offset:{64*x}', x)
        q.op(f'ds_read_b64_tr_b16 {P(FF+4*x+2)}, v28 offset:{64*x+4096}', x)
    for x in range(8):
        q.wait(x)
        a(f'buffer_store_dwordx4 {Q(FF+4*x)}, v6, s[{WS}:{WS+3}], s44 offen offset:{1024*(x&1)}{SCF}')
        if x & 1: a('s_add_u32 s44, s44, %d' % (112 * 2048))
    a('cv_hend:')
    stamp(a, 4, VS)
    stamp_end(a, 5, VS, 1, 248)
    a('conv_end:')
    a('s_endpgm')
    return name, 252, 102, None

G1_SLOT = 16384
G1_NS = 9
G1_RING = G1_SLOT * G1_NS
FF_CS = G1_RING
FF_H = FF_CS + 7168
FF_FLG = FF_H + 8192
FF_LDS = FF_FLG + 512
FF_WD = 4 * G1_SLOT
FF_RED = 0
BARS = {4: 8, 8: 12, 12: 16, 14: 18}
CSST = 11
CAPB = 4.7
DOT2 = 2
POLL0 = 5
LEAD = 4
FLAGN = {0: 88}
RK = 18
LK = 10
SC = ' sc1'
NOSTAT = 0
BAR14 = 7
BARGAP = 3
XALIGN = 0
XPAD = 0
PACE = 14
WDI0 = 8
WDIN = 0
PACE2 = 30
PH = [[0, 1, 2], [3, 4], [5, 6]]
PFL = [6, 6]
DA = 6
XR2 = 0
XPRIO = 0
NOBAR = 0
NODMA = 0

def epi_tile(g, T, C1, IR2):
    u = g + 8
    L = []
    for e in range(0, 8, 2): L.append(f'v_pk_mul_f32 {P(T+e)}, {P(g+e)}, {P(C1)}')
    for e in range(8): L.append(f'v_exp_f32 v{T+e}, v{T+e}')
    for e in range(0, 8, 2): L.append(f'v_pk_mul_f32 {P(g+e)}, {P(g+e)}, {P(u+e)}')
    for e in range(0, 8, 2): L.append(f'v_pk_fma_f32 {P(T+e)}, {P(T+e)}, {P(IR2)}, {P(IR2)}')
    for e in range(8): L.append(f'v_rcp_f32 v{T+e}, v{T+e}')
    for e in range(0, 8, 2): L.append(f'v_pk_mul_f32 {P(g+e)}, {P(g+e)}, {P(T+e)}')
    for w in range(4): L.append(f'v_cvt_pk_bf16_f32 v{T+8+w}, v{g+2*w}, v{g+2*w+1}')
    return L

def epi_tile_s(g, T, C1, IR2):
    u = g + 8
    L = []
    for e in range(8): L.append(f'v_mul_f32 v{T+e}, v{g+e}, v{C1}')
    for e in range(8):
        L.append(f'v_exp_f32 v{T+e}, v{T+e}')
        L.append(f'v_mul_f32 v{g+e}, v{g+e}, v{u+e}')
    for e in range(8): L.append(f'v_fma_f32 v{T+e}, v{T+e}, v{IR2}, v{IR2}')
    for e in range(8):
        L.append(f'v_rcp_f32 v{T+e}, v{T+e}')
        if e: L.append(f'v_mul_f32 v{g+e-1}, v{g+e-1}, v{T+e-1}')
    L.append(f'v_cvt_pk_bf16_f32 v{u}, v{g}, v{g+1}')
    L.append(f'v_mul_f32 v{g+7}, v{g+7}, v{T+7}')
    for w in range(1, 4): L.append(f'v_cvt_pk_bf16_f32 v{u+w}, v{g+2*w}, v{g+2*w+1}')
    return L

def gen_ffn(a):
    name = 'ffn_kernel'
    begin(a, name)
    W1F, HT, WS, OUT = 8, 12, 16, 40
    a('s_cmp_ge_u32 s2, 256')
    a('s_cbranch_scc1 ff_end')
    a('s_load_dwordx2 s[4:5], s[0:1], 96')
    a('s_load_dwordx2 s[6:7], s[0:1], 80')
    a('v_lshrrev_b32 v1, 6, v0')
    a('v_and_b32 v2, 63, v0')
    a('v_readfirstlane_b32 s46, v1')
    a('s_and_b32 s21, s2, 1')
    a('s_lshl_b32 s21, s21, 3')
    a('s_bfe_u32 s27, s2, 0x30003')
    a('s_add_u32 s21, s21, s27')
    a('s_bfe_u32 s22, s2, 0x20001')
    a('s_lshl_b32 s22, s22, 2')
    a('s_lshr_b32 s23, s2, 6')
    a('s_add_u32 s22, s22, s23')
    a('s_and_b32 s20, s46, 3')
    a('v_lshlrev_b32 v3, 4, v2')
    a('s_cmp_ge_u32 s46, 4')
    a('s_cbranch_scc1 ff_ld')
    a('v_lshlrev_b32 v9, 1, v0')
    a('v_add_u32 v9, %d, v9' % FF_FLG)
    a('v_mov_b32 v8, -1')
    a('ds_write_b16 v9, v8')
    a('v_lshrrev_b32 v16, 4, v2')
    a('v_and_b32 v17, 15, v2')
    VS = 2
    stamp_begin(a, VS)
    a('v_lshrrev_b32 v18, 2, v17')
    a('v_and_b32 v19, 3, v17')
    a('s_waitcnt lgkmcnt(0)')
    a('s_barrier')
    a('v_lshrrev_b32 v20, 1, v16')
    a('v_and_b32 v21, 1, v16')
    a('v_lshl_add_u32 v6, v20, 3, v18')
    a('v_lshlrev_b32 v6, 8, v6')
    a('v_xor_b32 v18, s20, v18')
    a('v_lshl_add_u32 v6, v18, 6, v6')
    a('v_lshl_add_u32 v6, v21, 5, v6')
    a('v_lshl_add_u32 v6, v19, 3, v6')
    a('v_add_u32 v7, 49152, v6')
    a('v_add_u32 v8, 98304, v6')
    a('v_add_u32 v4, 49152, v3')
    a('v_add_u32 v5, 98304, v3')
    a('v_lshlrev_b32 v9, 2, v19')
    a('v_add_u32 v9, %d, v9' % FF_FLG)
    a('s_lshl_b32 s37, s21, 2')
    a('s_add_u32 s37, s37, s20')
    a('s_mul_i32 s37, s37, 112')
    a('s_mul_i32 s38, s22, 7')
    a('s_add_u32 s37, s37, s38')
    a('s_lshl_b32 s37, s37, 10')
    a('s_add_u32 s37, s37, %d' % WS_ACT)
    a('s_add_u32 s36, s37, 4096')
    a('s_lshl_b32 s38, s21, 1')
    a('s_lshr_b32 s39, s20, 1')
    a('s_add_u32 s38, s38, s39')
    a('s_lshl_b32 s38, s38, 2')
    a('s_lshr_b32 s39, s22, 2')
    a('s_add_u32 s38, s38, s39')
    a('s_lshl_b32 s38, s38, 3')
    a('s_and_b32 s39, s22, 3')
    a('s_lshl_b32 s39, s39, 1')
    a('s_add_u32 s38, s38, s39')
    a('s_and_b32 s39, s20, 1')
    a('s_add_u32 s38, s38, s39')
    a('s_lshl_b32 s38, s38, 7')
    a('s_add_u32 s38, s38, %d' % WS_GF)
    a('v_mov_b32 v10, 1')
    a('v_mov_b32 v11, 0')
    WF = [32, 48]; ACC = 64; HR = 128
    S1, S2, T, PV = 12, 14, 16, 1
    for r in range(4): a(f'v_mov_b32 v{S1+r}, 0')
    a('s_mov_b32 s34, 0xffff0000')
    a('s_mov_b32 s35, 0x3f803f80')
    srd(a, WS, 4, WS_END)
    WA = [3, 4, 5]; HA = [6, 7, 8]
    def lds(regs, byte):
        k = min(byte // 49152, 2)
        return f'v{regs[k]} offset:{byte - 49152*k}'
    slot = lambda st: (st % G1_NS) * G1_SLOT
    def rdW(ks, f): return f'ds_read_b128 {Q(WF[ks&1]+4*f)}, ' + lds(WA, slot(ks//2) + 4096*(ks&1) + 1024*f)
    def rdH(ks):
        b = slot(ks//2) + 8192 + 4096*(ks&1)
        return [f'ds_read_b64_tr_b16 {P(HR+4*ks)}, ' + lds(HA, b), f'ds_read_b64_tr_b16 {P(HR+4*ks+2)}, ' + lds(HA, b + 1024)]
    def stats(h):
        U = []; A = []
        for w in range(4):
            t = T + 2 * w
            U.append([f'v_lshlrev_b32 v{t}, 16, v{h+w}', f'v_and_b32 v{t+1}, s34, v{h+w}'])
            A.append([f'v_add_f32 v{S1}, v{S1}, v{t}', f'v_fmac_f32 v{S2}, v{t}, v{t}', f'v_add_f32 v{S1+1}, v{S1+1}, v{t+1}', f'v_fmac_f32 v{S2+1}, v{t+1}, v{t+1}'])
        return U[0] + U[1] + A[0] + U[2] + A[1] + U[3] + A[2] + A[3]
    def MF(d, av, bv, first):
        c = f'v[{d}:{d+15}]'
        return f'v_mfma_f32_32x32x16_bf16 {c}, {Q(av)}, {Q(bv)}, ' + ('0' if first else c)
    q = DsQ(a)
    stubs = []
    def poll(st): q.op(f'ds_read_b32 v{PV}, v9 offset:{16*st}', ('p', st))
    def check(st):
        q.wait(('p', st))
        a(f'v_cmp_ne_u32 vcc, 0, v{PV}')
        a(f's_cbranch_vccnz ff_xs{st}')
        a(f'ff_xg{st}:')
        stubs.append(st)
    seq = [(4, i) for i in range(8)] + [(t, 32) for t in range(4)] + [(4, i) for i in range(8, 33)] + [(5, i) for i in range(33)] + [(6, i) for i in range(33)]
    accof = {0: ACC, 1: ACC + 16, 2: ACC + 32, 3: ACC + 48, 4: WF[1], 5: ACC, 6: ACC + 16}
    ring = [32, 36, 40, 44, 24, 28]
    breg = {}
    nb = [0]
    def rdB():
        n = nb[0]; nb[0] += 1
        t, i = seq[n]
        if i < 32 and i % 16 == 0: check(16 + 2 * (t - 4) + i // 16)
        r = ring.pop(0); breg[n] = r
        byte = FF_CS + 1024 * t if i == 32 else slot(16 + 2 * (t - 4) + i // 16) + 1024 * (i % 16)
        q.op(f'ds_read_b128 {Q(r)}, ' + lds(WA, byte), ('b', n))
        if i < 32 and i % 16 == 8 and (t, i) != (6, 24): poll(17 + 2 * (t - 4) + i // 16)
    stamp(a, 1, VS)
    a('s_mov_b32 s44, 0')
    lds_spin(a, PV, 9, 0, 44)
    stamp(a, 2, VS)
    for ks in range(2):
        for x in rdH(ks): q.op(x, ('r', ks))
        for f in range(4): q.op(rdW(ks, f), ('r', ks))
        if ks == 0: poll(1)
    for ks in range(32):
        S = stats(HR + 4 * ks)
        nk = ks + 2
        cuts = [0, 4, 10, 17, 24] if ks % 2 == 0 else [0, 5, 11, 18, 24]
        if NOSTAT: S = []
        if DOT2:
            S = []
            if ks % DOT2 == DOT2 - 1:
                for r in range(HR + 4 * (ks - DOT2 + 1), HR + 4 * ks + 4):
                    S += [f'v_dot2c_f32_bf16 v{S1+(r&1)}, s35, v{r}', f'v_dot2c_f32_bf16 v{S2+(r&1)}, v{r}, v{r}']
            cuts = [0, 0, 0, 0, len(S)]
        q.wait(('r', ks))
        for f in range(4):
            a(MF(ACC + 16 * f, WF[ks&1] + 4 * f, HR + 4 * ks, ks == 0))
            if f == 0:
                if ks % 2 == 0 and nk < 32: check(nk // 2)
                if ks % 2 == 1 and ks < 31: poll((ks + 3) // 2)
            if f == 2 and ks % 2 == 0 and ks // 2 in BARS: a('s_barrier')
            if nk < 32:
                q.op(rdW(nk, f), ('r', nk))
                if f < 2: q.op(rdH(nk)[f], ('r', nk))
            elif ks == 30 or f < 2:
                rdB()
            for x in S[cuts[f]:cuts[f+1]]: a(x)
    stamp(a, 3, VS)
    if STAMP: a(f'v_writelane_b32 v{VS}, s44, 13')
    C1, IR2 = 6, 7
    if DOT2: a('s_nop 2')
    b = Asm()
    b(f'v_add_f32 v{T}, v{S1}, v{S1+1}')
    b(f'v_add_f32 v{T+2}, v{S2}, v{S2+1}')
    b(f'v_mov_b32 v{T+1}, v{T}')
    b(f'v_mov_b32 v{T+3}, v{T+2}')
    b(f'v_permlane32_swap_b32 v{T}, v{T+1}')
    b(f'v_permlane32_swap_b32 v{T+2}, v{T+3}')
    b(f'v_add_f32 v{T}, v{T}, v{T+1}')
    b(f'v_add_f32 v{T+2}, v{T+2}, v{T+3}')
    b(f'v_mul_f32 v{T}, 0xbb000000, v{T}')
    b(f'v_mul_f32 v{T+2}, 0x3b000000, v{T+2}')
    for w in range(4): b(f'v_cvt_pk_bf16_f32 v{S1+w}, v{T}, v{T}')
    b(f'v_fma_f32 v{T+2}, -v{T}, v{T}, v{T+2}')
    b(f'v_max_f32 v{T+2}, 0, v{T+2}')
    ln_sigma(b, T + 2, C1)
    b(f'v_mul_f32 v{IR2}, v{T+2}, v{T+2}')
    b(f'v_mul_f32 v{C1}, 0xbfb8aa3b, v{C1}')
    fill = [(l.strip(), 0) for l in b.lines if not l.strip().startswith('s_nop')]
    vq = []
    def store(t): return f'buffer_store_dwordx4 {Q(accof[t]+8)}, v3, s[{WS}:{WS+3}], s{37 if t < 4 else 36} offen offset:{1024*(t&3)}{SC}'
    for t in range(6):
        e = seq.index((t, 32)) + 2
        fill += [(x, e) for x in epi_tile_s(accof[t], T, C1, IR2)] + [(store(t), e)]
    wt = lambda x: 2 if x.split()[0] in TRANS else 1
    budget = 0.0
    done_at = {}
    for n, (t, i) in enumerate(seq):
        q.wait(('b', n))
        if i == 0 and t >= 5: assert (t - 5) in done_at, 'accumulator not free yet'
        a(MF(accof[t], breg[n], S1 if i == 32 else HR + 4 * i, i == 0))
        ring.append(breg[n])
        if (t, i) == (5, 1): a('s_barrier')
        if nb[0] < len(seq): rdB()
        budget = min(budget + CAPB, CAPB + 1)
        while fill and fill[0][1] <= n and budget >= wt(fill[0][0]):
            x = fill.pop(0)[0]; budget -= wt(x); a(x)
            if x.startswith('buffer_store'):
                done_at[len(done_at)] = n; vq.append(len(done_at) - 1)
        for ph, g in FLAGN.items():
            if g == n:
                a(f's_waitcnt vmcnt({len(vq) - 1 - vq.index(PH[ph][-1])})')
                a('s_mov_b64 exec, 1')
                a(f'buffer_store_dword v10, v11, s[{WS}:{WS+3}], s38 offen offset:{4*ph} sc1')
                a('s_mov_b64 exec, -1')
                vq.append('f')
    stamp(a, 4, VS)
    for x, _ in fill:
        a(x)
        if x.startswith('buffer_store'):
            done_at[len(done_at)] = 999; vq.append(len(done_at) - 1)
    print('phase B leftover fillers:', len(fill), 'stores at', done_at, file=sys.stderr)
    for x in epi_tile_s(accof[6], T, C1, IR2): a(x)
    a(store(6)); vq.append(6)
    stamp(a, 5, VS)
    a('s_mov_b64 exec, 1')
    for ph in range(len(PH)):
        if ph in FLAGN: continue
        a(f's_waitcnt vmcnt({len(vq) - 1 - vq.index(PH[ph][-1])})')
        a(f'buffer_store_dword v10, v11, s[{WS}:{WS+3}], s38 offen offset:{4*ph} sc1')
        vq.append('f')
    stamp(a, 6, VS)
    stamp_end(a, 7, VS, 2, 16)
    a('s_endpgm')
    for st in stubs:
        a(f'ff_xs{st}:')
        lds_spin(a, PV, 9, 16 * st, 44)
        a(f's_branch ff_xg{st}')
    a('ff_ld:')
    a.flush_hist()
    VS = 1
    stamp_begin(a, VS)
    a('s_mul_i32 s28, s22, %d' % W1F_NT)
    a('s_lshl_b32 s25, s21, 17')
    a('s_lshl_b32 s26, s20, 11')
    a('v_add_u32 v7, s26, v3')
    a('s_lshr_b32 s30, s20, 1')
    a('s_mul_i32 s30, s30, 7168')
    a('s_and_b32 s24, s20, 1')
    a('s_lshl_b32 s24, s24, 11')
    a('s_add_u32 s30, s30, s24')
    a('s_mov_b32 s31, 0')
    a('s_lshl_b32 s24, s20, 12')
    a('s_mul_i32 s32, s20, %d' % (4 * 7168))
    a('s_lshl_b32 s29, s20, 2')
    a('s_add_u32 s29, s29, %d' % FF_FLG)
    a('s_mov_b32 s47, 0x7f000000')
    a('s_add_u32 m0, s26, 8192')
    a('s_waitcnt lgkmcnt(0)')
    srd(a, HT, 4, 131072, WS_HT, offreg=25)
    srd(a, W1F, 4, 33 * 7168, WS_W1F, offreg=28)
    pc = [PACE]
    def pace():
        if pc[0]: a(f's_waitcnt vmcnt({pc[0]})')
    def dma(j):
        sl = (j % G1_NS) * G1_SLOT
        if j < 16:
            if j: a('s_add_u32 m0, s26, %d' % (sl + 8192))
            pace()
            a(f'buffer_load_dwordx4 v7, s[{HT}:{HT+3}], s31 offen lds')
            a(f'buffer_load_dwordx4 v7, s[{HT}:{HT+3}], s31 offen offset:1024 lds')
            a('s_add_u32 m0, s26, %d' % sl)
            a('s_add_u32 s31, s31, 8192')
            pace()
            a(f'buffer_load_dwordx4 v3, s[{W1F}:{W1F+3}], s30 offen lds')
            a(f'buffer_load_dwordx4 v3, s[{W1F}:{W1F+3}], s30 offen offset:1024 lds')
            a('s_add_u32 s30, s30, 14336')
        else:
            t, hf = 4 + (j - 16) // 2, (j - 16) % 2
            a('s_add_u32 m0, s24, %d' % sl)
            for i in range(4):
                a('s_add_u32 s30, s32, %d' % (1024 * t + 7168 * 16 * hf + 6144 * i))
                if i % 2 == 0: pace()
                a(f'buffer_load_dwordx4 v3, s[{W1F}:{W1F+3}], s30 offen offset:{1024*i} lds')
        if j == CSST:
            a('s_add_u32 m0, s26, %d' % FF_CS)
            a('s_mov_b32 s33, %d' % (32 * 7168))
            pace()
            a(f'buffer_load_dwordx4 v7, s[{W1F}:{W1F+3}], s33 offen lds')
            a(f'buffer_load_dwordx4 v7, s[{W1F}:{W1F+3}], s33 offen offset:1024 lds')
        if j == 0: a('s_barrier')
        a('s_add_u32 m0, s29, %d' % (16 * j))
        a('s_mov_b64 exec, 1')
        a(f'buffer_load_dword v3, s[{W1F}:{W1F+3}], s47 offen lds')
        a('s_mov_b64 exec, -1')
    stamp(a, 1, VS)
    pos2s = {st + LEAD: st for st in BARS}
    allowed = G1_NS - 1
    posmap = [(p, f) for ph in PH for p in range(4) for f in ph]
    ACC = 16
    WDR = 112
    wreg = {}
    nwd = 0
    def wd_off(k):
        p, f = posmap[k]
        return f's_add_u32 s55, s{72+p}, {2048*f}'
    def wd_reg_load():
        nonlocal nwd
        k = nwd; nwd += 1
        wreg[k] = WDR + 8 * k
        a(wd_off(k))
        pace()
        a(f'buffer_load_dwordx4 {Q(wreg[k])}, v8, s[{WS}:{WS+3}], s55 offen')
        pace()
        a(f'buffer_load_dwordx4 {Q(wreg[k]+4)}, v9, s[{WS}:{WS+3}], s55 offen')
    for j in range(22):
        assert j <= allowed, (j, allowed)
        dma(j)
        if j == 1:
            a('s_and_b32 s48, s2, 7')
            a('s_lshl_b32 s48, s48, 2')
            a('s_bfe_u32 s49, s2, 0x20003')
            a('s_add_u32 s48, s48, s49')
            a('s_lshr_b32 s49, s2, 5')
            a('s_mul_i32 s50, s48, 224')
            a('s_mul_i32 s52, s20, 28')
            a('s_add_u32 s50, s50, s52')
            a('s_lshl_b32 s50, s50, 10')
            a('s_add_u32 s50, s50, %d' % WS_ACT)
            a('s_mul_i32 s51, s49, 112')
            a('s_add_u32 s51, s51, s52')
            a('s_lshl_b32 s51, s51, 11')
            a('s_add_u32 s51, s51, %d' % WS_WDF)
            a('s_add_u32 s53, s48, s49')
            a('s_and_b32 s53, s53, %d' % (3 if XR2 else 0))
            for p in range(4):
                a(f's_xor_b32 s54, s53, {p}')
                a('s_mul_i32 s54, s54, 7168')
                a(f's_add_u32 s{68+p}, s50, s54')
                a('s_lshl_b32 s54, s54, 1')
                a(f's_add_u32 s{72+p}, s51, s54')
            a('s_lshr_b32 s56, s20, 1')
            a('s_and_b32 s57, s20, 1')
            a('s_lshl_b32 s58, s56, 10')
            a('v_add_u32 v8, s58, v3')
            a('v_xor_b32 v9, 0x400, v8')
            a('s_mul_i32 s58, s57, 0x1c000')
            a('v_add_u32 v10, s58, v3')
            a('v_xor_b32 v11, 0x1c000, v10')
            srd(a, WS, 4, WS_END)
            srd(a, OUT, 6, 2 * MiB)
        if WDI0 <= j < WDI0 + WDIN: wd_reg_load()
        if j in pos2s:
            a('s_barrier')
            allowed = max(allowed, pos2s[j] - 1 + G1_NS)
    stamp(a, 2, VS)
    n0 = nwd
    pc[0] = PACE2
    while nwd < RK:
        wd_reg_load()
        if nwd - n0 == BAR14 + 1: a('s_barrier')
    assert RK - n0 > BAR14
    a('s_mul_i32 s58, s20, 20480')
    a('s_add_u32 s58, s58, %d' % FF_WD)
    a('v_add_u32 v12, s58, v3')
    a('v_lshrrev_b32 v5, 3, v2')
    a('v_and_b32 v6, 7, v2')
    a('s_and_b32 s59, s48, 1')
    a('s_lshl_b32 s59, s59, 3')
    a('v_or_b32 v6, s59, v6')
    a('v_and_b32 v7, 3, v5')
    a('v_lshlrev_b32 v7, 2, v7')
    a('v_xor_b32 v6, v6, v7')
    a('v_lshlrev_b32 v5, 8, v5')
    a('v_lshl_add_u32 v5, v6, 4, v5')
    a('s_lshl_b32 s59, s49, 14')
    a('s_lshl_b32 s60, s20, 12')
    a('s_add_u32 s59, s59, s60')
    a('s_lshr_b32 s60, s48, 1')
    a('s_lshl_b32 s60, s60, 17')
    a('s_add_u32 s59, s59, s60')
    a('s_add_u32 s59, s59, %d' % WS_HT)
    a('s_add_u32 s60, s59, 0x800')
    a('s_lshl_b32 s61, s57, 11')
    a('s_lshl_b32 s64, s56, 12')
    a('s_add_u32 s61, s61, s64')
    a('s_add_u32 m0, s61, %d' % FF_H)
    a(f'buffer_load_dwordx4 v5, s[{WS}:{WS+3}], s59 offen lds')
    a('s_add_u32 m0, m0, 1024')
    a(f'buffer_load_dwordx4 v5, s[{WS}:{WS+3}], s60 offen lds')
    a('v_and_b32 v4, 15, v2')
    a('v_lshrrev_b32 v5, 4, v2')
    a('v_lshrrev_b32 v6, 2, v4')
    a('v_and_b32 v7, 3, v4')
    a('v_lshrrev_b32 v13, 1, v5')
    a('v_and_b32 v5, 1, v5')
    a('v_lshl_add_u32 v14, v13, 2, v6')
    a('v_lshlrev_b32 v14, 7, v14')
    a('v_lshl_add_u32 v14, v5, 5, v14')
    a('v_lshl_add_u32 v14, v7, 3, v14')
    a('s_lshl_b32 s60, s57, 6')
    a('s_add_u32 s59, s64, s60')
    a('s_add_u32 s59, s59, %d' % FF_H)
    a('v_add_u32 v14, s59, v14')
    a('v_and_b32 v15, 31, v2')
    a('v_lshlrev_b32 v15, 10, v15')
    a('v_lshl_add_u32 v15, v13, 4, v15')
    a('s_lshl_b32 s62, s48, 16')
    a('s_lshl_b32 s60, s57, 15')
    a('s_add_u32 s62, s62, s60')
    a('s_lshl_b32 s60, s49, 7')
    a('s_add_u32 s62, s62, s60')
    a('s_lshl_b32 s60, s56, 6')
    a('s_add_u32 s62, s62, s60')
    a('s_mov_b32 s63, 0xffff0000')
    a('s_lshl_b32 s59, s48, 2')
    a('s_add_u32 s59, s59, s20')
    a('s_lshl_b32 s59, s59, 10')
    a('s_add_u32 s59, s59, %d' % WS_GF)
    a('v_and_b32 v13, 7, v2')
    a('v_lshlrev_b32 v13, 7, v13')
    a('v_bfe_u32 v4, v2, 3, 2')
    a('v_lshl_add_u32 v13, v4, 2, v13')
    a('s_mov_b32 s60, 0')
    for p in (1, 2, 3):
        a(f's_xor_b32 s33, s20, {p}')
        a('s_mul_i32 s33, s33, 12288')
        a(f'v_add_u32 v{3+p}, s33, v3')
    a('s_mul_i32 s33, s20, 12288')
    a('v_add_u32 v7, s33, v3')
    PVR = 2
    poll_ld = f'buffer_load_dword v{PVR}, v13, s[{WS}:{WS+3}], s59 offen sc1'
    def poll_loop(ph, back=None):
        L = f'ff_poll{ph}'
        a(f'{L}:')
        a(poll_ld)
        a('s_add_u32 s60, s60, 1')
        a('s_waitcnt vmcnt(0)')
        a(f'v_cmp_eq_u32 vcc, 0, v{PVR}')
        a(f's_and_b32 s65, vcc_lo, {hex(0xff << (8*ph))}')
        a(f's_cbranch_scc0 ff_rdy{ph}')
        a('s_cmp_lt_u32 s60, 0x40000')
        a('s_sleep 2')
        a(f's_cbranch_scc1 {L}')
        if back: a(f's_branch ff_rdy{ph}')
    order = []
    a('s_mov_b32 m0, s58')
    for k in range(LK):
        a(wd_off(RK + k))
        pace()
        a(f'buffer_load_dwordx4 v8, s[{WS}:{WS+3}], s55 offen lds')
        a('s_add_u32 m0, m0, 1024')
        pace()
        a(f'buffer_load_dwordx4 v9, s[{WS}:{WS+3}], s55 offen lds')
        a('s_add_u32 m0, m0, 1024')
        order += ['w', 'w']
        if k == LK - 1 - POLL0:
            a(poll_ld); order.append(('poll', 0))
    stamp(a, 3, VS)
    free = [80, 88, 96, 104]
    areg = {}
    q = DsQ(a)
    nact = 0; nwl = RK
    pstart = {}
    c = 0
    for ph, tl in enumerate(PH):
        pstart[c] = ph; c += 4 * len(tl)
    vdone = [0]
    def vwait(tag):
        last = max(i for i, o in enumerate(order) if o == tag)
        if last + 1 > vdone[0]:
            a(f's_waitcnt vmcnt({len(order) - 1 - last})')
            vdone[0] = last + 1
    def issue(k_now):
        nonlocal nact, nwl
        while True:
            if nwl < 28 and nwl <= k_now + 3 and free:
                r = free.pop(0); wreg[nwl] = r
                lo = 2048 * (nwl - RK)
                q.op(f'ds_read_b128 {Q(r)}, v12 offset:{lo}', nwl)
                q.op(f'ds_read_b128 {Q(r+4)}, v12 offset:{lo+1024}', nwl)
                nwl += 1
            elif nact < 28 and nact <= k_now + DA and free:
                if nact in pstart:
                    ph = pstart[nact]
                    vwait(('poll', ph))
                    a(f'v_cmp_eq_u32 vcc, 0, v{PVR}')
                    a(f's_and_b32 s65, vcc_lo, {hex(0xff << (8*ph))}')
                    a(f's_cbranch_scc1 ff_poll{ph}')
                    a(f'ff_rdy{ph}:')
                    if ph == 0: stamp(a, 4, VS)
                r = free.pop(0); areg[nact] = r
                p, f = posmap[nact]
                a(f's_add_u32 s61, s{68+p}, {1024*f}')
                a(f'buffer_load_dwordx4 {Q(r)}, v10, s[{WS}:{WS+3}], s61 offen{SC}')
                a(f'buffer_load_dwordx4 {Q(r+4)}, v11, s[{WS}:{WS+3}], s61 offen{SC}')
                order.extend([nact] * 2)
                nact += 1
                if nact + 3 in pstart:
                    a(poll_ld); order.append(('poll', pstart[nact + 3]))
            else:
                break
    issue(0)
    RESR = None
    for k in range(28):
        vwait(k)
        if RK <= k: q.wait(k)
        for p in (3, 2, 1, 0):
            px, py = p >> 1, p & 1
            c = f'v[{ACC+16*p}:{ACC+16*p+15}]'
            a(f'v_mfma_f32_32x32x16_bf16 {c}, {Q(wreg[k]+4*px)}, {Q(areg[k]+4*py)}, {"0" if k == 0 else c}')
        free += [wreg[k], areg[k]]
        issue(k + 1)
        if k == 25:
            a('s_barrier')
            RESR = free.pop(0)
            for x in range(4):
                q.op(f'ds_read_b64_tr_b16 {P(RESR+2*x)}, v14 offset:{1024*x}', 'res')
    stamp(a, 5, VS)
    for p in (3, 2, 1):
        for j in range(4):
            q.op(f'ds_write_b128 v{3+p}, {Q(ACC+16*p+4*j)} offset:{FF_RED+(p-1)*4096+1024*j}', 'w')
    R = 224 if 224 != RESR and 232 != RESR else 192
    assert RESR not in (R, R + 8)
    q.wait('res')
    for x in range(4):
        a(f'v_lshlrev_b32 v{R+4*x}, 16, v{RESR+2*x}')
        a(f'v_and_b32 v{R+4*x+1}, s63, v{RESR+2*x}')
        a(f'v_lshlrev_b32 v{R+4*x+2}, 16, v{RESR+2*x+1}')
        a(f'v_and_b32 v{R+4*x+3}, s63, v{RESR+2*x+1}')
    for r in range(0, 16, 2):
        a(f'v_pk_add_f32 {P(R+r)}, {P(R+r)}, {P(ACC+r)}')
    a('s_waitcnt lgkmcnt(0)')
    a('s_barrier')
    stamp(a, 6, VS)
    for j in range(4):
        for p in range(3):
            a(f'ds_read_b128 {Q(32+16*p+4*j)}, v7 offset:{FF_RED+4096*p+1024*j}')
    for j in range(4):
        a(f's_waitcnt lgkmcnt({9-3*j})')
        for r in range(4*j, 4*j+4, 2):
            a(f'v_pk_add_f32 {P(R+r)}, {P(R+r)}, {P(32+r)}')
            a(f'v_pk_add_f32 {P(48+r)}, {P(48+r)}, {P(64+r)}')
        for r in range(4*j, 4*j+4, 2):
            a(f'v_pk_add_f32 {P(R+r)}, {P(R+r)}, {P(48+r)}')
        a(f'v_cvt_pk_bf16_f32 v{100+2*j}, v{R+4*j}, v{R+4*j+1}')
        a(f'v_cvt_pk_bf16_f32 v{101+2*j}, v{R+4*j+2}, v{R+4*j+3}')
        if j & 1:
            p = j >> 1
            a(f'v_permlane32_swap_b32 v{100+4*p}, v{102+4*p}')
            a(f'v_permlane32_swap_b32 v{101+4*p}, v{103+4*p}')
            a(f'buffer_store_dwordx4 {Q(100+4*p)}, v15, s[{OUT}:{OUT+3}], s62 offen offset:{32*p}')
    stamp(a, 7, VS)
    stamp_end(a, 8, VS, 2, 110)
    a('ff_end:')
    a('s_endpgm')
    for ph in range(len(PH)): poll_loop(ph, True)
    return name, 256, 102, None

class DsQ:
    def __init__(self, a):
        self.a = a; self.q = []; self.done = 0
    def op(self, txt, tag=None):
        self.a(txt); self.q.append(tag)
    def wait(self, *tags):
        idx = max(len(self.q) - 1 - self.q[::-1].index(t) for t in tags) + 1
        if idx > self.done:
            n = min(len(self.q) - idx, 15)
            self.a(f's_waitcnt lgkmcnt({n})')
            self.done = len(self.q) - n

def main(out):
    a = Asm()
    ks = []
    launches = [('prep_kernel', 256, 512, 0), ('conv_kernel', 256, 512, CV_LDS), ('ffn_kernel', 256, 512, FF_LDS)]
    gens = [gen_prep, gen_conv, gen_ffn]
    if TLA >= 0:
        launches.append(('tl_kernel', 1, 64, 0)); gens.append(gen_tl)
    txt = HEADER
    for n, g, b, l in launches:
        txt += f'; @launch kernel={n} grid=({g},1,1) block=({b},1,1) lds={l}\n'
    txt += '.amdgcn_target "amdgcn-amd-amdhsa--gfx950"\n.text\n'
    for g in gens:
        ks.append(g(a))
    txt += a.text() + 'code_end:\n'
    txt += '.section .rodata,"a"\n'
    for n, v, s, acc in ks:
        txt += kernel_desc(n, v, s, acc)
    open(out, 'w').write(txt)

if __name__ == '__main__':
    for arg in sys.argv[2:]:
        if arg == 'stamp': STAMP = True
        elif '=' in arg:
            k, v = arg.split('='); globals()[k] = int(v, 0)
    main(sys.argv[1] if len(sys.argv) > 1 else 'sequential_preLN__ssm_conv_h3__swiglu_ffn__prompt.s')
```

```python
import sys
sys.path.insert(0, 'dev')
from asmlib import *

MiB = 1 << 20
CS = 4224
CHB = 512 * CS
import os
WSB = int(os.environ.get('WSB', '0')) * MiB
WS_XR0 = WSB
XBS = 8192 + 128
WS_XB = WSB + CHB
WS_ST = WS_XB + 256 * XBS
WS_GF = WS_ST + 32768
WS_HT = WS_GF + 4 * 131072
WS_W1F = WS_HT + 2 * MiB
W1F_NT = 232 * 1024
PF_FILT = 1
PF_CODE = 1
SC_HT = 0
SC_FMT = 1
PF_WD = 1
PF_WB = 1
FMT_IN_PREP = 0
NFMT = 224
NOHELP = 0
ROT1 = 0
ROT2 = 1
WS_WDF = WS_W1F + 16 * W1F_NT
WS_ACT = WS_WDF + 1792 * 1024
WS_END = WS_ACT + 7 * MiB
WS_DBG = 32 * MiB

HEADER = open('sequential_preLN__ssm_conv_h3__swiglu_ffn__prompt.s.ref').read().split('; Override launch')[0]

def srd(a, d, base, size, off=None, offreg=None):
    if off:
        a(f's_add_u32 s{d}, s{base}, {hex(off)}')
        a(f's_addc_u32 s{d+1}, s{base+1}, 0')
        if offreg is not None:
            a(f's_add_u32 s{d}, s{d}, s{offreg}')
            a(f's_addc_u32 s{d+1}, s{d+1}, 0')
    elif offreg is not None:
        a(f's_add_u32 s{d}, s{base}, s{offreg}')
        a(f's_addc_u32 s{d+1}, s{base+1}, 0')
    else:
        a(f's_mov_b32 s{d}, s{base}')
        a(f's_mov_b32 s{d+1}, s{base+1}')
    a(f's_mov_b32 s{d+2}, {hex(size)}')
    a(f's_mov_b32 s{d+3}, 0x20000')

STAMP = False
def stamp(a, i, vst):
    if not STAMP: return
    a('s_memtime s[98:99]')
    a('s_waitcnt lgkmcnt(0)')
    a(f'v_writelane_b32 v{vst}, s98, {i}')
def stamp_rt(a, i, vst):
    if not STAMP: return
    a('s_memrealtime s[98:99]')
    a('s_waitcnt lgkmcnt(0)')
    a(f'v_writelane_b32 v{vst}, s98, {i}')
def stamp_begin(a, vst):
    if not STAMP: return
    a(f'v_mov_b32 v{vst}, 0')
    stamp_rt(a, 15, vst)
    stamp(a, 0, vst)
def stamp_end(a, i, vst, kidx, tmp):
    if not STAMP: return
    a('s_mov_b64 exec, -1')
    a('s_waitcnt vmcnt(0)')
    stamp(a, i, vst)
    stamp_rt(a, 14, vst)
    a('s_load_dwordx2 s[96:97], s[0:1], 96')
    a('s_waitcnt lgkmcnt(0)')
    srd(a, 92, 96, 4 << 20, WS_DBG)
    a(f'v_lshrrev_b32 v{tmp}, 6, v0')
    a(f'v_lshlrev_b32 v{tmp}, 6, v{tmp}')
    a(f'v_and_b32 v{tmp+1}, 63, v0')
    a(f'v_lshl_add_u32 v{tmp}, v{tmp+1}, 2, v{tmp}')
    a('s_lshl_b32 s98, s2, 9')
    a(f's_add_u32 s98, s98, {kidx*262144}')
    a('s_mov_b32 exec_lo, 0xffff')
    a('s_mov_b32 exec_hi, 0')
    a(f'buffer_store_dword v{vst}, v{tmp}, s[92:95], s98 offen')

TLA = -1
TLB = -1
TLM = 4
_tl_idx = [0]
def tl_mark(a):
    if TLA < 0: return
    k = _tl_idx[0]; _tl_idx[0] += 1
    L = a.newlabel('tl')
    a('s_cmp_lg_u32 s2, 0')
    a(f's_cbranch_scc1 {L}')
    a('s_memrealtime s[98:99]')
    a('s_load_dwordx2 s[96:97], s[0:1], 96')
    a('s_waitcnt lgkmcnt(0)')
    srd(a, 92, 96, 4096, WS_DBG)
    a('v_mov_b32 v1, s98')
    a('v_mov_b32 v2, 0')
    a(f'buffer_store_dword v1, v2, s[92:95], 0 offen offset:{4*k}')
    a(f'{L}:')
def gen_tl(a):
    name = 'tl_kernel'
    a.raw(f'.globl {name}'); a.raw('.p2align 8'); a.raw(f'.type {name},@function'); a.raw(f'{name}:')
    a.flush_hist()
    a('s_cmp_lg_u32 s2, 0')
    a('s_cbranch_scc1 tl_end')
    a('s_memrealtime s[20:21]')
    a('s_load_dwordx2 s[4:5], s[0:1], 96')
    a('s_waitcnt lgkmcnt(0)')
    srd(a, 8, 4, 4096, WS_DBG)
    a('v_mov_b32 v2, 0')
    a('buffer_load_dwordx4 v[4:7], v2, s[8:11], 0 offen')
    a('s_waitcnt vmcnt(0)')
    a('v_mov_b32 v%d, s20' % (4 + _tl_idx[0]))
    a(f'v_sub_u32 v9, v{4+TLB}, v{4+TLA}')
    a('v_readfirstlane_b32 s22, v9')
    a('s_min_u32 s22, s22, 5000')
    a(f's_mul_i32 s22, s22, {TLM}')
    a('tl_spin:')
    a('s_memrealtime s[24:25]')
    a('s_waitcnt lgkmcnt(0)')
    a('s_sub_u32 s24, s24, s20')
    a('s_cmp_lt_u32 s24, s22')
    a('s_cbranch_scc1 tl_spin')
    a('tl_end:')
    a('s_endpgm')
    return name, 16, 32, None

def begin(a, name):
    a.raw(f'.globl {name}')
    a.raw('.p2align 8')
    a.raw(f'.type {name},@function')
    a.raw(f'{name}:')
    a.flush_hist()
    tl_mark(a)

def red32(a, v, t):
    a(f'v_add_f32_dpp v{v}, v{v}, v{v} quad_perm:[1,0,3,2] row_mask:0xf bank_mask:0xf')
    a(f'v_add_f32_dpp v{v}, v{v}, v{v} quad_perm:[2,3,0,1] row_mask:0xf bank_mask:0xf')
    a(f'v_add_f32_dpp v{v}, v{v}, v{v} row_half_mirror row_mask:0xf bank_mask:0xf')
    a(f'v_add_f32_dpp v{v}, v{v}, v{v} row_mirror row_mask:0xf bank_mask:0xf')
    a(f'v_mov_b32 v{t}, v{v}')
    a(f'v_permlane16_swap_b32 v{v}, v{t}')
    a(f'v_add_f32 v{v}, v{v}, v{t}')

def rne(a, d, s):
    a(f'v_cvt_pk_bf16_f32 v{d}, v{s}, v{s}')
    a(f'v_lshlrev_b32 v{d}, 16, v{d}')

def ln_sigma(a, var, rs):
    rne(a, var, var)
    a(f'v_add_f32 v{var}, 0x3727c5ac, v{var}')
    rne(a, var, var)
    a(f'v_sqrt_f32 v{var}, v{var}')
    rne(a, var, var)
    a(f'v_rcp_f32 v{rs}, v{var}')

def interleave(a, ms, fill, start=0):
    n = len(ms); k = 0
    for i, m in enumerate(ms):
        a(m)
        tgt = (len(fill) * (i + 1) + n - 1) // n
        while k < tgt:
            a(fill[k]); k += 1

P = lambda r: f'v[{r}:{r+1}]'
Q = lambda r: f'v[{r}:{r+3}]'

def fmt_body(a, VS, WS, SRC, pf):
    SCF = ' sc1' if SC_FMT else ''
    a('v_and_b32 v3, 15, v2')
    a('v_lshrrev_b32 v4, 4, v2')
    a('v_lshrrev_b32 v24, 2, v3')
    a('v_and_b32 v25, 3, v3')
    a('v_lshrrev_b32 v26, 1, v4')
    a('v_and_b32 v27, 1, v4')
    a('s_mov_b32 m0, s66')
    a('s_cmp_ge_u32 s2, %d' % (0 if NOHELP else NFMT))
    a(f's_cbranch_scc1 {pf}_hend')
    a('s_cmp_eq_u32 s61, 3')
    a(f's_cbranch_scc1 {pf}_hend')
    a('s_cmp_eq_u32 s61, 2')
    a(f's_cbranch_scc1 {pf}_wd')
    a('s_cmp_eq_u32 s61, 0')
    a(f's_cselect_b32 s{SRC}, s8, s10')
    a(f's_cselect_b32 s{SRC+1}, s9, s11')
    a(f's_mov_b32 s{SRC+2}, {hex(512*3584)}')
    a(f's_mov_b32 s{SRC+3}, 0x20000')
    a('v_and_b32 v7, 7, v2')
    a('v_lshrrev_b32 v13, 3, v2')
    a('v_mul_u32_u24 v13, 3584, v13')
    a('v_lshl_add_u32 v13, v7, 4, v13')
    a('s_mul_i32 s80, s78, %d' % (64 * 3584))
    a('s_lshl_b32 s81, s79, 7')
    a('s_add_u32 s80, s80, s81')
    for i in range(8):
        a(f'buffer_load_dwordx4 v13, s[{SRC}:{SRC+3}], s80 offen lds')
        if i < 7:
            a('s_add_u32 m0, m0, 1024')
            a('s_add_u32 s80, s80, %d' % (8 * 3584))
    a('v_lshl_add_u32 v28, v26, 3, v24')
    a('v_lshlrev_b32 v28, 7, v28')
    a('v_lshl_add_u32 v28, v27, 5, v28')
    a('v_lshl_add_u32 v28, v25, 3, v28')
    a('v_add_u32 v28, s66, v28')
    for j in range(4):
        a('s_lshl_b32 s82, s79, 2')
        a(f's_add_u32 s82, s82, {j}')
        a('s_mul_hi_u32 s83, s82, %d' % (2**32 // 7 + 1))
        a('s_mul_i32 s84, s83, 7')
        a('s_sub_u32 s84, s82, s84')
        a('s_mul_i32 s83, s83, %d' % W1F_NT)
        a('s_lshl_b32 s84, s84, 10')
        a(f's_add_u32 s{40+j}, s83, s84')
    a('s_lshl_b32 s82, s61, 4')
    a('v_lshl_add_u32 v29, v26, 5, v3')
    a('v_add_u32 v29, s82, v29')
    a('v_lshlrev_b32 v29, 4, v29')
    a('v_cmp_eq_u32 vcc, 1, v27')
    for u in range(2):
        a(f'v_mov_b32 v{30+u}, s{40+2*u}')
        a(f'v_mov_b32 v8, s{41+2*u}')
        a(f'v_cndmask_b32 v{30+u}, v{30+u}, v8, vcc')
        a(f'v_add_u32 v{30+u}, v{30+u}, v29')
    a('s_mul_i32 s44, s78, %d' % (4 * 7168))
    a('s_add_u32 s44, s44, %d' % WS_W1F)
    a('s_lshr_b32 s46, s78, 2')
    a('s_lshl_b32 s46, s46, 9')
    a('s_and_b32 s47, s78, 3')
    a('s_lshl_b32 s47, s47, 2')
    a('s_add_u32 s46, s46, s47')
    a('s_add_u32 s46, s46, %d' % (WS_W1F + 32 * 7168))
    for r in range(4): a(f'v_mov_b32 v{16+r}, 0')
    a('s_mov_b32 s45, 0x3f803f80')
    stamp(a, 2, VS)
    a('s_waitcnt vmcnt(0)')
    stamp(a, 3, VS)
    FF = 32
    q = DsQ(a)
    for ks in range(4):
        for u in range(2):
            r = FF + 8 * ks + 4 * u
            q.op(f'ds_read_b64_tr_b16 {P(r)}, v28 offset:{2048*ks+64*u}', (ks, u))
            q.op(f'ds_read_b64_tr_b16 {P(r+2)}, v28 offset:{2048*ks+64*u+512}', (ks, u))
    for ks in range(4):
        for u in range(2):
            r = FF + 8 * ks + 4 * u
            q.wait((ks, u))
            a(f'buffer_store_dwordx4 {Q(r)}, v{30+u}, s[{WS}:{WS+3}], s44 offen{SCF}')
            for w in range(4):
                a(f'v_dot2c_f32_bf16 v{16+2*u+(w&1)}, s45, v{r+w}')
        a('s_add_u32 s44, s44, 7168')
    a('s_nop 2')
    for u in range(2):
        c = 16 + 2 * u
        a(f'v_add_f32 v{c}, v{c}, v{c+1}')
        a(f'v_mov_b32 v{c+1}, v{c}')
        a(f'v_permlane32_swap_b32 v{c}, v{c+1}')
        a(f'v_add_f32 v{c}, v{c}, v{c+1}')
        rne(a, c + 1, c)
        a(f'v_sub_f32 v{c}, v{c}, v{c+1}')
        a(f'v_cvt_pk_bf16_f32 v{c}, v{c+1}, v{c}')
    a('s_mov_b32 exec_hi, 0')
    for u in range(2):
        a(f'buffer_store_dword v{16+2*u}, v{30+u}, s[{WS}:{WS+3}], s46 offen')
    a(f's_branch {pf}_hend')
    a(f'{pf}_wd:')
    a.flush_hist()
    srd(a, SRC, 12, 1792 * 1024)
    a('v_lshrrev_b32 v14, 5, v2')
    a('v_lshlrev_b32 v14, 10, v14')
    a('v_and_b32 v15, 31, v2')
    a('v_lshl_add_u32 v14, v15, 4, v14')
    a('s_lshr_b32 s84, s2, 1')
    a('s_and_b32 s85, s2, 1')
    a('s_lshl_b32 s86, s84, 14')
    a('s_lshl_b32 s87, s85, 9')
    a('s_add_u32 s86, s86, s87')
    for i in range(8):
        a(f'buffer_load_dwordx4 v14, s[{SRC}:{SRC+3}], s86 offen lds')
        if i < 7:
            a('s_add_u32 m0, m0, 1024')
            a('s_add_u32 s86, s86, 2048')
    a('v_lshl_add_u32 v28, v26, 2, v24')
    a('v_lshlrev_b32 v28, 9, v28')
    a('v_lshl_add_u32 v28, v27, 5, v28')
    a('v_lshl_add_u32 v28, v25, 3, v28')
    a('v_add_u32 v28, s66, v28')
    a('s_mul_i32 s44, s85, 448')
    a('s_add_u32 s44, s44, s84')
    a('s_lshl_b32 s44, s44, 11')
    a('s_add_u32 s44, s44, %d' % WS_WDF)
    stamp(a, 2, VS)
    a('s_waitcnt vmcnt(0)')
    stamp(a, 3, VS)
    q = DsQ(a)
    for x in range(8):
        q.op(f'ds_read_b64_tr_b16 {P(FF+4*x)}, v28 offset:{64*x}', x)
        q.op(f'ds_read_b64_tr_b16 {P(FF+4*x+2)}, v28 offset:{64*x+4096}', x)
    for x in range(8):
        q.wait(x)
        a(f'buffer_store_dwordx4 {Q(FF+4*x)}, v6, s[{WS}:{WS+3}], s44 offen offset:{1024*(x&1)}{SCF}')
        if x & 1: a('s_add_u32 s44, s44, %d' % (112 * 2048))

def touch_body(a, WS):
    a('v_lshlrev_b32 v40, 7, v2')
    a('s_mul_i32 s80, s17, 57344')
    a('s_lshl_b32 s81, s61, 14')
    a('s_add_u32 s80, s80, s81')
    a('s_add_u32 s80, s80, %d' % WS_WDF)
    a('s_add_u32 s81, s80, 8192')
    if PF_WD:
        a(f'buffer_load_dword v41, v40, s[{WS}:{WS+3}], s80 offen')
        a('s_cmp_eq_u32 s61, 3')
        a('s_cselect_b32 s81, s93, s81')
        a(f'buffer_load_dword v42, v40, s[{WS}:{WS+3}], s81 offen')
    if PF_WB:
        a('s_bfe_u32 s82, s2, 0x20001')
        a('s_lshl_b32 s82, s82, 2')
        a('s_lshr_b32 s83, s17, 3')
        a('s_add_u32 s82, s82, s83')
        a('s_mul_i32 s82, s82, %d' % W1F_NT)
        a('s_and_b32 s83, s17, 7')
        a('s_lshl_b32 s83, s83, 2')
        a('s_add_u32 s83, s83, s61')
        a('s_mul_i32 s83, s83, 7168')
        a('s_add_u32 s82, s82, s83')
        a('s_add_u32 s82, s82, %d' % (WS_W1F + 4096))
        a('v_min_u32 v40, %d, v40' % (23 * 128))
        a(f'buffer_load_dword v43, v40, s[{WS}:{WS+3}], s82 offen')

def gen_prep(a):
    name = 'prep_kernel'
    begin(a, name)
    VS = 39
    X, K, V, SH, O0, ST = 16, 20, 24, 28, 32, 40
    a('s_cmp_ge_u32 s2, 256')
    a('s_cbranch_scc1 prep_end')
    stamp_begin(a, VS)
    a('s_load_dwordx8 s[4:11], s[0:1], 0')
    a('s_load_dwordx2 s[12:13], s[0:1], 96')
    a('v_lshrrev_b32 v1, 8, v0')
    a('v_and_b32 v4, 31, v0')
    a('v_readfirstlane_b32 s53, v1')
    a('v_bfe_u32 v5, v0, 5, 3')
    a('s_and_b32 s14, s2, 7')
    a('s_lshr_b32 s15, s2, 3')
    a('s_mov_b32 s50, 0xffff0000')
    a('s_cmp_eq_u32 s53, 1')
    a('s_cbranch_scc1 prep_x')
    if FMT_IN_PREP:
        a('s_cmp_eq_u32 s53, 2')
        a('s_cbranch_scc1 prep_f')
    a('s_lshl_b32 s44, s15, 16')
    a('s_lshl_b32 s45, s14, 7')
    a('s_add_u32 s44, s44, s45')
    a('v_lshlrev_b32 v2, 13, v5')
    a('v_lshl_add_u32 v2, v4, 2, v2')
    a('v_add_u32 v2, s44, v2')
    a('v_add_u32 v3, 0x1000, v2')
    a('v_subrev_u32 v1, 0x1000, v2')
    a('s_lshl_b32 s48, s14, 9')
    a('v_lshlrev_b32 v6, 4, v4')
    a('v_add_u32 v6, s48, v6')
    a('s_waitcnt lgkmcnt(0)')
    stamp(a, 1, VS)
    srd(a, K, 6, 2 * MiB)
    KR, VR, SHR = 10, 22, 32
    for r in range(11):
        rr = r + 1
        a(f'buffer_load_dword v{KR+r}, v{1+rr//4}, s[{K}:{K+3}], 0 offen offset:{(rr%4)*1024}')
    srd(a, SH, 10, 4096)
    a(f'buffer_load_dwordx4 {Q(SHR)}, v6, s[{SH}:{SH+3}], 0 offen')
    srd(a, V, 8, 2 * MiB)
    for r in range(8):
        a(f'buffer_load_dword v{VR+r}, v{2+r//4}, s[{V}:{V+3}], 0 offen offset:{(r%4)*1024}')
    srd(a, O0, 12, CHB, WS_XR0)
    a('s_mov_b32 s47, %d' % CS)
    a('s_mul_i32 s45, s14, %d' % (64 * CS))
    a('s_lshl_b32 s46, s15, 7')
    a('v_mul_u32_u24 v8, %d, v4' % (2 * CS))
    a('s_sub_u32 s45, s45, s46')
    a('s_add_u32 s45, s45, 4080')
    a('v_lshlrev_b32 v9, 4, v5')
    a('v_sub_u32 v8, v8, v9')
    a('v_add_u32 v8, s45, v8')
    if PF_CODE:
        a('s_getpc_b64 s[54:55]')
        a('pf_here:')
        a('s_add_u32 s54, s54, conv_kernel-pf_here')
        a('s_addc_u32 s55, s55, 0')
        a('s_lshl_b32 s56, s15, 10')
        a('v_lshl_add_u32 v36, v5, 7, s56')
        a('v_min_u32 v36, code_end-conv_kernel-4, v36')
        a('v_mov_b32 v37, s55')
        a('v_add_co_u32 v36, vcc, s54, v36')
        a('v_addc_co_u32 v37, vcc, 0, v37, vcc')
        a('global_load_dword v38, v[36:37], off')
    KF, WP, VF, KV = 40, 64, 72, 92
    stamp(a, 2, VS)
    a('s_waitcnt vmcnt(%d)' % (9 + PF_CODE))
    stamp(a, 3, VS)
    for r in range(11):
        a(f'v_lshlrev_b32 v{KF+2*r}, 16, v{KR+r}')
        a(f'v_and_b32 v{KF+2*r+1}, s50, v{KR+r}')
    a('s_waitcnt vmcnt(%d)' % (8 + PF_CODE))
    for j in range(4):
        for c in range(2):
            src = SHR + 2 * c + j // 2
            if j % 2 == 0:
                a(f'v_lshlrev_b32 v{WP+2*j+c}, 16, v{src}')
            else:
                a(f'v_and_b32 v{WP+2*j+c}, s50, v{src}')
    for i in range(8):
        a(f'v_pk_mul_f32 {P(KV+2*i)}, {P(KF+2*i)}, {P(WP+6)}')
    for j in (2, 1, 0):
        for i in range(8):
            d = KV + 2 * i
            a(f'v_pk_fma_f32 {P(d)}, {P(KF+2*(i+3-j))}, {P(WP+2*j)}, {P(d)}')
    a('s_waitcnt vmcnt(%d)' % PF_CODE)
    stamp(a, 4, VS)
    for r in range(8):
        a(f'v_lshlrev_b32 v{VF+2*r}, 16, v{VR+r}')
        a(f'v_and_b32 v{VF+2*r+1}, s50, v{VR+r}')
    for i in range(8):
        a(f'v_pk_mul_f32 {P(KV+2*i)}, {P(KV+2*i)}, {P(VF+2*i)}')
    O = 112
    for c in range(2):
        for w in range(4):
            a(f'v_cvt_pk_bf16_f32 v{O+4*c+w}, v{KV+2*(7-2*w)+c}, v{KV+2*(6-2*w)+c}')
        a(f'buffer_store_dwordx4 {Q(O+4*c)}, v8, s[{O0}:{O0+3}], {"s47" if c else "0"} offen')
    stamp(a, 5, VS)
    stamp_end(a, 6, VS, 0, 110)
    a('s_endpgm')
    a('prep_x:')
    a.flush_hist()
    a('s_load_dwordx2 s[54:55], s[0:1], 32')
    a('s_lshl_b32 s48, s2, 13')
    a('s_add_u32 s49, s48, 4096')
    a('v_lshlrev_b32 v7, 10, v5')
    a('v_lshl_add_u32 v7, v4, 4, v7')
    a('v_and_b32 v2, 255, v0')
    a('v_lshlrev_b32 v3, 2, v2')
    a('v_lshlrev_b32 v8, 5, v2')
    a('s_mul_i32 s45, s2, %d' % XBS)
    a('s_lshl_b32 s46, s2, 5')
    a('v_lshlrev_b32 v9, 2, v5')
    a('v_add_u32 v9, s46, v9')
    a('s_mov_b32 s51, 0x05040100')
    a('s_mov_b32 s52, 0x07060302')
    a('s_waitcnt lgkmcnt(0)')
    stamp(a, 1, VS)
    srd(a, X, 4, 2 * MiB)
    XR, XS = 10, 20
    a(f'buffer_load_dwordx4 {Q(XS)}, v7, s[{X}:{X+3}], s48 offen')
    a(f'buffer_load_dwordx4 {Q(XS+4)}, v7, s[{X}:{X+3}], s48 offen offset:512')
    for r in range(8):
        a(f'buffer_load_dword v{XR+r}, v3, s[{X}:{X+3}], s{48+r//4} offen offset:{(r%4)*1024}')
    srd(a, O0, 12, 256 * XBS, WS_XB)
    srd(a, ST, 12, 32768 + 4 * 131072, WS_ST)
    a('s_mov_b32 s48, 0x2000')
    if PF_FILT:
        srd(a, K, 54, 2 * MiB)
        a('s_lshl_b32 s58, s14, 5')
        a('s_add_u32 s58, s58, s15')
        a('s_lshl_b32 s58, s58, 13')
        a('v_lshrrev_b32 v30, 2, v2')
        a('v_lshlrev_b32 v30, 7, v30')
    stamp(a, 2, VS)
    a('s_waitcnt vmcnt(8)')
    stamp(a, 3, VS)
    E = 60
    for r in range(8):
        a(f'v_lshlrev_b32 v{E+2*r}, 16, v{XS+r}')
        a(f'v_and_b32 v{E+2*r+1}, s50, v{XS+r}')
    S = 80
    a(f'v_pk_add_f32 {P(S)}, {P(E)}, {P(E+2)}')
    a(f'v_pk_add_f32 {P(S+2)}, {P(E+4)}, {P(E+6)}')
    a(f'v_pk_add_f32 {P(S+4)}, {P(E+8)}, {P(E+10)}')
    a(f'v_pk_add_f32 {P(S+6)}, {P(E+12)}, {P(E+14)}')
    a(f'v_pk_add_f32 {P(S)}, {P(S)}, {P(S+2)}')
    a(f'v_pk_add_f32 {P(S+4)}, {P(S+4)}, {P(S+6)}')
    a(f'v_pk_add_f32 {P(S)}, {P(S)}, {P(S+4)}')
    a(f'v_add_f32 v{S}, v{S}, v{S+1}')
    red32(a, S, S + 1)
    a(f'v_mul_f32 v{S}, 0xbb000000, v{S}')
    a(f'v_mov_b32 v{S+1}, v{S}')
    a('s_waitcnt vmcnt(0)')
    if PF_FILT:
        a(f'buffer_load_dword v31, v30, s[{K}:{K+3}], s58 offen')
    O2 = 100
    for c in range(2):
        for w in range(4):
            a(f'v_perm_b32 v{O2+4*c+w}, v{XR+2*w+1}, v{XR+2*w}, s{51+c}')
        a(f'buffer_store_dwordx4 {Q(O2+4*c)}, v8, s[{O0}:{O0+3}], s45 offen offset:{16*c}')
    for r in range(8):
        a(f'v_pk_add_f32 {P(E+2*r)}, {P(E+2*r)}, {P(S)}')
    a(f'v_pk_mul_f32 {P(S+2)}, {P(E)}, {P(E)}')
    a(f'v_pk_mul_f32 {P(S+4)}, {P(E+2)}, {P(E+2)}')
    for r in range(2, 8):
        d = S + 2 + 2 * (r & 1)
        a(f'v_pk_fma_f32 {P(d)}, {P(E+2*r)}, {P(E+2*r)}, {P(d)}')
    a(f'v_pk_add_f32 {P(S+2)}, {P(S+2)}, {P(S+4)}')
    a(f'v_add_f32 v{S+2}, v{S+2}, v{S+3}')
    red32(a, S + 2, S + 3)
    a(f'v_mul_f32 v{S+2}, 0x3b000000, v{S+2}')
    rne(a, S, S)
    ln_sigma(a, S + 2, S + 4)
    a(f'v_mul_f32 v{S+5}, v{S}, v{S+4}')
    a('v_mov_b32 v32, 0')
    a('v_lshlrev_b32 v36, 5, v9')
    a('s_mov_b32 s61, 0x8000')
    a('s_mov_b32 s62, 0x48000')
    a('s_mov_b32 exec_lo, 1')
    a('s_mov_b32 exec_hi, 1')
    a(f'buffer_store_dword v32, v36, s[{ST}:{ST+3}], s61 offen')
    a(f'buffer_store_dword v32, v36, s[{ST}:{ST+3}], s62 offen')
    a(f'buffer_store_dword v{S+4}, v9, s[{ST}:{ST+3}], 0 offen')
    a(f'buffer_store_dword v{S+5}, v9, s[{ST}:{ST+3}], s48 offen')
    stamp(a, 4, VS)
    stamp_end(a, 5, VS, 0, 110)
    if FMT_IN_PREP:
        a('s_endpgm')
        a('prep_f:')
        a.flush_hist()
        a('s_waitcnt lgkmcnt(0)')
        a('s_mov_b32 s14, s12')
        a('s_mov_b32 s15, s13')
        a('s_load_dwordx4 s[8:11], s[0:1], 56')
        a('s_load_dwordx2 s[12:13], s[0:1], 72')
        a('v_bfe_u32 v1, v0, 6, 2')
        a('v_and_b32 v2, 63, v0')
        a('v_readfirstlane_b32 s61, v1')
        a('v_lshlrev_b32 v6, 4, v2')
        a('s_mul_hi_u32 s78, s2, %d' % (2**32 // 28 + 1))
        a('s_mul_i32 s79, s78, 28')
        a('s_sub_u32 s79, s2, s79')
        a('s_lshl_b32 s66, s61, 13')
        srd(a, 20, 14, WS_END)
        a('s_waitcnt lgkmcnt(0)')
        global STAMP
        st = STAMP; STAMP = False
        fmt_body(a, VS, 20, 28, 'pf')
        STAMP = st
        a('pf_hend:')
    a('prep_end:')
    a('s_endpgm')
    return name, 128, 102, None

CV_XC = 0
CV_E = 2 * 4 * 4640
CV_RED = CV_E + 2 * 8448
CV_AUX = CV_RED + 16384
CV_FM = CV_AUX + 24576
CV_FLG = CV_FM + 24576
CV_LDS = CV_FLG + 2304

def lds_spin(a, vf, vaddr, off, cnt, cond='ne'):
    L = a.newlabel('sp'); D = a.newlabel('spd')
    a(f'{L}:')
    a(f'ds_read_b32 v{vf}, v{vaddr} offset:{off}')
    a(f's_add_u32 s{cnt}, s{cnt}, 1')
    a(f's_cmp_gt_u32 s{cnt}, 0x100000')
    a(f's_cbranch_scc1 {D}')
    a('s_waitcnt lgkmcnt(0)')
    a(f'v_cmp_{cond}_u32 vcc, 0, v{vf}')
    a(f's_cbranch_vccnz {L}')
    a(f'{D}:')

def gen_conv(a):
    name = 'conv_kernel'
    begin(a, name)
    VS = 250
    H, XRS, HT = 20, 24, 32
    a('s_cmp_ge_u32 s2, 256')
    a('s_cbranch_scc1 conv_end')
    stamp_begin(a, VS)
    a('s_load_dwordx4 s[4:7], s[0:1], 32')
    a('s_load_dwordx2 s[14:15], s[0:1], 96')
    a('v_lshrrev_b32 v1, 6, v0')
    a('v_and_b32 v2, 63, v0')
    a('v_readfirstlane_b32 s60, v1')
    a('s_and_b32 s16, s2, 7')
    a('s_lshr_b32 s17, s2, 3')
    a('s_lshl_b32 s16, s16, 5')
    a('s_add_u32 s16, s16, s17')
    a('v_lshlrev_b32 v5, 3, v2')
    a('v_lshlrev_b32 v6, 4, v2')
    a('s_mov_b32 s93, 0x7f000000')
    a('s_mov_b32 s94, 0')
    a('s_bfe_u32 s61, s60, 0x10001')
    a('s_and_b32 s62, s60, 1')
    a('s_lshl_b32 s63, s16, 1')
    a('s_add_u32 s63, s63, s61')
    a('s_mul_i32 s70, s61, 18560')
    a('s_mul_i32 s73, s63, %d' % CS)
    def odd_load():
        for i in range(2):
            a(f'buffer_load_dwordx4 {Q(16+16*i)}, v6, s[{XRS}:{XRS+3}], s69 offen offset:{1024*i}')
            a(f'buffer_load_dwordx2 {P(20+16*i)}, v6, s[{XRS}:{XRS+3}], s69 offen offset:{1024*i+16}')
    def odd_build(i):
        b = 16 * i
        for w in range(4): a(f'v_alignbit_b32 v{b+22+w}, v{b+17+w}, v{b+16+w}, 16')
        for w in range(4): a(f'v_alignbit_b32 v{b+26+w}, v{b+18+w}, v{b+17+w}, 16')
        a(f'ds_write_b128 v56, {Q(b+22)} offset:{9280+1024*i}')
        a(f'ds_write_b128 v56, {Q(b+26)} offset:{1024*i}')
    a('s_cmp_ge_u32 s60, 4')
    a('s_cbranch_scc1 cv_help')
    a('s_lshl_b32 s64, s63, 12')
    a('s_lshl_b32 s65, s16, 2')
    a('s_mul_i32 s66, s61, 8448')
    a('s_add_u32 s66, s66, %d' % CV_E)
    a('s_mul_i32 s71, s62, 9280')
    a('s_add_u32 s71, s71, s70')
    a('s_add_u32 s71, s71, 4640')
    a('s_xor_b32 s77, s62, 1')
    a('s_lshl_b32 s72, s77, 2')
    a('s_lshl_b32 s69, s62, 11')
    a('s_lshl_b32 s75, s62, 12')
    a('v_lshrrev_b32 v7, 2, v2')
    a('v_and_b32 v8, 3, v2')
    a('v_lshlrev_b32 v7, 3, v7')
    a('v_lshl_add_u32 v7, v8, 2, v7')
    a('v_add_u32 v7, 0xffffff80, v7')
    a('s_add_u32 s68, s66, s75')
    a('s_mov_b32 m0, s71')
    a('s_waitcnt lgkmcnt(0)')
    stamp(a, 1, VS)
    srd(a, XRS, 14, 4096, WS_XR0, offreg=73)
    odd_load()
    for i in range(4):
        a(f'buffer_load_dwordx4 v6, s[{XRS}:{XRS+3}], s72 offen offset:{1024*i} lds')
    a('s_add_u32 m0, s68, 256')
    srd(a, H, 4, 4096, offreg=64)
    for i in range(4):
        a(f'buffer_load_dwordx4 v5, s[{H}:{H+3}], s69 offen offset:{512*i} lds')
        a('s_add_u32 m0, m0, 512' if i < 3 else 's_mov_b32 m0, s66')
    a('s_load_dword s67, s[6:7], s65')
    a(f'buffer_load_dword v7, s[{H}:{H+3}], 0 offen lds')
    a('s_barrier')
    a('s_add_u32 s74, s69, s70')
    a('v_add_u32 v56, s74, v6')
    srd(a, HT, 14, 2 * MiB, WS_HT)
    for par, sh in ((0, 62), (1, 77)):
        a(f's_lshl_b32 s{40+par}, s{sh}, 9')
        a(f's_lshl_b32 s{50+par}, s{sh}, 18')
    a('s_lshl_b32 s79, s63, 8')
    a('s_add_u32 s50, s50, s79')
    a('s_add_u32 s51, s51, s79')
    a('s_add_u32 s51, s51, 0x80000')
    a('s_add_u32 s52, s50, 0x100000')
    a('s_add_u32 s53, s51, 0x100000')
    a('v_and_b32 v12, 31, v2')
    a('v_lshlrev_b32 v12, 3, v12')
    a('s_and_b32 s74, s63, 3')
    a('s_lshl_b32 s74, s74, 6')
    a('v_xor_b32 v12, s74, v12')
    a('v_lshrrev_b32 v13, 5, v2')
    a('v_lshl_add_u32 v12, v13, 17, v12')
    XA, HA = 224, 225
    a('v_and_b32 v3, 15, v2')
    a('v_lshrrev_b32 v4, 4, v2')
    a('v_lshrrev_b32 v9, 2, v3')
    a('v_mul_u32_u24 v10, 4640, v8')
    a('v_lshlrev_b32 v9, 3, v9')
    a('v_sub_u32 v9, v4, v9')
    a('v_add_u32 v9, 24, v9')
    a(f'v_lshl_add_u32 v{XA}, v9, 4, v10')
    a('s_lshl_b32 s88, s62, 8')
    a('s_add_u32 s88, s88, s70')
    a(f'v_add_u32 v{XA}, s88, v{XA}')
    a(f'v_lshl_add_u32 v{HA}, v4, 1, v3')
    a(f'v_lshlrev_b32 v{HA}, 4, v{HA}')
    a('s_lshl_b32 s89, s62, 9')
    a('s_add_u32 s89, s89, s66')
    a('s_add_u32 s89, s89, 16')
    a(f'v_add_u32 v{HA}, s89, v{HA}')
    a('s_lshl_b32 s88, s61, 4')
    a('s_add_u32 s88, s88, 16384')
    a('v_lshrrev_b32 v9, 1, v2')
    a('v_lshlrev_b32 v9, 5, v9')
    a('v_and_b32 v15, 1, v2')
    a('v_lshl_add_u32 v9, v15, 3, v9')
    for par in range(2):
        a(f's_sub_u32 s89, s70, s{40+par}')
        a('s_add_u32 s89, s89, %d' % (3 * 4640 + 4088 - 3072))
        a(f'v_sub_u32 v{10+par}, s89, v5')
        a(f's_lshl_b32 s89, s{40+par}, 1')
        a('s_add_u32 s89, s89, %d' % CV_AUX)
        a(f'v_add_u32 v{60+par}, s89, v6')
        a('s_add_u32 s89, s89, s88')
        a(f'v_add_u32 v{13+par}, s89, v9')
    a('s_lshl_b32 s90, s60, 12')
    a('s_add_u32 s91, s90, %d' % CV_RED)
    a('s_xor_b32 s90, s90, 0x1000')
    a('s_add_u32 s90, s90, %d' % CV_RED)
    a('v_add_u32 v62, s91, v6')
    a('v_add_u32 v63, s90, v6')
    a('s_mov_b32 s92, 0xffff0000')
    a('v_lshlrev_b32 v15, 2, v8')
    a('v_add_u32 v15, %d, v15' % (CV_FLG + 16))
    a('s_lshl_b32 s89, s60, 8')
    a('s_add_u32 s89, s89, %d' % (CV_FLG + 256))
    a('v_lshl_add_u32 v3, v2, 2, s89')
    a('s_xor_b32 s89, s60, 1')
    a('s_lshl_b32 s89, s89, 8')
    a('s_add_u32 s89, s89, %d' % (CV_FLG + 256))
    a('v_lshl_add_u32 v4, v2, 2, s89')
    a('v_mov_b32 v7, 0')
    stamp(a, 2, VS)
    a('s_waitcnt vmcnt(11)')
    stamp(a, 7, VS)
    odd_build(0)
    a('s_waitcnt vmcnt(9)')
    odd_build(1)
    stamp(a, 8, VS)
    a('s_waitcnt vmcnt(5)')
    stamp(a, 9, VS)
    a('s_waitcnt vmcnt(0)')
    stamp(a, 10, VS)
    a('ds_write_b32 v3, v7 offset:1024')
    lds_spin(a, 1, 4, 1024, 94)
    stamp(a, 3, VS)
    FH = [64, 128]; FX = [96, 160]; ACC = 192
    XV, RS, MR, XF = 16, 24, 40, 232
    kvp = [56, 58, 226, 228]
    def rdH(s, ri, aa): return f'ds_read_b128 {Q(FH[s]+4*aa)}, v{HA} offset:{128*(8*aa+ri)}'
    def rdX(s, ri, bb): return f'ds_read_b128 {Q(FX[s]+4*bb)}, v{XA} offset:{64*(56-8*bb+ri)}'
    inited = [False] * 8
    def mf(s, aa, bb):
        nb = aa + bb
        c = Q(ACC + 4 * nb)
        src = c if inited[nb] else '0'
        inited[nb] = True
        return f'v_mfma_f32_16x16x32_bf16 {c}, {Q(FX[s]+4*bb)}, {Q(FH[s]+4*aa)}, {src}'
    pairs = sorted([(aa, bb) for aa in range(8) for bb in range(8) if aa + bb <= 7], key=lambda p: (max(p), p))
    q = DsQ(a)
    todo = []
    for ri in range(4):
        for x in range(8):
            todo.append((rdH(ri & 1, ri, x), ('H', ri, x)))
            todo.append((rdX(ri & 1, ri, x), ('X', ri, x)))
    for _ in range(12):
        q.op(*todo.pop(0))
    a('s_lshl_b32 s90, s61, 4')
    a('s_lshr_b32 s67, s67, s90')
    a('s_lshl_b32 s67, s67, 16')
    aux = []
    for t in range(4):
        par = t & 1
        aux.append(f'ds_read_b64 {P(kvp[t])}, v{10+par} offset:{1024*(3-t)}')
        aux.append(f'ds_read_b64 {P(XV+2*t)}, v{13+par} offset:{2048*t}')
        aux.append(f'ds_read_b128 {Q(RS+4*t)}, v{60+par} offset:{2048*t}')
        aux.append(f'ds_read_b128 {Q(MR+4*t)}, v{60+par} offset:{2048*t+8192}')
    pre = []
    for t in range(4):
        pre += [f'v_lshlrev_b32 v{XF+4*t}, 16, v{XV+2*t}', f'v_and_b32 v{XF+4*t+1}, s92, v{XV+2*t}',
                f'v_lshlrev_b32 v{XF+4*t+2}, 16, v{XV+2*t+1}', f'v_and_b32 v{XF+4*t+3}, s92, v{XV+2*t+1}']
    pre += [f'v_fma_f32 v{RS+r}, v{XF+r}, v{RS+r}, v{MR+r}' for r in range(16)]
    for t in range(4):
        pre += [f'v_and_b32 v{MR+4*t}, s92, v{kvp[t]+1}', f'v_lshlrev_b32 v{MR+4*t+1}, 16, v{kvp[t]+1}',
                f'v_and_b32 v{MR+4*t+2}, s92, v{kvp[t]}', f'v_lshlrev_b32 v{MR+4*t+3}, 16, v{kvp[t]}']
    pre += [f'v_mul_f32 v{MR+r}, v{MR+r}, v{RS+r}' for r in range(16)]
    pre += [f'v_fmac_f32 v{XF+r}, s67, v{MR+r}' for r in range(16)]
    for ri in range(3):
        s = ri & 1
        for n, (aa, bb) in enumerate(pairs):
            q.wait(('H', ri, aa), ('X', ri, bb))
            a(mf(s, aa, bb))
            used = 0
            if todo and todo[0][1][1] <= ri + 1 and (n % 2 == 0 or todo[0][1][1] == ri):
                q.op(*todo.pop(0)); used = 1
            if ri == 0 and n == 31: q.op('ds_read_b32 v1, v15', 'fb')
            if ri == 1 and n == 1:
                q.wait('fb')
                a('v_cmp_ne_u32 vcc, 0, v1')
                a('s_cbranch_vccnz cv_fbspin')
                a('cv_fbgo:')
            if ri == 1 and n % 2 == 1 and n >= 3 and aux: q.op(aux.pop(0), 'aux')
            if ri == 2:
                if n == 0: q.wait('aux')
                for _ in range(2 - used):
                    if pre: a(pre.pop(0))
    assert not todo and not aux, (len(todo), len(aux))
    a('s_cmp_eq_u32 s62, 0')
    a('s_waitcnt lgkmcnt(0)')
    a('s_cbranch_scc0 conv_h1')
    PR = 64
    hist = list(a.hist)
    for half in range(2):
        if half:
            a('conv_h1:'); a.hist = list(hist)
        rest = list(pre)
        keep = [2 * t + ((t & 1) ^ half) for t in range(4)]
        send = [2 * t + ((t & 1) ^ half ^ 1) for t in range(4)]
        ps = sorted([p for p in pairs if sum(p) in send], key=lambda p: sum(p))
        pk = sorted([p for p in pairs if sum(p) in keep], key=lambda p: sum(p))
        seq = ps + pk
        lastidx = {nb: max(i for i, p in enumerate(seq) if sum(p) == nb) for nb in range(8)}
        wr = {lastidx[nb] + 3: t for t, nb in enumerate(send)}
        for i, (aa, bb) in enumerate(seq):
            a(mf(1, aa, bb))
            for _ in range(2):
                if rest: a(rest.pop(0))
            if i in wr:
                t = wr[i]
                a(f'ds_write_b128 v62, {Q(ACC+4*send[t])} offset:{1024*t}')
            if i == 21: a('ds_write_b32 v3, v7')
            if i == 25: a('ds_read_b32 v1, v4')
            if i == 30:
                a('s_waitcnt lgkmcnt(0)')
                a('v_cmp_ne_u32 vcc, 0, v1')
                a(f's_cbranch_vccnz cv_rspin{half}')
                a(f'cv_rgo{half}:')
                for t in range(2): a(f'ds_read_b128 {Q(PR+4*t)}, v63 offset:{1024*t}')
            if i == 31:
                for t in range(2, 4): a(f'ds_read_b128 {Q(PR+4*t)}, v63 offset:{1024*t}')
            if i >= 32:
                t = i - 32
                if t < 3:
                    for r in range(4):
                        a(f'v_fmac_f32 v{XF+4*t+r}, v{RS+4*t+r}, v{ACC+4*keep[t]+r}')
        assert not rest
        stamp(a, 4, VS)
        for t in range(4):
            a(f's_waitcnt lgkmcnt({3-t})')
            for r in range(4):
                a(f'v_fmac_f32 v{XF+4*t+r}, v{RS+4*t+r}, v{PR+4*t+r}')
            if t == 3:
                for r in range(4):
                    a(f'v_fmac_f32 v{XF+4*t+r}, v{RS+4*t+r}, v{ACC+4*keep[t]+r}')
            a(f'v_cvt_pk_bf16_f32 v{88+2*t}, v{XF+4*t}, v{XF+4*t+1}')
            a(f'v_cvt_pk_bf16_f32 v{89+2*t}, v{XF+4*t+2}, v{XF+4*t+3}')
            a(f'buffer_store_dwordx2 {P(88+2*t)}, v12, s[{HT}:{HT+3}], s{50+t} offen' + (' sc1' if SC_HT else ''))
        stamp(a, 5, VS)
        stamp_end(a, 6, VS, 1, 248)
        a('s_endpgm')
    a('cv_fbspin:')
    lds_spin(a, 1, 15, 0, 94)
    a('s_branch cv_fbgo')
    for half in range(2):
        a(f'cv_rspin{half}:')
        lds_spin(a, 1, 4, 0, 94)
        a(f's_branch cv_rgo{half}')

    WS, SRC = 20, 28
    SCF = ' sc1' if SC_FMT else ''
    a('cv_help:')
    a.flush_hist()
    a('s_load_dwordx4 s[8:11], s[0:1], 56')
    a('s_load_dwordx2 s[12:13], s[0:1], 72')
    a('s_and_b32 s61, s60, 3')
    a('v_mov_b32 v32, 0')
    a('v_mov_b32 v33, 0')
    a('v_mov_b32 v34, -1')
    a('s_mul_i32 s62, s61, 9280')
    a('v_add_u32 v35, s62, v5')
    a('ds_write_b64 v35, v[32:33] offset:4096')
    a('ds_write_b64 v35, v[32:33] offset:%d' % (4096 + 4640))
    a('s_lshl_b32 s62, s61, 8')
    a('s_add_u32 s62, s62, %d' % CV_FLG)
    a('v_lshl_add_u32 v35, v2, 2, s62')
    a('ds_write_b32 v35, v34')
    a('ds_write_b32 v35, v34 offset:256')
    a('ds_write_b32 v35, v34 offset:1280')
    a('s_lshl_b32 s62, s61, 12')
    a('s_add_u32 s63, s62, %d' % WS_ST)
    a('s_mul_i32 s64, s61, %d' % (64 * XBS))
    a('s_lshl_b32 s65, s16, 5')
    a('s_add_u32 s64, s64, s65')
    a('s_add_u32 s64, s64, %d' % WS_XB)
    a('s_add_u32 s65, s64, %d' % (32 * XBS - 1024))
    a('v_lshrrev_b32 v9, 1, v2')
    a('v_mul_u32_u24 v9, %d, v9' % XBS)
    a('v_and_b32 v10, 1, v2')
    a('v_lshl_add_u32 v9, v10, 4, v9')
    a('s_add_u32 m0, s62, %d' % CV_AUX)
    a('s_mul_hi_u32 s78, s2, %d' % (2**32 // 28 + 1))
    a('s_mul_i32 s79, s78, 28')
    a('s_sub_u32 s79, s2, s79')
    a('s_lshl_b32 s66, s61, 13')
    a('s_add_u32 s66, s66, %d' % CV_FM)
    a('s_waitcnt lgkmcnt(0)')
    srd(a, WS, 14, WS_END)
    a('s_barrier')
    stamp(a, 1, VS)
    for i in range(4):
        a(f'buffer_load_dwordx4 v6, s[{WS}:{WS+3}], s63 offen offset:{1024*i} lds')
    a('s_lshl_b32 s62, s61, 11')
    a('s_add_u32 m0, s62, %d' % (CV_AUX + 16384))
    a('s_lshl_b32 s62, s61, 2')
    a(f'buffer_load_dwordx4 v9, s[{WS}:{WS+3}], s64 offen lds')
    a(f'buffer_load_dwordx4 v9, s[{WS}:{WS+3}], s65 offen offset:1024 lds')
    a('s_add_u32 m0, s62, %d' % (CV_FLG + 16))
    a('s_mov_b64 exec, 1')
    a(f'buffer_load_dword v6, s[{WS}:{WS+3}], s93 offen lds')
    a('s_mov_b64 exec, -1')
    if FMT_IN_PREP: touch_body(a, WS)
    else: fmt_body(a, VS, WS, SRC, 'cv')
    a('cv_hend:')
    stamp(a, 4, VS)
    stamp_end(a, 5, VS, 1, 248)
    a('conv_end:')
    a('s_endpgm')
    return name, 252, 102, None

G1_SLOT = 16384
G1_NS = 9
G1_RING = G1_SLOT * G1_NS
FF_CS = G1_RING
FF_H = FF_CS + 7168
FF_FLG = FF_H + 8192
FF_LDS = FF_FLG + 512
FF_WD = 4 * G1_SLOT
FF_RED = 0
BARS = {4: 8, 8: 12, 12: 16, 14: 18}
CSST = 11
CAPB = 4.7
DOT2 = 2
POLL0 = 5
LPRIO = 0
PLEAD = 3
LEAD = 4
FLAGN = eval(os.environ.get('FLAGN', '{0: 62, 1: 92}'))
RK = 18
LK = 10
SC = os.environ.get('SC', ' sc1')
SCS = os.environ.get('SCS', ' sc1')
NOSTAT = 0
BAR14 = 10
BARGAP = 3
XALIGN = 0
XPAD = 0
PACE = 14
WDI0 = 8
WDIN = 0
PACE2 = 30
PH = eval(os.environ.get('PH', '[[0, 1], [2, 3], [4, 5], [6]]'))
PFL = [6, 6]
DA = 6
XR2 = 0
XPRIO = 0
NOBAR = 0
NODMA = 0

def epi_tile(g, T, C1, IR2):
    u = g + 8
    L = []
    for e in range(0, 8, 2): L.append(f'v_pk_mul_f32 {P(T+e)}, {P(g+e)}, {P(C1)}')
    for e in range(8): L.append(f'v_exp_f32 v{T+e}, v{T+e}')
    for e in range(0, 8, 2): L.append(f'v_pk_mul_f32 {P(g+e)}, {P(g+e)}, {P(u+e)}')
    for e in range(0, 8, 2): L.append(f'v_pk_fma_f32 {P(T+e)}, {P(T+e)}, {P(IR2)}, {P(IR2)}')
    for e in range(8): L.append(f'v_rcp_f32 v{T+e}, v{T+e}')
    for e in range(0, 8, 2): L.append(f'v_pk_mul_f32 {P(g+e)}, {P(g+e)}, {P(T+e)}')
    for w in range(4): L.append(f'v_cvt_pk_bf16_f32 v{T+8+w}, v{g+2*w}, v{g+2*w+1}')
    return L

def epi_tile_s(g, T, C1, IR2):
    u = g + 8
    L = []
    for e in range(8): L.append(f'v_mul_f32 v{T+e}, v{g+e}, v{C1}')
    for e in range(8):
        L.append(f'v_exp_f32 v{T+e}, v{T+e}')
        L.append(f'v_mul_f32 v{g+e}, v{g+e}, v{u+e}')
    for e in range(8): L.append(f'v_fma_f32 v{T+e}, v{T+e}, v{IR2}, v{IR2}')
    for e in range(8):
        L.append(f'v_rcp_f32 v{T+e}, v{T+e}')
        if e: L.append(f'v_mul_f32 v{g+e-1}, v{g+e-1}, v{T+e-1}')
    L.append(f'v_cvt_pk_bf16_f32 v{u}, v{g}, v{g+1}')
    L.append(f'v_mul_f32 v{g+7}, v{g+7}, v{T+7}')
    for w in range(1, 4): L.append(f'v_cvt_pk_bf16_f32 v{u+w}, v{g+2*w}, v{g+2*w+1}')
    return L

def gen_ffn(a):
    name = 'ffn_kernel'
    begin(a, name)
    W1F, HT, WS, OUT = 8, 12, 16, 40
    a('s_cmp_ge_u32 s2, 256')
    a('s_cbranch_scc1 ff_end')
    a('s_load_dwordx2 s[4:5], s[0:1], 96')
    a('s_load_dwordx2 s[6:7], s[0:1], 80')
    a('v_lshrrev_b32 v1, 6, v0')
    a('v_and_b32 v2, 63, v0')
    a('v_readfirstlane_b32 s46, v1')
    a('s_and_b32 s21, s2, 1')
    a('s_lshl_b32 s21, s21, 3')
    a('s_bfe_u32 s27, s2, 0x30003')
    a('s_add_u32 s21, s21, s27')
    a('s_bfe_u32 s22, s2, 0x20001')
    a('s_lshl_b32 s22, s22, 2')
    a('s_lshr_b32 s23, s2, 6')
    a('s_add_u32 s22, s22, s23')
    a('s_and_b32 s20, s46, 3')
    a('v_lshlrev_b32 v3, 4, v2')
    a('s_cmp_ge_u32 s46, 4')
    a('s_cbranch_scc1 ff_ld')
    a('v_lshlrev_b32 v9, 1, v0')
    a('v_add_u32 v9, %d, v9' % FF_FLG)
    a('v_mov_b32 v8, -1')
    a('ds_write_b16 v9, v8')
    a('v_lshrrev_b32 v16, 4, v2')
    a('v_and_b32 v17, 15, v2')
    VS = 2
    stamp_begin(a, VS)
    a('v_lshrrev_b32 v18, 2, v17')
    a('v_and_b32 v19, 3, v17')
    a('s_waitcnt lgkmcnt(0)')
    a('s_barrier')
    a('v_lshrrev_b32 v20, 1, v16')
    a('v_and_b32 v21, 1, v16')
    a('v_lshl_add_u32 v6, v20, 3, v18')
    a('v_lshlrev_b32 v6, 8, v6')
    a('v_xor_b32 v18, s20, v18')
    a('v_lshl_add_u32 v6, v18, 6, v6')
    a('v_lshl_add_u32 v6, v21, 5, v6')
    a('v_lshl_add_u32 v6, v19, 3, v6')
    a('v_add_u32 v7, 49152, v6')
    a('v_add_u32 v8, 98304, v6')
    a('v_add_u32 v4, 49152, v3')
    a('v_add_u32 v5, 98304, v3')
    a('v_lshlrev_b32 v9, 2, v19')
    a('v_add_u32 v9, %d, v9' % FF_FLG)
    a('s_lshl_b32 s37, s21, 2')
    a('s_add_u32 s37, s37, s20')
    a('s_mul_i32 s37, s37, 112')
    a('s_mul_i32 s38, s22, 7')
    a('s_add_u32 s37, s37, s38')
    a('s_lshl_b32 s37, s37, 10')
    a('s_add_u32 s37, s37, %d' % WS_ACT)
    a('s_add_u32 s36, s37, 4096')
    a('s_lshl_b32 s38, s21, 1')
    a('s_lshr_b32 s39, s20, 1')
    a('s_add_u32 s38, s38, s39')
    a('s_lshl_b32 s38, s38, 2')
    a('s_lshr_b32 s39, s22, 2')
    a('s_add_u32 s38, s38, s39')
    a('s_lshl_b32 s38, s38, 3')
    a('s_and_b32 s39, s22, 3')
    a('s_lshl_b32 s39, s39, 1')
    a('s_add_u32 s38, s38, s39')
    a('s_and_b32 s39, s20, 1')
    a('s_add_u32 s38, s38, s39')
    a('s_lshl_b32 s38, s38, 7')
    a('s_add_u32 s38, s38, %d' % WS_GF)
    a('v_mov_b32 v10, 1')
    a('v_mov_b32 v11, 0')
    WF = [32, 48]; ACC = 64; HR = 128
    S1, S2, T, PV = 12, 14, 16, 1
    for r in range(4): a(f'v_mov_b32 v{S1+r}, 0')
    a('s_mov_b32 s34, 0xffff0000')
    a('s_mov_b32 s35, 0x3f803f80')
    srd(a, WS, 4, WS_END)
    WA = [3, 4, 5]; HA = [6, 7, 8]
    def lds(regs, byte):
        k = min(byte // 49152, 2)
        return f'v{regs[k]} offset:{byte - 49152*k}'
    slot = lambda st: (st % G1_NS) * G1_SLOT
    def rdW(ks, f): return f'ds_read_b128 {Q(WF[ks&1]+4*f)}, ' + lds(WA, slot(ks//2) + 4096*(ks&1) + 1024*f)
    def rdH(ks):
        b = slot(ks//2) + 8192 + 4096*(ks&1)
        return [f'ds_read_b64_tr_b16 {P(HR+4*ks)}, ' + lds(HA, b), f'ds_read_b64_tr_b16 {P(HR+4*ks+2)}, ' + lds(HA, b + 1024)]
    def stats(h):
        U = []; A = []
        for w in range(4):
            t = T + 2 * w
            U.append([f'v_lshlrev_b32 v{t}, 16, v{h+w}', f'v_and_b32 v{t+1}, s34, v{h+w}'])
            A.append([f'v_add_f32 v{S1}, v{S1}, v{t}', f'v_fmac_f32 v{S2}, v{t}, v{t}', f'v_add_f32 v{S1+1}, v{S1+1}, v{t+1}', f'v_fmac_f32 v{S2+1}, v{t+1}, v{t+1}'])
        return U[0] + U[1] + A[0] + U[2] + A[1] + U[3] + A[2] + A[3]
    def MF(d, av, bv, first):
        c = f'v[{d}:{d+15}]'
        return f'v_mfma_f32_32x32x16_bf16 {c}, {Q(av)}, {Q(bv)}, ' + ('0' if first else c)
    q = DsQ(a)
    stubs = []
    def poll(st): q.op(f'ds_read_b32 v{PV}, v9 offset:{16*st}', ('p', st))
    def check(st):
        q.wait(('p', st))
        a(f'v_cmp_ne_u32 vcc, 0, v{PV}')
        a(f's_cbranch_vccnz ff_xs{st}')
        a(f'ff_xg{st}:')
        stubs.append(st)
    seq = [(4, i) for i in range(8)] + [(t, 32) for t in range(4)] + [(4, i) for i in range(8, 33)] + [(5, i) for i in range(33)] + [(6, i) for i in range(33)]
    accof = {0: ACC, 1: ACC + 16, 2: ACC + 32, 3: ACC + 48, 4: WF[1], 5: ACC, 6: ACC + 16}
    ring = [32, 36, 40, 44, 24, 28]
    breg = {}
    nb = [0]
    def rdB():
        n = nb[0]; nb[0] += 1
        t, i = seq[n]
        if i < 32 and i % 16 == 0: check(16 + 2 * (t - 4) + i // 16)
        r = ring.pop(0); breg[n] = r
        byte = FF_CS + 1024 * t if i == 32 else slot(16 + 2 * (t - 4) + i // 16) + 1024 * (i % 16)
        q.op(f'ds_read_b128 {Q(r)}, ' + lds(WA, byte), ('b', n))
        if i < 32 and i % 16 == 8 and (t, i) != (6, 24): poll(17 + 2 * (t - 4) + i // 16)
    stamp(a, 1, VS)
    a('s_mov_b32 s44, 0')
    lds_spin(a, PV, 9, 0, 44)
    stamp(a, 2, VS)
    for ks in range(2):
        for x in rdH(ks): q.op(x, ('r', ks))
        for f in range(4): q.op(rdW(ks, f), ('r', ks))
        if ks == 0: poll(1)
    for ks in range(32):
        S = stats(HR + 4 * ks)
        nk = ks + 2
        cuts = [0, 4, 10, 17, 24] if ks % 2 == 0 else [0, 5, 11, 18, 24]
        if NOSTAT: S = []
        if DOT2:
            S = []
            if ks % DOT2 == DOT2 - 1:
                for r in range(HR + 4 * (ks - DOT2 + 1), HR + 4 * ks + 4):
                    S += [f'v_dot2c_f32_bf16 v{S1+(r&1)}, s35, v{r}', f'v_dot2c_f32_bf16 v{S2+(r&1)}, v{r}, v{r}']
            cuts = [0, 0, 0, 0, len(S)]
        q.wait(('r', ks))
        for f in range(4):
            a(MF(ACC + 16 * f, WF[ks&1] + 4 * f, HR + 4 * ks, ks == 0))
            if f == 0:
                if ks % 2 == 0 and nk < 32: check(nk // 2)
                if ks % 2 == 1 and ks < 31: poll((ks + 3) // 2)
            if f == 2 and ks % 2 == 0 and ks // 2 in BARS: a('s_barrier')
            if nk < 32:
                q.op(rdW(nk, f), ('r', nk))
                if f < 2: q.op(rdH(nk)[f], ('r', nk))
            elif ks == 30 or f < 2:
                rdB()
            for x in S[cuts[f]:cuts[f+1]]: a(x)
    stamp(a, 3, VS)
    if STAMP: a(f'v_writelane_b32 v{VS}, s44, 13')
    C1, IR2 = 6, 7
    if DOT2: a('s_nop 2')
    b = Asm()
    b(f'v_add_f32 v{T}, v{S1}, v{S1+1}')
    b(f'v_add_f32 v{T+2}, v{S2}, v{S2+1}')
    b(f'v_mov_b32 v{T+1}, v{T}')
    b(f'v_mov_b32 v{T+3}, v{T+2}')
    b(f'v_permlane32_swap_b32 v{T}, v{T+1}')
    b(f'v_permlane32_swap_b32 v{T+2}, v{T+3}')
    b(f'v_add_f32 v{T}, v{T}, v{T+1}')
    b(f'v_add_f32 v{T+2}, v{T+2}, v{T+3}')
    b(f'v_mul_f32 v{T}, 0xbb000000, v{T}')
    b(f'v_mul_f32 v{T+2}, 0x3b000000, v{T+2}')
    for w in range(4): b(f'v_cvt_pk_bf16_f32 v{S1+w}, v{T}, v{T}')
    b(f'v_fma_f32 v{T+2}, -v{T}, v{T}, v{T+2}')
    b(f'v_max_f32 v{T+2}, 0, v{T+2}')
    ln_sigma(b, T + 2, C1)
    b(f'v_mul_f32 v{IR2}, v{T+2}, v{T+2}')
    b(f'v_mul_f32 v{C1}, 0xbfb8aa3b, v{C1}')
    fill = [(l.strip(), 0) for l in b.lines if not l.strip().startswith('s_nop')]
    vq = []
    def store(t): return f'buffer_store_dwordx4 {Q(accof[t]+8)}, v3, s[{WS}:{WS+3}], s{37 if t < 4 else 36} offen offset:{1024*(t&3)}{SCS}'
    for t in range(6):
        e = seq.index((t, 32)) + 2
        fill += [(x, e) for x in epi_tile_s(accof[t], T, C1, IR2)] + [(store(t), e)]
    wt = lambda x: 2 if x.split()[0] in TRANS else 1
    budget = 0.0
    done_at = {}
    for n, (t, i) in enumerate(seq):
        q.wait(('b', n))
        if i == 0 and t >= 5: assert (t - 5) in done_at, 'accumulator not free yet'
        a(MF(accof[t], breg[n], S1 if i == 32 else HR + 4 * i, i == 0))
        ring.append(breg[n])
        if (t, i) == (5, 1): a('s_barrier')
        if nb[0] < len(seq): rdB()
        budget = min(budget + CAPB, CAPB + 1)
        while fill and fill[0][1] <= n and budget >= wt(fill[0][0]):
            x = fill.pop(0)[0]; budget -= wt(x); a(x)
            if x.startswith('buffer_store'):
                done_at[len(done_at)] = n; vq.append(len(done_at) - 1)
        for ph, g in FLAGN.items():
            if g == n:
                a(f's_waitcnt vmcnt({len(vq) - 1 - vq.index(PH[ph][-1])})')
                a('s_mov_b64 exec, 1')
                a(f's_add_u32 s39, s38, {131072*ph}\nbuffer_store_dword v10, v11, s[{WS}:{WS+3}], s39 offen sc1')
                a('s_mov_b64 exec, -1')
                vq.append('f')
    stamp(a, 4, VS)
    for x, _ in fill:
        a(x)
        if x.startswith('buffer_store'):
            done_at[len(done_at)] = 999; vq.append(len(done_at) - 1)
    print('phase B leftover fillers:', len(fill), 'stores at', done_at, file=sys.stderr)
    for x in epi_tile_s(accof[6], T, C1, IR2): a(x)
    a(store(6)); vq.append(6)
    stamp(a, 5, VS)
    a('s_mov_b64 exec, 1')
    for ph in range(len(PH)):
        if ph in FLAGN: continue
        a(f's_waitcnt vmcnt({len(vq) - 1 - vq.index(PH[ph][-1])})')
        a(f's_add_u32 s39, s38, {131072*ph}\nbuffer_store_dword v10, v11, s[{WS}:{WS+3}], s39 offen sc1')
        vq.append('f')
    stamp(a, 6, VS)
    stamp_end(a, 7, VS, 2, 16)
    a('s_endpgm')
    for st in stubs:
        a(f'ff_xs{st}:')
        lds_spin(a, PV, 9, 16 * st, 44)
        a(f's_branch ff_xg{st}')
    a('ff_ld:')
    a.flush_hist()
    VS = 1
    stamp_begin(a, VS)
    a('s_mul_i32 s28, s22, %d' % W1F_NT)
    a('s_lshl_b32 s25, s21, 17')
    a('s_lshl_b32 s26, s20, 11')
    a('v_add_u32 v16, s26, v3')
    a('s_lshr_b32 s30, s20, 1')
    a('s_mul_i32 s30, s30, 7168')
    a('s_and_b32 s24, s20, 1')
    a('s_lshl_b32 s24, s24, 11')
    a('s_add_u32 s30, s30, s24')
    a('s_mov_b32 s31, 0')
    a('s_lshl_b32 s24, s20, 12')
    a('s_mul_i32 s32, s20, %d' % (4 * 7168))
    a('s_lshl_b32 s29, s20, 2')
    a('s_add_u32 s29, s29, %d' % FF_FLG)
    a('s_mov_b32 s47, 0x7f000000')
    a('s_add_u32 m0, s26, 8192')
    a('s_waitcnt lgkmcnt(0)')
    srd(a, HT, 4, 131072, WS_HT, offreg=25)
    srd(a, W1F, 4, 33 * 7168, WS_W1F, offreg=28)
    pc = [PACE]
    def pace():
        if pc[0]: a(f's_waitcnt vmcnt({pc[0]})')
    def dma(j):
        sl = (j % G1_NS) * G1_SLOT
        if j < 16:
            if j: a('s_add_u32 m0, s26, %d' % (sl + 8192))
            pace()
            a(f'buffer_load_dwordx4 v16, s[{HT}:{HT+3}], s31 offen lds')
            a(f'buffer_load_dwordx4 v16, s[{HT}:{HT+3}], s31 offen offset:1024 lds')
            a('s_add_u32 m0, s26, %d' % sl)
            a('s_add_u32 s31, s31, 8192')
            pace()
            a(f'buffer_load_dwordx4 v3, s[{W1F}:{W1F+3}], s30 offen lds')
            a(f'buffer_load_dwordx4 v3, s[{W1F}:{W1F+3}], s30 offen offset:1024 lds')
            a('s_add_u32 s30, s30, 14336')
        else:
            t, hf = 4 + (j - 16) // 2, (j - 16) % 2
            a('s_add_u32 m0, s24, %d' % sl)
            for i in range(4):
                a('s_add_u32 s30, s32, %d' % (1024 * t + 7168 * 16 * hf + 6144 * i))
                if i % 2 == 0: pace()
                a(f'buffer_load_dwordx4 v3, s[{W1F}:{W1F+3}], s30 offen offset:{1024*i} lds')
        if j == CSST:
            a('s_add_u32 m0, s26, %d' % FF_CS)
            a('s_mov_b32 s33, %d' % (32 * 7168))
            pace()
            a(f'buffer_load_dwordx4 v16, s[{W1F}:{W1F+3}], s33 offen lds')
            a(f'buffer_load_dwordx4 v16, s[{W1F}:{W1F+3}], s33 offen offset:1024 lds')
        if j == 0: a('s_barrier')
        a('s_add_u32 m0, s29, %d' % (16 * j))
        a('s_mov_b64 exec, 1')
        a(f'buffer_load_dword v3, s[{W1F}:{W1F+3}], s47 offen lds')
        a('s_mov_b64 exec, -1')
    if LPRIO: a(f's_setprio {LPRIO}')
    stamp(a, 1, VS)
    pos2s = {st + LEAD: st for st in BARS}
    allowed = G1_NS - 1
    posmap = [(p, f) for ph in PH for p in range(4) for f in ph]
    ACC = 16
    WDR = 112
    wreg = {}
    nwd = 0
    def wd_off(k):
        p, f = posmap[k]
        return f's_add_u32 s55, s{72+p}, {2048*f}'
    def wd_reg_load():
        nonlocal nwd
        k = nwd; nwd += 1
        wreg[k] = WDR + 8 * k
        a(wd_off(k))
        pace()
        a(f'buffer_load_dwordx4 {Q(wreg[k])}, v8, s[{WS}:{WS+3}], s55 offen')
        pace()
        a(f'buffer_load_dwordx4 {Q(wreg[k]+4)}, v9, s[{WS}:{WS+3}], s55 offen')
    for j in range(22):
        assert j <= allowed, (j, allowed)
        dma(j)
        if j == 1:
            a('s_and_b32 s48, s2, 7')
            a('s_lshl_b32 s48, s48, 2')
            a('s_bfe_u32 s49, s2, 0x20003')
            a('s_add_u32 s48, s48, s49')
            a('s_lshr_b32 s49, s2, 5')
            a('s_mul_i32 s50, s48, 224')
            a('s_mul_i32 s52, s20, 28')
            a('s_add_u32 s50, s50, s52')
            a('s_lshl_b32 s50, s50, 10')
            a('s_add_u32 s50, s50, %d' % WS_ACT)
            a('s_mul_i32 s51, s49, 112')
            a('s_add_u32 s51, s51, s52')
            a('s_lshl_b32 s51, s51, 11')
            a('s_add_u32 s51, s51, %d' % WS_WDF)
            a('s_and_b32 s53, s49, %d' % XR2)
            for p in range(4):
                a(f's_xor_b32 s54, s53, {p}')
                a('s_mul_i32 s54, s54, 7168')
                a(f's_add_u32 s{68+p}, s50, s54')
                a('s_lshl_b32 s54, s54, 1')
                a(f's_add_u32 s{72+p}, s51, s54')
            a('s_lshr_b32 s56, s20, 1')
            a('s_and_b32 s57, s20, 1')
            a('s_lshl_b32 s58, s56, 10')
            a('v_add_u32 v8, s58, v3')
            a('v_xor_b32 v9, 0x400, v8')
            a('s_mul_i32 s58, s57, 0x1c000')
            a('v_add_u32 v10, s58, v3')
            a('v_xor_b32 v11, 0x1c000, v10')
            srd(a, WS, 4, WS_END)
            srd(a, OUT, 6, 2 * MiB)
        if j == 3:
            a('s_mul_i32 s58, s20, 20480')
            a('s_add_u32 s58, s58, %d' % FF_WD)
            a('v_add_u32 v12, s58, v3')
            a('v_lshrrev_b32 v5, 3, v2')
            a('v_and_b32 v6, 7, v2')
            a('s_and_b32 s59, s48, 1')
            a('s_lshl_b32 s59, s59, 3')
            a('v_or_b32 v6, s59, v6')
            a('v_and_b32 v7, 3, v5')
            a('v_lshlrev_b32 v7, 2, v7')
            a('v_xor_b32 v6, v6, v7')
            a('v_lshlrev_b32 v5, 8, v5')
            a('v_lshl_add_u32 v5, v6, 4, v5')
            a('s_lshl_b32 s59, s49, 14')
            a('s_lshl_b32 s60, s20, 12')
            a('s_add_u32 s59, s59, s60')
            a('s_lshr_b32 s60, s48, 1')
            a('s_lshl_b32 s60, s60, 17')
            a('s_add_u32 s59, s59, s60')
            a('s_add_u32 s59, s59, %d' % WS_HT)
            a('s_add_u32 s60, s59, 0x800')
            a('s_lshl_b32 s61, s57, 11')
            a('s_lshl_b32 s64, s56, 12')
            a('s_add_u32 s61, s61, s64')
            a('v_mov_b32 v17, v5')
            a('s_mov_b32 s66, s59')
            a('s_mov_b32 s67, s60')
            a('s_add_u32 s76, s61, %d' % FF_H)
            a('v_and_b32 v4, 15, v2')
            a('v_lshrrev_b32 v5, 4, v2')
            a('v_lshrrev_b32 v6, 2, v4')
            a('v_and_b32 v7, 3, v4')
            a('v_lshrrev_b32 v13, 1, v5')
            a('v_and_b32 v5, 1, v5')
            a('v_lshl_add_u32 v14, v13, 2, v6')
            a('v_lshlrev_b32 v14, 7, v14')
            a('v_lshl_add_u32 v14, v5, 5, v14')
            a('v_lshl_add_u32 v14, v7, 3, v14')
            a('s_lshl_b32 s60, s57, 6')
            a('s_add_u32 s59, s64, s60')
            a('s_add_u32 s59, s59, %d' % FF_H)
            a('v_add_u32 v14, s59, v14')
            a('v_and_b32 v15, 31, v2')
            a('v_lshlrev_b32 v15, 10, v15')
            a('v_lshl_add_u32 v15, v13, 4, v15')
            a('s_lshl_b32 s62, s48, 16')
            a('s_lshl_b32 s60, s57, 15')
            a('s_add_u32 s62, s62, s60')
            a('s_lshl_b32 s60, s49, 7')
            a('s_add_u32 s62, s62, s60')
            a('s_lshl_b32 s60, s56, 6')
            a('s_add_u32 s62, s62, s60')
            a('s_mov_b32 s63, 0xffff0000')
            a('s_lshl_b32 s59, s48, 2')
            a('s_add_u32 s59, s59, s20')
            a('s_lshl_b32 s59, s59, 10')
            a('s_add_u32 s59, s59, %d' % WS_GF)
            a('v_and_b32 v13, 7, v2')
            a('v_lshlrev_b32 v13, 7, v13')
            a('s_mov_b32 s60, 0')
            for p in (1, 2, 3):
                a(f's_xor_b32 s33, s20, {p}')
                a('s_mul_i32 s33, s33, 12288')
                a(f'v_add_u32 v{3+p}, s33, v3')
            a('s_mul_i32 s33, s20, 12288')
            a('v_add_u32 v7, s33, v3')
        if j == 17:
            a('s_mov_b32 m0, s76')
            pace()
            a(f'buffer_load_dwordx4 v17, s[{WS}:{WS+3}], s66 offen lds')
            a('s_add_u32 m0, m0, 1024')
            a(f'buffer_load_dwordx4 v17, s[{WS}:{WS+3}], s67 offen lds')
        if WDI0 <= j < WDI0 + WDIN: wd_reg_load()
        if j in pos2s:
            a('s_barrier')
            allowed = max(allowed, pos2s[j] - 1 + G1_NS)
    stamp(a, 2, VS)
    n0 = nwd
    pc[0] = PACE2
    while nwd < RK:
        wd_reg_load()
        if nwd - n0 == BAR14 + 1:
            a('s_barrier')
    assert RK - n0 > BAR14
    stamp(a, 9, VS)
    PVR = 2
    poll_ld = lambda ph: f's_add_u32 s65, s59, {131072*ph}\nbuffer_load_dword v{PVR}, v13, s[{WS}:{WS+3}], s65 offen sc1'
    def poll_loop(ph, back=None):
        L = f'ff_poll{ph}'
        a(f'{L}:')
        a(poll_ld(ph))
        a('s_add_u32 s60, s60, 1')
        a('s_waitcnt vmcnt(0)')
        a(f'v_cmp_eq_u32 vcc, 0, v{PVR}')
        a(f's_cbranch_vccz ff_rdy{ph}')
        a('s_cmp_lt_u32 s60, 0x40000')
        a('s_sleep 2')
        a(f's_cbranch_scc1 {L}')
        if back: a(f's_branch ff_rdy{ph}')
    order = []
    stamp(a, 10, VS)
    a('s_mov_b32 m0, s58')
    for k in range(LK):
        if k == 3: stamp(a, 11, VS)
        if k == 6: stamp(a, 12, VS)
        a(wd_off(RK + k))
        pace()
        a(f'buffer_load_dwordx4 v8, s[{WS}:{WS+3}], s55 offen lds')
        a('s_add_u32 m0, m0, 1024')
        pace()
        a(f'buffer_load_dwordx4 v9, s[{WS}:{WS+3}], s55 offen lds')
        a('s_add_u32 m0, m0, 1024')
        order += ['w', 'w']
        if k == LK - 1 - POLL0:
            a(poll_ld(0)); order.append(('poll', 0))
    stamp(a, 3, VS)
    free = [80, 88, 96, 104]
    areg = {}
    q = DsQ(a)
    nact = 0; nwl = RK
    pstart = {}
    c = 0
    for ph, tl in enumerate(PH):
        pstart[c] = ph; c += 4 * len(tl)
    vdone = [0]
    def vwait(tag):
        last = max(i for i, o in enumerate(order) if o == tag)
        if last + 1 > vdone[0]:
            a(f's_waitcnt vmcnt({len(order) - 1 - last})')
            vdone[0] = last + 1
    def issue(k_now):
        nonlocal nact, nwl
        while True:
            if nwl < 28 and nwl <= k_now + 3 and free:
                r = free.pop(0); wreg[nwl] = r
                lo = 2048 * (nwl - RK)
                q.op(f'ds_read_b128 {Q(r)}, v12 offset:{lo}', nwl)
                q.op(f'ds_read_b128 {Q(r+4)}, v12 offset:{lo+1024}', nwl)
                nwl += 1
            elif nact < 28 and nact <= k_now + DA and free:
                if nact in pstart:
                    ph = pstart[nact]
                    vwait(('poll', ph))
                    a(f'v_cmp_eq_u32 vcc, 0, v{PVR}')
                    a(f's_cbranch_vccnz ff_poll{ph}')
                    a(f'ff_rdy{ph}:')
                    if ph == 0: stamp(a, 4, VS)
                r = free.pop(0); areg[nact] = r
                p, f = posmap[nact]
                a(f's_add_u32 s61, s{68+p}, {1024*f}')
                a(f'buffer_load_dwordx4 {Q(r)}, v10, s[{WS}:{WS+3}], s61 offen{SC}')
                a(f'buffer_load_dwordx4 {Q(r+4)}, v11, s[{WS}:{WS+3}], s61 offen{SC}')
                order.extend([nact] * 2)
                nact += 1
                if nact + PLEAD in pstart:
                    a(poll_ld(pstart[nact + PLEAD])); order.append(('poll', pstart[nact + PLEAD]))
            else:
                break
    issue(0)
    RESR = None
    for k in range(28):
        vwait(k)
        if RK <= k: q.wait(k)
        for p in (3, 2, 1, 0):
            px, py = p >> 1, p & 1
            c = f'v[{ACC+16*p}:{ACC+16*p+15}]'
            a(f'v_mfma_f32_32x32x16_bf16 {c}, {Q(wreg[k]+4*px)}, {Q(areg[k]+4*py)}, {"0" if k == 0 else c}')
        free += [wreg[k], areg[k]]
        issue(k + 1)
        if k == 25:
            a('s_barrier')
            RESR = free.pop(0)
            for x in range(4):
                q.op(f'ds_read_b64_tr_b16 {P(RESR+2*x)}, v14 offset:{1024*x}', 'res')
    stamp(a, 5, VS)
    for p in (3, 2, 1):
        for j in range(4):
            q.op(f'ds_write_b128 v{3+p}, {Q(ACC+16*p+4*j)} offset:{FF_RED+(p-1)*4096+1024*j}', 'w')
    R = 224 if 224 != RESR and 232 != RESR else 192
    assert RESR not in (R, R + 8)
    q.wait('res')
    for x in range(4):
        a(f'v_lshlrev_b32 v{R+4*x}, 16, v{RESR+2*x}')
        a(f'v_and_b32 v{R+4*x+1}, s63, v{RESR+2*x}')
        a(f'v_lshlrev_b32 v{R+4*x+2}, 16, v{RESR+2*x+1}')
        a(f'v_and_b32 v{R+4*x+3}, s63, v{RESR+2*x+1}')
    for r in range(0, 16, 2):
        a(f'v_pk_add_f32 {P(R+r)}, {P(R+r)}, {P(ACC+r)}')
    a('s_waitcnt lgkmcnt(0)')
    a('s_barrier')
    stamp(a, 6, VS)
    for j in range(4):
        for p in range(3):
            a(f'ds_read_b128 {Q(32+16*p+4*j)}, v7 offset:{FF_RED+4096*p+1024*j}')
    for j in range(4):
        a(f's_waitcnt lgkmcnt({9-3*j})')
        for r in range(4*j, 4*j+4, 2):
            a(f'v_pk_add_f32 {P(R+r)}, {P(R+r)}, {P(32+r)}')
            a(f'v_pk_add_f32 {P(48+r)}, {P(48+r)}, {P(64+r)}')
        for r in range(4*j, 4*j+4, 2):
            a(f'v_pk_add_f32 {P(R+r)}, {P(R+r)}, {P(48+r)}')
        a(f'v_cvt_pk_bf16_f32 v{100+2*j}, v{R+4*j}, v{R+4*j+1}')
        a(f'v_cvt_pk_bf16_f32 v{101+2*j}, v{R+4*j+2}, v{R+4*j+3}')
        if j & 1:
            p = j >> 1
            a(f'v_permlane32_swap_b32 v{100+4*p}, v{102+4*p}')
            a(f'v_permlane32_swap_b32 v{101+4*p}, v{103+4*p}')
            a(f'buffer_store_dwordx4 {Q(100+4*p)}, v15, s[{OUT}:{OUT+3}], s62 offen offset:{32*p}')
    stamp(a, 7, VS)
    stamp_end(a, 8, VS, 2, 110)
    a('ff_end:')
    a('s_endpgm')
    for ph in range(len(PH)): poll_loop(ph, True)
    return name, 256, 102, None

class DsQ:
    def __init__(self, a):
        self.a = a; self.q = []; self.done = 0
    def op(self, txt, tag=None):
        self.a(txt); self.q.append(tag)
    def wait(self, *tags):
        idx = max(len(self.q) - 1 - self.q[::-1].index(t) for t in tags) + 1
        if idx > self.done:
            n = min(len(self.q) - idx, 15)
            self.a(f's_waitcnt lgkmcnt({n})')
            self.done = len(self.q) - n

def main(out):
    a = Asm()
    ks = []
    launches = [('prep_kernel', 256, 704 if FMT_IN_PREP else 512, 24576 if FMT_IN_PREP else 0), ('conv_kernel', 256, 512, CV_LDS), ('ffn_kernel', 256, 512, FF_LDS)]
    gens = [gen_prep, gen_conv, gen_ffn]
    if TLA >= 0:
        launches.append(('tl_kernel', 1, 64, 0)); gens.append(gen_tl)
    txt = HEADER
    for n, g, b, l in launches:
        txt += f'; @launch kernel={n} grid=({g},1,1) block=({b},1,1) lds={l}\n'
    txt += '.amdgcn_target "amdgcn-amd-amdhsa--gfx950"\n.text\n'
    for g in gens:
        ks.append(g(a))
    txt += a.text() + 'code_end:\n'
    txt += '.section .rodata,"a"\n'
    for n, v, s, acc in ks:
        txt += kernel_desc(n, v, s, acc)
    open(out, 'w').write(txt)

if __name__ == '__main__':
    for arg in sys.argv[2:]:
        if arg == 'stamp': STAMP = True
        elif '=' in arg:
            k, v = arg.split('='); globals()[k] = int(v, 0)
    main(sys.argv[1] if len(sys.argv) > 1 else 'sequential_preLN__ssm_conv_h3__swiglu_ffn__prompt.s')
```
